```python
import torch

def _softmax(x, axis=-1):
    return torch.softmax(x, dim=axis)
def _gelu(x):
    return torch.nn.functional.gelu(x, approximate="tanh")
def _silu(x):
    return torch.nn.functional.silu(x)
def _sigmoid(x):
    return torch.sigmoid(x)
def _layernorm(x, axis=-1, eps=1e-5):
    m = x.mean(dim=axis, keepdim=True)
    v = x.var(dim=axis, keepdim=True, unbiased=False)
    return (x - m) / torch.sqrt(v + eps)
def _scatter_add(tgt, idx, src, axis=0):
    return tgt.clone().index_add_(axis, idx, src)
def _segment_sum(src, seg, n):
    out = torch.zeros((n,) + src.shape[1:], dtype=src.dtype)
    return out.index_add_(0, seg, src)
def _pad(x, pw):
    flat = tuple(v for pair in reversed(pw) for v in pair)
    return torch.nn.functional.pad(x, flat)

kernel_name = 'concat_heads__gqa_block_cached__mha_block_cached__near_ridge'

def setup_inputs():

    _w = (lambda a: (lambda t: t.to(torch.bfloat16) if t.is_floating_point() else t)(torch.as_tensor(a)))
    def _A_setup():
        B, Sq, D = 8, 96, 640
        Hq, Hkv, Sk, Dh = 32, 32, 96, 128
        assert Hq % Hkv == 0, (Hq, Hkv)
        return {
            "x": _w((lambda *s: torch.randn(*s, dtype=torch.bfloat16) * 0.8)(B, Sq, D)),
            "k_cache": _w((lambda *s: torch.randn(*s, dtype=torch.bfloat16) * 0.8)(B, Hkv, Sk, Dh)),
            "v_cache": _w((lambda *s: torch.randn(*s, dtype=torch.bfloat16) * 0.05)(B, Hkv, Sk, Dh)),
            "wq": _w((lambda *s: torch.randn(*s, dtype=torch.bfloat16) * 0.8)(D, Hq * Dh) * (D ** -0.5)),
            "wo": _w((lambda *s: torch.randn(*s, dtype=torch.bfloat16) * 0.05)(Hq * Dh, D) * ((Hq * Dh) ** -0.5)),
        }
    _A_in = _A_setup()

    def _B_setup():
        B, Sq, D = 8, 96, 640
        H, Sk, Dh = 32, 96, 128
        return {
            "x": _w((lambda *s: torch.randn(*s, dtype=torch.bfloat16) * 0.8)(B, Sq, D)),
            "k_cache": _w((lambda *s: torch.randn(*s, dtype=torch.bfloat16) * 0.8)(B, H, Sk, Dh)),
            "v_cache": _w((lambda *s: torch.randn(*s, dtype=torch.bfloat16) * 0.05)(B, H, Sk, Dh)),
            "wq": _w((lambda *s: torch.randn(*s, dtype=torch.bfloat16) * 0.8)(D, H * Dh) * (D ** -0.5)),
            "wo": _w((lambda *s: torch.randn(*s, dtype=torch.bfloat16) * 0.05)(H * Dh, D) * ((H * Dh) ** -0.5)),
        }
    _B_in = _B_setup()

    return {
        "A_x": _A_in["x"],
        "A_k_cache": _A_in["k_cache"],
        "A_v_cache": _A_in["v_cache"],
        "A_wq": _A_in["wq"],
        "A_wo": _A_in["wo"],
        "B_x": _B_in["x"],
        "B_k_cache": _B_in["k_cache"],
        "B_v_cache": _B_in["v_cache"],
        "B_wq": _B_in["wq"],
        "B_wo": _B_in["wo"],
    }

def reference(A_x, A_k_cache, A_v_cache, A_wq, A_wo, B_x, B_k_cache, B_v_cache, B_wq, B_wo):
    def _A_ref(x, k_cache, v_cache, wq, wo):
        B, Sq, D = x.shape
        Hq, Dh = 32, 128
        Hkv = k_cache.shape[1]
        rep = Hq // Hkv
        q = (lambda x, *d: x.permute(*d))((x @ wq).reshape(B, Sq, Hq, Dh), 0, 2, 1, 3)
        k = (lambda x, n, axis: torch.repeat_interleave(x, n, dim=axis))(k_cache, rep, axis=1)
        v = (lambda x, n, axis: torch.repeat_interleave(x, n, dim=axis))(v_cache, rep, axis=1)
        scores = torch.einsum("bhqd,bhkd->bhqk", q, k) * (Dh ** -0.5)
        p = _softmax(scores, axis=-1)
        o = torch.einsum("bhqk,bhkd->bhqd", p, v)
        return (lambda x, *d: x.permute(*d))(o, 0, 2, 1, 3).reshape(B, Sq, Hq * Dh) @ wo

    def _B_ref(x, k_cache, v_cache, wq, wo):
        B, Sq, D = x.shape
        H, Dh = 32, 128
        q = (lambda x, *d: x.permute(*d))((x @ wq).reshape(B, Sq, H, Dh), 0, 2, 1, 3)
        scores = torch.einsum("bhqd,bhkd->bhqk", q, k_cache) * (Dh ** -0.5)
        p = _softmax(scores, axis=-1)
        o = torch.einsum("bhqk,bhkd->bhqd", p, v_cache)
        return (lambda x, *d: x.permute(*d))(o, 0, 2, 1, 3).reshape(B, Sq, H * Dh) @ wo

    a = _A_ref(A_x, A_k_cache, A_v_cache, A_wq, A_wo)
    b = _B_ref(B_x, B_k_cache, B_v_cache, B_wq, B_wo)
    return torch.concatenate([a, b], axis=-1)
```

```python
import sys, math

NAME = "concat_heads__gqa_block_cached__mha_block_cached__near_ridge"

class Cfg:
    nt_x = ""
    nt_wq = ""
    nt_kv = " nt"
    nt_wo = ""
    o_st = " sc1"
    o_ld = ""
    out_st = ""
    rot = 1
    k_after = 0
    v_after = 1
    stamps = 0

cfg = Cfg()
for a in sys.argv[2:]:
    k, v = a.split("=")
    old = getattr(cfg, k)
    if isinstance(old, int):
        setattr(cfg, k, int(v))
    else:
        setattr(cfg, k, (" " + v.replace("+", " ")) if v else "")

L = []
def e(s=""):
    L.append("    " + s)
def lab(s):
    L.append(s + ":")
def cmt(s):
    L.append("    ; " + s)

def vr(a, n=1):
    return f"v{a}" if n == 1 else f"v[{a}:{a+n-1}]"
def sr(a, n=1):
    return f"s{a}" if n == 1 else f"s[{a}:{a+n-1}]"
def mfma(d, a, b, c=None):
    cs = vr(d, 4) if c is None else c
    return f"v_mfma_f32_16x16x32_bf16 {vr(d,4)}, {vr(a,4)}, {vr(b,4)}, {cs}"

STAMP_OFF = 64 << 20
def stamp(idx, srd=None, tmpv=None):
    if not cfg.stamps:
        return
    e(f"s_memrealtime s[{52+2*idx}:{53+2*idx}]")
def stamp_flush(n):
    if not cfg.stamps:
        return
    e("s_waitcnt lgkmcnt(0)")
    e("v_mov_b32 v251, 0")
    for i in range(n):
        e(f"v_mov_b32 v250, s{52+2*i}")
        e(f"buffer_store_dword v250, v251, s[84:87], s92 offen offset:{i*4}")
        e("s_nop 1")

SLOT = 40960
XB = 24576
KFR = 1056
KSZ = 24 * KFR
KBASE = 2 * SLOT
VROW = 288
VSZ = 96 * VROW
VBASE = 0
O_BR = 768 * 4096 * 2

def stamp_setup(kidx):
    if not cfg.stamps:
        return
    e(f"s_add_u32 s84, s26, {STAMP_OFF}")
    e("s_addc_u32 s85, s27, 0")
    e("s_mov_b32 s86, 0x100000")
    e("s_mov_b32 s87, 0x20000")
    e(f"s_add_u32 s92, s2, {kidx*256}")
    e("s_lshl_b32 s92, s92, 3")
    e("s_add_u32 s92, s92, s7")
    e("s_lshl_b32 s92, s92, 6")

def gen_p1():
    lab("p1_kernel")
    e("s_cmp_ge_u32 s2, 256")
    e("s_cbranch_scc1 P1_END")
    if cfg.stamps:
        e("s_memrealtime s[52:53]")
    e("s_and_b32 s3, s2, 7")
    e("s_lshr_b32 s4, s3, 2")
    e("s_mul_i32 s5, s4, 40")
    e("s_load_dwordx8 s[8:15], s[0:1], s5")
    e("s_load_dwordx2 s[26:27], s[0:1], 96")
    e("v_lshrrev_b32 v1, 6, v0")
    e("s_lshr_b32 s6, s2, 3")
    e("v_readfirstlane_b32 s7, v1")
    e("v_and_b32 v0, 63, v0")
    e("s_and_b32 s16, s3, 3")
    e("s_lshl_b32 s16, s16, 3")
    e("s_and_b32 s17, s6, 7")
    e("s_add_u32 s16, s16, s17")
    e("s_lshr_b32 s18, s6, 3")
    e("s_cmp_ge_u32 s7, 6")
    e("s_cbranch_scc1 P1_KV")
    e("s_cmp_ge_u32 s7, 4")
    e("s_cbranch_scc1 P1_STREAM")
    gen_p1_compute()
    gen_p1_stream()
    gen_p1_kv()
    lab("P1_END")
    e("s_endpgm")

def gen_p1_stream():
    lab("P1_STREAM")
    e("s_sub_u32 s19, s7, 4")
    if cfg.rot == 0:
        e("s_mov_b32 s20, 0")
    elif cfg.rot == 1:
        e("s_add_u32 s20, s17, s18")
        e("s_and_b32 s20, s20, 1")
        e("s_mul_i32 s20, s20, 5")
    elif cfg.rot == 2:
        e("s_lshl_b32 s20, s18, 1")
        e("s_add_u32 s20, s20, s17")
        e("s_and_b32 s20, s20, 7")
        e("s_mul_i32 s20, s20, 5")
        e("s_lshr_b32 s20, s20, 2")
    elif cfg.rot == 3:
        e("s_add_u32 s20, s17, s18")
        e("s_and_b32 s20, s20, 3")
        e("s_mul_i32 s20, s20, 5")
        e("s_lshr_b32 s20, s20, 1")
    e("v_lshrrev_b32 v1, 3, v0")
    e("v_and_b32 v2, 7, v0")
    e("v_and_b32 v3, 6, v1")
    e("v_xor_b32 v2, v2, v3")
    e("v_lshlrev_b32 v2, 4, v2")
    e("s_mul_i32 s21, s19, 96")
    e("v_add_u32 v1, s21, v1")
    e("v_mul_u32_u24 v1, 1280, v1")
    e("v_add_u32 v10, v1, v2")
    e("v_lshrrev_b32 v1, 4, v0")
    e("v_and_b32 v2, 15, v0")
    e("v_lshlrev_b32 v3, 1, v1")
    e("v_xor_b32 v2, v2, v3")
    e("v_lshlrev_b32 v2, 4, v2")
    e("s_lshl_b32 s21, s19, 5")
    e("v_add_u32 v1, s21, v1")
    e("v_lshlrev_b32 v1, 13, v1")
    e("v_add_u32 v11, v1, v2")
    e("v_xor_b32 v12, 128, v11")
    e("s_waitcnt lgkmcnt(0)")
    stamp_setup(0)
    e(f"s_mul_i32 s21, s18, {192*1280}")
    e("s_add_u32 s32, s8, s21")
    e("s_addc_u32 s33, s9, 0")
    e(f"s_mov_b32 s34, {192*1280}")
    e("s_mov_b32 s35, 0x20000")
    e("s_lshl_b32 s21, s16, 8")
    e("s_add_u32 s36, s14, s21")
    e("s_addc_u32 s37, s15, 0")
    e(f"s_sub_u32 s38, {640*8192}, s21")
    e("s_mov_b32 s39, 0x20000")
    e(f"s_mul_i32 s22, s19, {96*128}")
    e(f"s_mul_i32 s23, s19, {32*256}")
    e(f"s_add_u32 s23, s23, {XB}")
    e("s_mov_b32 s24, 0")
    e("s_mov_b32 s25, 0")
    lab("P1_ST_LOOP")
    e("s_lshl_b32 s28, s20, 19")
    e("s_add_u32 m0, s24, s23")
    e("s_lshl_b32 s29, s20, 7")
    for t in range(8):
        e(f"buffer_load_dwordx4 {vr(11 + ((t>>1)&1))}, s[36:39], s28 offen{cfg.nt_wq} lds")
        if t < 7:
            e("s_add_u32 m0, m0, 1024")
            e("s_add_u32 s28, s28, 32768")
    e("s_add_u32 m0, s24, s22")
    e("s_add_u32 s20, s20, 1")
    for t in range(12):
        e(f"buffer_load_dwordx4 v10, s[32:35], s29 offen{cfg.nt_x} lds")
        if t < 11:
            e("s_add_u32 m0, m0, 1024")
            e("s_add_u32 s29, s29, 10240")
    e("s_cmp_eq_u32 s20, 10")
    e("s_cselect_b32 s20, 0, s20")
    e(f"s_add_u32 s24, s24, {SLOT}")
    e(f"s_cmp_eq_u32 s24, {4*SLOT}")
    e("s_cselect_b32 s24, 0, s24")
    e("s_add_u32 s25, s25, 1")
    e("s_cmp_lt_u32 s25, 3")
    e("s_cbranch_scc1 P1_ST_LOOP")
    e("s_waitcnt vmcnt(40)")
    e("s_barrier")
    e("s_cmp_lt_u32 s25, 10")
    e("s_cbranch_scc1 P1_ST_LOOP")
    e("s_waitcnt vmcnt(20)")
    e("s_barrier")
    e("s_waitcnt vmcnt(0)")
    e("s_barrier")
    e("s_barrier")
    e("s_barrier")
    e("s_endpgm")

def gen_p1_kv():
    lab("P1_KV")
    e("s_sub_u32 s19, s7, 6")
    e("s_lshl_b32 s20, s18, 1")
    e("s_add_u32 s20, s20, s19")
    e("s_lshl_b32 s20, s20, 5")
    e("s_add_u32 s20, s20, s16")
    e("s_mul_i32 s20, s20, 24576")
    e("v_lshlrev_b32 v1, 4, v0")
    e("v_bfe_u32 v4, v0, 2, 2")
    e(f"v_mul_u32_u24 v2, {KFR}, v4")
    e("v_and_b32 v4, 1, v0")
    e("v_mul_u32_u24 v4, 528, v4")
    e("v_add_u32 v2, v2, v4")
    e("v_lshrrev_b32 v5, 4, v0")
    e("v_lshl_add_u32 v2, v5, 4, v2")
    e("v_bfe_u32 v4, v0, 1, 1")
    e("v_lshl_add_u32 v2, v4, 3, v2")
    e(f"s_mul_i32 s21, s19, {KSZ}")
    e(f"s_add_u32 s21, s21, {KBASE}")
    e("v_add_u32 v2, s21, v2")
    e(f"v_mul_u32_u24 v3, {VROW}, v5")
    e("v_and_b32 v4, 15, v0")
    e("v_lshl_add_u32 v3, v4, 4, v3")
    e(f"s_mul_i32 s21, s19, {VSZ}")
    e(f"s_add_u32 s21, s21, {VBASE}")
    e("v_add_u32 v3, s21, v3")
    e("s_waitcnt lgkmcnt(0)")
    stamp_setup(0)
    e("s_add_u32 s32, s10, s20")
    e("s_addc_u32 s33, s11, 0")
    e("s_mov_b32 s34, 24576")
    e("s_mov_b32 s35, 0x20000")
    e("s_add_u32 s36, s12, s20")
    e("s_addc_u32 s37, s13, 0")
    e("s_mov_b32 s38, 24576")
    e("s_mov_b32 s39, 0x20000")
    KR, VR = 16, 112
    def loads(base, srd):
        for t in range(24):
            if t % 4 == 0:
                e(f"s_movk_i32 s22, {t*1024}")
            e(f"buffer_load_dwordx4 {vr(base+4*t,4)}, v1, {sr(srd,4)}, s22 offen offset:{(t%4)*1024}{cfg.nt_kv}")
    assert cfg.k_after <= cfg.v_after <= 7
    for b in range(-1, 9):
        if b >= 0:
            e("s_barrier")
        if b == cfg.k_after:
            loads(KR, 32)
        if b == cfg.v_after:
            loads(VR, 36)
    e("s_barrier")
    e("s_waitcnt vmcnt(24)")
    stamp(1)
    for t in range(24):
        off = (t >> 2) * 4 * KFR + (t & 3) * 64
        e(f"ds_write_b64 v2, {vr(KR+4*t,2)} offset:{off}")
        e(f"ds_write_b64 v2, {vr(KR+4*t+2,2)} offset:{off+256}")
    e("s_waitcnt lgkmcnt(0)")
    e("s_barrier")
    stamp(2)
    e("s_waitcnt vmcnt(0)")
    stamp(3)
    for t in range(24):
        e(f"ds_write_b128 v3, {vr(VR+4*t,4)} offset:{t*4*VROW}")
    e("s_waitcnt lgkmcnt(0)")
    stamp(4)
    e("s_barrier")
    stamp_flush(5)
    e("s_endpgm")

def interleave(mf, others, per=None):
    oi = 0
    for i, m in enumerate(mf):
        e(m)
        n = per[i] if per and i < len(per) else 0
        for _ in range(n):
            if oi < len(others):
                e(others[oi]); oi += 1
    while oi < len(others):
        e(others[oi]); oi += 1

def gen_p1_compute():
    cmt("compute waves 0..3")
    ACC = 0
    AB = [96, 128]
    BB = [160, 172]
    AA = 184
    BA = 192
    KA, VA, OA = 194, 195, 196
    T0 = 200
    e(f"v_lshrrev_b32 v{T0}, 4, v0")
    e(f"v_and_b32 v{T0+1}, 15, v0")
    e(f"v_bfe_u32 v{T0+2}, v0, 2, 2")
    e(f"v_and_b32 v{T0+3}, 3, v0")
    e(f"v_lshl_add_u32 v{T0+4}, v{T0}, 3, v{T0+2}")
    e(f"v_lshlrev_b32 v{T0+4}, 8, v{T0+4}")
    e(f"v_lshl_add_u32 v{T0+4}, v{T0+3}, 3, v{T0+4}")
    e(f"v_add_u32 v{T0+4}, {XB}, v{T0+4}")
    e(f"v_and_b32 v{T0+5}, 1, v{T0}")
    e(f"v_lshl_add_u32 v{T0+5}, v{T0+5}, 2, v{T0+2}")
    for T in range(8):
        e(f"v_xor_b32 v{T0+6}, {T}, v{T0+5}")
        e(f"v_lshl_add_u32 v{AA+T}, v{T0+6}, 5, v{T0+4}")
    e(f"v_and_b32 v{T0+6}, 6, v{T0+1}")
    e(f"v_xor_b32 v{T0+6}, v{T0+6}, v{T0}")
    e(f"v_lshlrev_b32 v{T0+6}, 4, v{T0+6}")
    e(f"v_lshl_add_u32 v{T0+6}, v{T0+1}, 7, v{T0+6}")
    e(f"s_mul_i32 s21, s7, {48*128}")
    e(f"v_add_u32 v{BA}, s21, v{T0+6}")
    e(f"v_xor_b32 v{BA+1}, 64, v{BA}")
    e("s_lshr_b32 s19, s7, 1")
    e(f"v_lshrrev_b32 v{T0+6}, 1, v{T0}")
    e(f"v_mul_u32_u24 v{T0+6}, 528, v{T0+6}")
    e(f"v_and_b32 v{T0+7}, 1, v{T0}")
    e(f"v_lshl_add_u32 v{T0+6}, v{T0+7}, 8, v{T0+6}")
    e(f"v_lshl_add_u32 v{T0+6}, v{T0+1}, 4, v{T0+6}")
    e(f"s_mul_i32 s21, s19, {KSZ}")
    e(f"s_add_u32 s21, s21, {KBASE}")
    e(f"v_add_u32 v{KA}, s21, v{T0+6}")
    e(f"v_lshl_add_u32 v{T0+6}, v{T0}, 2, v{T0+2}")
    e(f"v_mul_u32_u24 v{T0+6}, {VROW}, v{T0+6}")
    e(f"v_lshl_add_u32 v{T0+6}, v{T0+3}, 3, v{T0+6}")
    e(f"s_mul_i32 s21, s19, {VSZ}")
    e(f"s_add_u32 s21, s21, {VBASE}")
    e(f"v_add_u32 v{VA}, s21, v{T0+6}")
    e(f"v_lshlrev_b32 v{OA}, 4, v0")
    for i in range(96):
        e(f"v_mov_b32 v{ACC+i}, 0")
    e("s_waitcnt lgkmcnt(0)")
    stamp_setup(0)
    e(f"s_mul_i32 s21, s4, {O_BR}")
    e("s_mul_i32 s22, s16, 196608")
    e("s_add_u32 s21, s21, s22")
    e("s_add_u32 s32, s26, s21")
    e("s_addc_u32 s33, s27, 0")
    e("s_mov_b32 s34, 196608")
    e("s_mov_b32 s35, 0x20000")
    e("s_mul_i32 s21, s18, 12")
    e("s_mul_i32 s22, s7, 3")
    e("s_add_u32 s21, s21, s22")
    for j in range(3):
        e(f"s_add_u32 s22, s21, {j}")
        e("s_lshr_b32 s23, s22, 2")
        e("s_lshl_b32 s23, s23, 14")
        e("s_and_b32 s22, s22, 3")
        e("s_lshl_b32 s22, s22, 10")
        e(f"s_add_u32 s{40+j}, s22, s23")

    def reads(buf, hh):
        r = []
        def a(T):
            r.append(f"ds_read_b64_tr_b16 {vr(AB[buf]+4*T,2)}, v{AA+T} offset:{hh*8192}")
            r.append(f"ds_read_b64_tr_b16 {vr(AB[buf]+4*T+2,2)}, v{AA+T} offset:{hh*8192+1024}")
        def b(j):
            r.append(f"ds_read_b128 {vr(BB[buf]+4*j,4)}, v{BA+hh} offset:{j*2048}")
        b(0); a(0); b(1); b(2)
        for T in range(1, 8):
            a(T)
        return r
    def mf(buf):
        return [mfma(ACC + (T*3+j)*4, AB[buf]+4*T, BB[buf]+4*j) for T in range(8) for j in range(3)]

    e("s_mov_b32 s24, 0")
    e("s_mov_b32 s25, 0")
    e("s_barrier")
    stamp(1, 84, 250)
    for r in reads(0, 0):
        e(r)
    e("s_waitcnt lgkmcnt(0)")
    per = [2,1]*8
    lab("P1_C_LOOP")
    interleave(mf(0), reads(1, 1), per)
    e("s_add_u32 s25, s25, 1")
    e("s_cmp_eq_u32 s25, 4")
    e(f"s_cselect_b32 s28, {-3*SLOT}, {SLOT}" if False else f"s_mov_b32 s28, {SLOT}")
    e(f"s_cselect_b32 s28, {(-3*SLOT) & 0xffffffff}, s28")
    e("s_cselect_b32 s25, 0, s25")
    e("s_add_u32 s24, s24, 1")
    e("s_cmp_eq_u32 s24, 10")
    e("s_waitcnt lgkmcnt(0)")
    e("s_barrier")
    e("s_cbranch_scc1 P1_C_DONE")
    adv = [f"v_add_u32 v{BA}, s28, v{BA}", f"v_add_u32 v{AA}, s28, v{AA}"]
    rd = reads(0, 0)
    seq = [adv[0], rd[0], adv[1], rd[1], rd[2], rd[3], rd[4]]
    for T in range(1, 8):
        seq += [f"v_add_u32 v{AA+T}, s28, v{AA+T}", rd[3+2*T], rd[4+2*T]]
    seq += [f"v_add_u32 v{BA+1}, s28, v{BA+1}"]
    interleave(mf(1), seq, [2]*16)
    e("s_waitcnt lgkmcnt(0)")
    e("s_branch P1_C_LOOP")
    lab("P1_C_DONE")
    stamp(2, 84, 250)
    KB = [200, 216]
    def kreads(kt):
        return [f"ds_read_b128 {vr(KB[kt&1]+4*s,4)}, v{KA} offset:{(kt*4+s)*KFR}" for s in range(4)]
    interleave(mf(1), kreads(0) + kreads(1), [1]*8)
    e("s_nop 7")
    QB = 96
    for s in range(4):
        for j in range(3):
            d = QB + (s*3+j)*4
            a0 = ACC + ((2*s)*3+j)*4
            a1 = ACC + ((2*s+1)*3+j)*4
            e(f"v_cvt_pk_bf16_f32 v{d}, v{a0}, v{a0+1}")
            e(f"v_cvt_pk_bf16_f32 v{d+1}, v{a0+2}, v{a0+3}")
            e(f"v_cvt_pk_bf16_f32 v{d+2}, v{a1}, v{a1+1}")
            e(f"v_cvt_pk_bf16_f32 v{d+3}, v{a1+2}, v{a1+3}")
    SS = 0
    for kt in range(6):
        e(f"s_waitcnt lgkmcnt({4 if kt < 5 else 0})")
        if kt == 0:
            e("s_nop 0")
        m = []
        for s in range(4):
            for j in range(3):
                m.append(mfma(SS + (kt*3+j)*4, KB[kt&1]+4*s, QB+(s*3+j)*4, "0" if s == 0 else None))
        for x in m:
            e(x)
        if kt + 2 < 6:
            for r in kreads(kt+2):
                e(r)
    stamp(3, 84, 250)
    e("s_nop 7")
    c = math.log2(math.e) / math.sqrt(128.0)
    import struct
    cbits = struct.unpack("<I", struct.pack("<f", c))[0]
    e(f"s_mov_b32 s28, {cbits:#x}")
    PB = 96
    M = 200
    for j in range(3):
        vals = [SS + (kt*3+j)*4 + r for kt in range(6) for r in range(4)]
        e(f"v_max3_f32 v{M+j}, v{vals[0]}, v{vals[1]}, v{vals[2]}")
        k = 3
        while k + 1 < 24:
            e(f"v_max3_f32 v{M+j}, v{M+j}, v{vals[k]}, v{vals[k+1]}")
            k += 2
        e(f"v_max_f32 v{M+j}, v{M+j}, v{vals[23]}")
    for op in ("v_permlane32_swap_b32", "v_permlane16_swap_b32"):
        for j in range(3):
            e(f"v_mov_b32 v{M+4+j}, v{M+j}")
        e("s_nop 1")
        for j in range(3):
            e(f"{op} v{M+j}, v{M+4+j}")
        e("s_nop 1")
        for j in range(3):
            e(f"v_max_f32 v{M+j}, v{M+j}, v{M+4+j}")
    for j in range(3):
        e(f"v_mul_f32 v{M+j}, s28, v{M+j}")
    for j in range(3):
        for kt in range(6):
            b = SS + (kt*3+j)*4
            for r in range(4):
                e(f"v_fma_f32 v{b+r}, v{b+r}, s28, -v{M+j}")
            for r in range(4):
                e(f"v_exp_f32 v{b+r}, v{b+r}")
    ONES = 204
    for r in range(4):
        e(f"v_mov_b32 v{ONES+r}, 0x3f803f80")
    for s in range(3):
        for j in range(3):
            d = PB + (s*3+j)*4
            a0 = SS + ((2*s)*3+j)*4
            a1 = SS + ((2*s+1)*3+j)*4
            e(f"v_cvt_pk_bf16_f32 v{d}, v{a0}, v{a0+1}")
            e(f"v_cvt_pk_bf16_f32 v{d+1}, v{a0+2}, v{a0+3}")
            e(f"v_cvt_pk_bf16_f32 v{d+2}, v{a1}, v{a1+1}")
            e(f"v_cvt_pk_bf16_f32 v{d+3}, v{a1+2}, v{a1+3}")
    stamp(4, 84, 250)
    e("s_barrier")
    stamp(5, 84, 250)
    VB = [144, 156]
    def vreads(T):
        r = []
        for s in range(3):
            for hh in range(2):
                r.append(f"ds_read_b64_tr_b16 {vr(VB[T&1]+4*s+2*hh,2)}, v{VA} offset:{(32*s+16*hh)*VROW + T*32}")
        return r
    for r in vreads(0) + vreads(1):
        e(r)
    LS = 208
    for s in range(3):
        for j in range(3):
            e(mfma(LS+4*j, ONES, PB+(s*3+j)*4, "0" if s == 0 else None))
    OO = 0
    for T in range(8):
        e(f"s_waitcnt lgkmcnt({6 if T < 7 else 0})")
        for s in range(3):
            for j in range(3):
                e(mfma(OO+(T*3+j)*4, VB[T&1]+4*s, PB+(s*3+j)*4, "0" if s == 0 else None))
        if T + 2 < 8:
            for r in vreads(T+2):
                e(r)
        if T == 1:
            for j in range(3):
                e(f"v_rcp_f32 v{M+j}, v{LS+4*j}")
    e("s_nop 7")
    stamp(6, 84, 250)
    OB = 96
    for s in range(4):
        for j in range(3):
            d = OB + (s*3+j)*4
            a0 = OO + ((2*s)*3+j)*4
            a1 = OO + ((2*s+1)*3+j)*4
            for a in (a0, a1):
                for r in range(4):
                    e(f"v_mul_f32 v{a+r}, v{a+r}, v{M+j}")
            e(f"v_cvt_pk_bf16_f32 v{d}, v{a0}, v{a0+1}")
            e(f"v_cvt_pk_bf16_f32 v{d+1}, v{a0+2}, v{a0+3}")
            e(f"v_cvt_pk_bf16_f32 v{d+2}, v{a1}, v{a1+1}")
            e(f"v_cvt_pk_bf16_f32 v{d+3}, v{a1+2}, v{a1+3}")
            e(f"buffer_store_dwordx4 {vr(d,4)}, v{OA}, s[32:35], s{40+j} offen{cfg.o_st}")
        if s < 3:
            e(f"v_add_u32 v{OA}, 4096, v{OA}")
    stamp(7, 84, 250)
    if cfg.stamps:
        e("s_waitcnt vmcnt(0)")
        stamp(8, 84, 250)
        stamp_flush(9)
    e("s_endpgm")

def gen_p2():
    lab("p2_kernel")
    e("s_cmp_ge_u32 s2, 240")
    e("s_cbranch_scc1 P2_END")
    if cfg.stamps:
        e("s_memrealtime s[52:53]")
    e("s_and_b32 s3, s2, 7")
    e("s_lshr_b32 s4, s3, 2")
    e("s_mul_i32 s5, s4, 40")
    e("s_load_dwordx2 s[8:9], s[0:1], s5 offset:32")
    e("s_load_dwordx2 s[10:11], s[0:1], 80")
    e("s_load_dwordx2 s[26:27], s[0:1], 96")
    e("v_lshrrev_b32 v1, 6, v0")
    e("s_lshr_b32 s6, s2, 3")
    e("v_readfirstlane_b32 s7, v1")
    e("v_mov_b32 v255, v0")
    e("v_and_b32 v0, 63, v0")
    e("s_mul_i32 s16, s6, 52")
    e("s_lshr_b32 s16, s16, 8")
    e("s_mul_i32 s17, s16, 5")
    e("s_sub_u32 s17, s6, s17")
    e("s_bfe_u32 s18, s3, 0x10001")
    e("s_mul_i32 s18, s18, 6")
    e("s_add_u32 s16, s16, s18")
    e("s_and_b32 s18, s3, 1")
    e("s_mul_i32 s18, s18, 5")
    e("s_add_u32 s17, s17, s18")
    ACC = 0
    AF = 64
    OBUF = 80
    WV = 160
    OV = 164
    AA = 165
    T0 = 170
    D = 5
    e(f"v_lshrrev_b32 v{T0}, 3, v0")
    e(f"v_and_b32 v{T0+1}, 7, v0")
    e(f"v_and_b32 v{T0+2}, 6, v{T0}")
    e(f"v_xor_b32 v{T0+1}, v{T0+1}, v{T0+2}")
    e(f"v_mul_u32_u24 v{T0}, 1280, v{T0}")
    e(f"v_lshl_add_u32 v{WV}, v{T0+1}, 4, v{T0}")
    for t in range(1, 4):
        e(f"v_add_u32 v{WV+t}, {t*(10240-1024)}, v{WV}")
    e(f"v_lshlrev_b32 v{OV}, 4, v0")
    e(f"v_lshrrev_b32 v{T0}, 2, v0")
    e(f"v_bfe_u32 v{T0+1}, v0, 3, 2")
    e(f"v_and_b32 v{T0+2}, 3, v0")
    e(f"v_lshlrev_b32 v{T0}, 7, v{T0}")
    e(f"v_lshl_add_u32 v{T0}, v{T0+2}, 3, v{T0}")
    e(f"s_mul_i32 s20, s7, {D*4096}")
    e(f"v_add_u32 v{T0}, s20, v{T0}")
    for T in range(4):
        e(f"v_xor_b32 v{T0+2}, {T}, v{T0+1}")
        e(f"v_lshl_add_u32 v{AA+T}, v{T0+2}, 5, v{T0}")
    e("s_waitcnt lgkmcnt(0)")
    stamp_setup(1)
    e(f"s_mul_i32 s21, s7, {512*1280}")
    e("s_lshl_b32 s22, s17, 7")
    e("s_add_u32 s21, s21, s22")
    e("s_add_u32 s32, s8, s21")
    e("s_addc_u32 s33, s9, 0")
    e(f"s_sub_u32 s34, {4096*1280}, s21")
    e("s_mov_b32 s35, 0x20000")
    e(f"s_mul_i32 s21, s4, {O_BR}")
    e(f"s_mul_i32 s22, s7, {4*196608}")
    e("s_add_u32 s21, s21, s22")
    e("s_lshl_b32 s22, s16, 14")
    e("s_add_u32 s21, s21, s22")
    e("s_add_u32 s36, s26, s21")
    e("s_addc_u32 s37, s27, 0")
    e(f"s_mov_b32 s38, {4*196608}")
    e("s_mov_b32 s39, 0x20000")
    e(f"s_mul_i32 s21, s16, {64*2560}")
    e("s_mul_i32 s22, s4, 1280")
    e("s_add_u32 s21, s21, s22")
    e("s_lshl_b32 s22, s17, 7")
    e("s_add_u32 s21, s21, s22")
    e("s_add_u32 s40, s10, s21")
    e("s_addc_u32 s41, s11, 0")
    e(f"s_sub_u32 s42, {768*2560}, s21")
    e("s_mov_b32 s43, 0x20000")
    def dma(u):
        e(f"s_add_u32 m0, s20, {(u % D)*4096}")
        e(f"s_mov_b32 s22, {u*40960}")
        for t in range(4):
            e(f"buffer_load_dwordx4 v{WV+t}, s[32:35], s22 offen offset:{t*1024}{cfg.nt_wo} lds")
    def oload(u):
        e(f"s_mov_b32 s23, {(u>>2)*196608 + (u&3)*4096}")
        for j in range(4):
            e(f"buffer_load_dwordx4 {vr(OBUF+(u%D)*16+4*j,4)}, v{OV}, s[36:39], s23 offen offset:{j*1024}{cfg.o_ld}")
    for u in range(D):
        dma(u); oload(u)
    for u in range(16):
        nafter = min(D-1, 15-u)
        e(f"s_waitcnt vmcnt({8*nafter})")
        for T in range(4):
            for hh in range(2):
                e(f"ds_read_b64_tr_b16 {vr(AF+4*T+2*hh,2)}, v{AA+T} offset:{(u%D)*4096 + hh*2048}")
        e("s_waitcnt lgkmcnt(0)")
        if u + D < 16:
            dma(u+D)
        for T in range(4):
            for j in range(4):
                e(mfma(ACC+(T*4+j)*4, AF+4*T, OBUF+(u%D)*16+4*j, "0" if u == 0 else None))
        if u + D < 16:
            oload(u+D)
    stamp(1, 84, 250)
    RS = 272
    PSZ = 64*RS
    e(f"v_and_b32 v{T0}, 15, v255")
    e(f"v_bfe_u32 v{T0+1}, v255, 4, 2")
    e(f"v_mul_u32_u24 v{T0}, {RS}, v{T0}")
    e(f"v_lshl_add_u32 v{T0}, v{T0+1}, 4, v{T0}")
    e(f"s_mul_i32 s21, s7, {PSZ}")
    e(f"v_add_u32 v{T0}, s21, v{T0}")
    e(f"v_lshrrev_b32 v{T0+1}, 3, v255")
    e(f"v_and_b32 v{T0+2}, 7, v255")
    e(f"v_mul_u32_u24 v{T0+3}, {RS}, v{T0+1}")
    e(f"v_lshl_add_u32 v{T0+3}, v{T0+2}, 5, v{T0+3}")
    e(f"v_add_u32 v{T0+5}, {4*PSZ}, v{T0+3}")
    e(f"v_mul_u32_u24 v{T0+4}, 2560, v{T0+1}")
    e(f"v_lshl_add_u32 v{T0+4}, v{T0+2}, 4, v{T0+4}")
    e("s_barrier")
    for T in range(4):
        for j in range(4):
            e(f"ds_write_b128 v{T0}, {vr(ACC+(T*4+j)*4,4)} offset:{j*16*RS + T*64}")
    e("s_waitcnt lgkmcnt(0)")
    e("s_barrier")
    for p in range(8):
        a = T0+3 if p < 4 else T0+5
        e(f"ds_read_b128 {vr(64+8*p,4)}, v{a} offset:{(p&3)*PSZ}")
        e(f"ds_read_b128 {vr(64+8*p+4,4)}, v{a} offset:{(p&3)*PSZ+16}")
    for p in range(1, 8):
        e(f"s_waitcnt lgkmcnt({14-2*p})")
        for r in range(8):
            e(f"v_add_f32 v{64+r}, v{64+r}, v{64+8*p+r}")
    for r in range(4):
        e(f"v_cvt_pk_bf16_f32 v{64+r}, v{64+2*r}, v{64+2*r+1}")
    e(f"buffer_store_dwordx4 v[64:67], v{T0+4}, s[40:43], 0 offen{cfg.out_st}")
    stamp(2, 84, 250)
    if cfg.stamps:
        e("s_waitcnt vmcnt(0)")
        stamp(3, 84, 250)
        stamp_flush(4)
    lab("P2_END")
    e("s_endpgm")

def kd(name):
    return f""".amdhsa_kernel {name}
  .amdhsa_next_free_vgpr 256
  .amdhsa_next_free_sgpr 102
  .amdhsa_accum_offset 256
  .amdhsa_group_segment_fixed_size 0
  .amdhsa_kernarg_size 104
  .amdhsa_user_sgpr_count 2
  .amdhsa_user_sgpr_kernarg_segment_ptr 1
  .amdhsa_system_sgpr_workgroup_id_x 1
.end_amdhsa_kernel
"""

hdr = """; two-launch version: p1 = Q projection + attention, p2 = output projection
; @launch kernel=p1_kernel grid=(256,1,1) block=(512,1,1) lds=163840
; @launch kernel=p2_kernel grid=(240,1,1) block=(512,1,1) lds=163840
.amdgcn_target "amdgcn-amd-amdhsa--gfx950"
.text
"""
out = hdr
for name, fn in (("p1_kernel", gen_p1), ("p2_kernel", gen_p2)):
    L.clear()
    fn()
    out += f".globl {name}\n.p2align 8\n.type {name},@function\n" + "\n".join(L) + "\n"
out += '.section .rodata,"a"\n.p2align 6\n' + kd("p1_kernel") + ".p2align 6\n" + kd("p2_kernel")
open(sys.argv[1], "w").write(out)
```

```python
import sys, math

NAME = "concat_heads__gqa_block_cached__mha_block_cached__near_ridge"

class Cfg:
    nt_x = ""
    nt_wq = ""
    nt_kv = " nt"
    nt_wo = ""
    o_st = " sc1"
    o_ld = ""
    out_st = ""
    rot = 1
    k_after = 0
    v_after = 1
    stamps = 0
    seq = ' 12'

cfg = Cfg()
for a in sys.argv[2:]:
    k, v = a.split("=")
    old = getattr(cfg, k)
    if isinstance(old, int):
        setattr(cfg, k, int(v))
    else:
        setattr(cfg, k, (" " + v.replace("+", " ")) if v else "")

L = []
def e(s=""):
    L.append("    " + s)
def lab(s):
    L.append(s + ":")
def cmt(s):
    L.append("    ; " + s)

def vr(a, n=1):
    return f"v{a}" if n == 1 else f"v[{a}:{a+n-1}]"
def sr(a, n=1):
    return f"s{a}" if n == 1 else f"s[{a}:{a+n-1}]"
def mfma(d, a, b, c=None):
    cs = vr(d, 4) if c is None else c
    return f"v_mfma_f32_16x16x32_bf16 {vr(d,4)}, {vr(a,4)}, {vr(b,4)}, {cs}"

STAMP_OFF = 64 << 20
def stamp(idx, srd=None, tmpv=None):
    if not cfg.stamps:
        return
    e(f"s_memrealtime s[{52+2*idx}:{53+2*idx}]")
def stamp_flush(n):
    if not cfg.stamps:
        return
    e("s_waitcnt lgkmcnt(0)")
    e("v_mov_b32 v251, 0")
    for i in range(n):
        e(f"v_mov_b32 v250, s{52+2*i}")
        e(f"buffer_store_dword v250, v251, s[84:87], s92 offen offset:{i*4}")
        e("s_nop 1")

SLOT = 40960
XB = 24576
KFR = 1056
KSZ = 24 * KFR
KBASE = 2 * SLOT
VROW = 288
VSZ = 96 * VROW
VBASE = 0
O_BR = 768 * 4096 * 2

def stamp_setup(kidx):
    if not cfg.stamps:
        return
    e(f"s_add_u32 s84, s26, {STAMP_OFF}")
    e("s_addc_u32 s85, s27, 0")
    e("s_mov_b32 s86, 0x100000")
    e("s_mov_b32 s87, 0x20000")
    e(f"s_add_u32 s92, s2, {kidx*256}")
    e("s_lshl_b32 s92, s92, 3")
    e("s_add_u32 s92, s92, s7")
    e("s_lshl_b32 s92, s92, 6")

def gen_p1():
    lab("p1_kernel")
    e("s_cmp_ge_u32 s2, 256")
    e("s_cbranch_scc1 P1_END")
    if cfg.stamps:
        e("s_memrealtime s[52:53]")
    e("s_and_b32 s3, s2, 7")
    e("s_lshr_b32 s4, s3, 2")
    e("s_mul_i32 s5, s4, 40")
    e("s_load_dwordx8 s[8:15], s[0:1], s5")
    e("s_load_dwordx2 s[26:27], s[0:1], 96")
    e("v_lshrrev_b32 v1, 6, v0")
    e("s_lshr_b32 s6, s2, 3")
    e("v_readfirstlane_b32 s7, v1")
    e("v_and_b32 v0, 63, v0")
    e("s_and_b32 s16, s3, 3")
    e("s_lshl_b32 s16, s16, 3")
    e("s_and_b32 s17, s6, 7")
    e("s_add_u32 s16, s16, s17")
    e("s_lshr_b32 s18, s6, 3")
    e("s_cmp_ge_u32 s7, 6")
    e("s_cbranch_scc1 P1_KV")
    e("s_cmp_ge_u32 s7, 4")
    e("s_cbranch_scc1 P1_STREAM")
    gen_p1_compute()
    gen_p1_stream()
    gen_p1_kv()
    lab("P1_END")
    e("s_endpgm")

def gen_p1_stream():
    lab("P1_STREAM")
    e("s_sub_u32 s19, s7, 4")
    if cfg.rot == 0:
        e("s_mov_b32 s20, 0")
    elif cfg.rot == 1:
        e("s_add_u32 s20, s17, s18")
        e("s_and_b32 s20, s20, 1")
        e("s_mul_i32 s20, s20, 5")
    elif cfg.rot == 2:
        e("s_lshl_b32 s20, s18, 1")
        e("s_add_u32 s20, s20, s17")
        e("s_and_b32 s20, s20, 7")
        e("s_mul_i32 s20, s20, 5")
        e("s_lshr_b32 s20, s20, 2")
    elif cfg.rot == 3:
        e("s_add_u32 s20, s17, s18")
        e("s_and_b32 s20, s20, 3")
        e("s_mul_i32 s20, s20, 5")
        e("s_lshr_b32 s20, s20, 1")
    e("v_lshrrev_b32 v1, 3, v0")
    e("v_and_b32 v2, 7, v0")
    e("v_and_b32 v3, 6, v1")
    e("v_xor_b32 v2, v2, v3")
    e("v_lshlrev_b32 v2, 4, v2")
    e("s_mul_i32 s21, s19, 96")
    e("v_add_u32 v1, s21, v1")
    e("v_mul_u32_u24 v1, 1280, v1")
    e("v_add_u32 v10, v1, v2")
    e("v_lshrrev_b32 v1, 4, v0")
    e("v_and_b32 v2, 15, v0")
    e("v_lshlrev_b32 v3, 1, v1")
    e("v_xor_b32 v2, v2, v3")
    e("v_lshlrev_b32 v2, 4, v2")
    e("s_lshl_b32 s21, s19, 5")
    e("v_add_u32 v1, s21, v1")
    e("v_lshlrev_b32 v1, 13, v1")
    e("v_add_u32 v11, v1, v2")
    e("v_xor_b32 v12, 128, v11")
    e("s_waitcnt lgkmcnt(0)")
    stamp_setup(0)
    e(f"s_mul_i32 s21, s18, {192*1280}")
    e("s_add_u32 s32, s8, s21")
    e("s_addc_u32 s33, s9, 0")
    e(f"s_mov_b32 s34, {192*1280}")
    e("s_mov_b32 s35, 0x20000")
    e("s_lshl_b32 s21, s16, 8")
    e("s_add_u32 s36, s14, s21")
    e("s_addc_u32 s37, s15, 0")
    e(f"s_sub_u32 s38, {640*8192}, s21")
    e("s_mov_b32 s39, 0x20000")
    e(f"s_mul_i32 s22, s19, {96*128}")
    e(f"s_mul_i32 s23, s19, {32*256}")
    e(f"s_add_u32 s23, s23, {XB}")
    e("s_mov_b32 s24, 0")
    e("s_mov_b32 s25, 0")
    lab("P1_ST_LOOP")
    e("s_lshl_b32 s28, s20, 19")
    e("s_add_u32 m0, s24, s23")
    e("s_lshl_b32 s29, s20, 7")
    for t in range(8):
        e(f"buffer_load_dwordx4 {vr(11 + ((t>>1)&1))}, s[36:39], s28 offen{cfg.nt_wq} lds")
        if t < 7:
            e("s_add_u32 m0, m0, 1024")
            e("s_add_u32 s28, s28, 32768")
    e("s_add_u32 m0, s24, s22")
    e("s_add_u32 s20, s20, 1")
    for t in range(12):
        e(f"buffer_load_dwordx4 v10, s[32:35], s29 offen{cfg.nt_x} lds")
        if t < 11:
            e("s_add_u32 m0, m0, 1024")
            e("s_add_u32 s29, s29, 10240")
    e("s_cmp_eq_u32 s20, 10")
    e("s_cselect_b32 s20, 0, s20")
    e(f"s_add_u32 s24, s24, {SLOT}")
    e(f"s_cmp_eq_u32 s24, {4*SLOT}")
    e("s_cselect_b32 s24, 0, s24")
    e("s_add_u32 s25, s25, 1")
    e("s_cmp_lt_u32 s25, 3")
    e("s_cbranch_scc1 P1_ST_LOOP")
    e("s_waitcnt vmcnt(40)")
    e("s_barrier")
    e("s_cmp_lt_u32 s25, 10")
    e("s_cbranch_scc1 P1_ST_LOOP")
    e("s_waitcnt vmcnt(20)")
    e("s_barrier")
    e("s_waitcnt vmcnt(0)")
    e("s_barrier")
    e("s_barrier")
    e("s_barrier")
    e("s_endpgm")

def gen_p1_kv():
    lab("P1_KV")
    e("s_sub_u32 s19, s7, 6")
    e("s_lshl_b32 s20, s18, 1")
    e("s_add_u32 s20, s20, s19")
    e("s_lshl_b32 s20, s20, 5")
    e("s_add_u32 s20, s20, s16")
    e("s_mul_i32 s20, s20, 24576")
    e("v_lshlrev_b32 v1, 4, v0")
    e("v_bfe_u32 v4, v0, 2, 2")
    e(f"v_mul_u32_u24 v2, {KFR}, v4")
    e("v_and_b32 v4, 1, v0")
    e("v_mul_u32_u24 v4, 528, v4")
    e("v_add_u32 v2, v2, v4")
    e("v_lshrrev_b32 v5, 4, v0")
    e("v_lshl_add_u32 v2, v5, 4, v2")
    e("v_bfe_u32 v4, v0, 1, 1")
    e("v_lshl_add_u32 v2, v4, 3, v2")
    e(f"s_mul_i32 s21, s19, {KSZ}")
    e(f"s_add_u32 s21, s21, {KBASE}")
    e("v_add_u32 v2, s21, v2")
    e(f"v_mul_u32_u24 v3, {VROW}, v5")
    e("v_and_b32 v4, 15, v0")
    e("v_lshl_add_u32 v3, v4, 4, v3")
    e(f"s_mul_i32 s21, s19, {VSZ}")
    e(f"s_add_u32 s21, s21, {VBASE}")
    e("v_add_u32 v3, s21, v3")
    e("s_waitcnt lgkmcnt(0)")
    stamp_setup(0)
    e("s_add_u32 s32, s10, s20")
    e("s_addc_u32 s33, s11, 0")
    e("s_mov_b32 s34, 24576")
    e("s_mov_b32 s35, 0x20000")
    e("s_add_u32 s36, s12, s20")
    e("s_addc_u32 s37, s13, 0")
    e("s_mov_b32 s38, 24576")
    e("s_mov_b32 s39, 0x20000")
    KR, VR = 16, 112
    def loads(base, srd):
        for t in range(24):
            if t % 4 == 0:
                e(f"s_movk_i32 s22, {t*1024}")
            e(f"buffer_load_dwordx4 {vr(base+4*t,4)}, v1, {sr(srd,4)}, s22 offen offset:{(t%4)*1024}{cfg.nt_kv}")
    assert cfg.k_after <= cfg.v_after <= 7
    for b in range(-1, 9):
        if b >= 0:
            e("s_barrier")
        if b == cfg.k_after:
            loads(KR, 32)
        if b == cfg.v_after:
            loads(VR, 36)
    e("s_barrier")
    e("s_waitcnt vmcnt(24)")
    stamp(1)
    for t in range(24):
        off = (t >> 2) * 4 * KFR + (t & 3) * 64
        e(f"ds_write_b64 v2, {vr(KR+4*t,2)} offset:{off}")
        e(f"ds_write_b64 v2, {vr(KR+4*t+2,2)} offset:{off+256}")
    e("s_waitcnt lgkmcnt(0)")
    e("s_barrier")
    stamp(2)
    e("s_waitcnt vmcnt(0)")
    stamp(3)
    for t in range(24):
        e(f"ds_write_b128 v3, {vr(VR+4*t,4)} offset:{t*4*VROW}")
    e("s_waitcnt lgkmcnt(0)")
    stamp(4)
    e("s_barrier")
    stamp_flush(5)
    e("s_endpgm")

def interleave(mf, others, per=None):
    oi = 0
    for i, m in enumerate(mf):
        e(m)
        n = per[i] if per and i < len(per) else 0
        for _ in range(n):
            if oi < len(others):
                e(others[oi]); oi += 1
    while oi < len(others):
        e(others[oi]); oi += 1

def gen_p1_compute():
    cmt("compute waves 0..3")
    ACC = 0
    AB = [96, 128]
    BB = [160, 172]
    AA = 184
    BA = 192
    KA, VA, OA = 194, 195, 196
    T0 = 200
    e(f"v_lshrrev_b32 v{T0}, 4, v0")
    e(f"v_and_b32 v{T0+1}, 15, v0")
    e(f"v_bfe_u32 v{T0+2}, v0, 2, 2")
    e(f"v_and_b32 v{T0+3}, 3, v0")
    e(f"v_lshl_add_u32 v{T0+4}, v{T0}, 3, v{T0+2}")
    e(f"v_lshlrev_b32 v{T0+4}, 8, v{T0+4}")
    e(f"v_lshl_add_u32 v{T0+4}, v{T0+3}, 3, v{T0+4}")
    e(f"v_add_u32 v{T0+4}, {XB}, v{T0+4}")
    e(f"v_and_b32 v{T0+5}, 1, v{T0}")
    e(f"v_lshl_add_u32 v{T0+5}, v{T0+5}, 2, v{T0+2}")
    for T in range(8):
        e(f"v_xor_b32 v{T0+6}, {T}, v{T0+5}")
        e(f"v_lshl_add_u32 v{AA+T}, v{T0+6}, 5, v{T0+4}")
    e(f"v_and_b32 v{T0+6}, 6, v{T0+1}")
    e(f"v_xor_b32 v{T0+6}, v{T0+6}, v{T0}")
    e(f"v_lshlrev_b32 v{T0+6}, 4, v{T0+6}")
    e(f"v_lshl_add_u32 v{T0+6}, v{T0+1}, 7, v{T0+6}")
    e(f"s_mul_i32 s21, s7, {48*128}")
    e(f"v_add_u32 v{BA}, s21, v{T0+6}")
    e(f"v_xor_b32 v{BA+1}, 64, v{BA}")
    e("s_lshr_b32 s19, s7, 1")
    e(f"v_lshrrev_b32 v{T0+6}, 1, v{T0}")
    e(f"v_mul_u32_u24 v{T0+6}, 528, v{T0+6}")
    e(f"v_and_b32 v{T0+7}, 1, v{T0}")
    e(f"v_lshl_add_u32 v{T0+6}, v{T0+7}, 8, v{T0+6}")
    e(f"v_lshl_add_u32 v{T0+6}, v{T0+1}, 4, v{T0+6}")
    e(f"s_mul_i32 s21, s19, {KSZ}")
    e(f"s_add_u32 s21, s21, {KBASE}")
    e(f"v_add_u32 v{KA}, s21, v{T0+6}")
    e(f"v_lshl_add_u32 v{T0+6}, v{T0}, 2, v{T0+2}")
    e(f"v_mul_u32_u24 v{T0+6}, {VROW}, v{T0+6}")
    e(f"v_lshl_add_u32 v{T0+6}, v{T0+3}, 3, v{T0+6}")
    e(f"s_mul_i32 s21, s19, {VSZ}")
    e(f"s_add_u32 s21, s21, {VBASE}")
    e(f"v_add_u32 v{VA}, s21, v{T0+6}")
    e(f"v_lshlrev_b32 v{OA}, 4, v0")
    for i in range(96):
        e(f"v_mov_b32 v{ACC+i}, 0")
    e("s_waitcnt lgkmcnt(0)")
    stamp_setup(0)
    e(f"s_mul_i32 s21, s4, {O_BR}")
    e("s_mul_i32 s22, s16, 196608")
    e("s_add_u32 s21, s21, s22")
    e("s_add_u32 s32, s26, s21")
    e("s_addc_u32 s33, s27, 0")
    e("s_mov_b32 s34, 196608")
    e("s_mov_b32 s35, 0x20000")
    e("s_mul_i32 s21, s18, 12")
    e("s_mul_i32 s22, s7, 3")
    e("s_add_u32 s21, s21, s22")
    for j in range(3):
        e(f"s_add_u32 s22, s21, {j}")
        e("s_lshr_b32 s23, s22, 2")
        e("s_lshl_b32 s23, s23, 14")
        e("s_and_b32 s22, s22, 3")
        e("s_lshl_b32 s22, s22, 10")
        e(f"s_add_u32 s{40+j}, s22, s23")

    def reads(buf, hh):
        r = []
        def a(T):
            r.append(f"ds_read_b64_tr_b16 {vr(AB[buf]+4*T,2)}, v{AA+T} offset:{hh*8192}")
            r.append(f"ds_read_b64_tr_b16 {vr(AB[buf]+4*T+2,2)}, v{AA+T} offset:{hh*8192+1024}")
        def b(j):
            r.append(f"ds_read_b128 {vr(BB[buf]+4*j,4)}, v{BA+hh} offset:{j*2048}")
        b(0); a(0); b(1); b(2)
        for T in range(1, 8):
            a(T)
        return r
    def mf(buf):
        return [mfma(ACC + (T*3+j)*4, AB[buf]+4*T, BB[buf]+4*j) for T in range(8) for j in range(3)]

    e("s_mov_b32 s24, 0")
    e("s_mov_b32 s25, 0")
    e("s_barrier")
    stamp(1, 84, 250)
    for r in reads(0, 0):
        e(r)
    e("s_waitcnt lgkmcnt(0)")
    per = [2,1]*8
    lab("P1_C_LOOP")
    interleave(mf(0), reads(1, 1), per)
    e("s_add_u32 s25, s25, 1")
    e("s_cmp_eq_u32 s25, 4")
    e(f"s_cselect_b32 s28, {-3*SLOT}, {SLOT}" if False else f"s_mov_b32 s28, {SLOT}")
    e(f"s_cselect_b32 s28, {(-3*SLOT) & 0xffffffff}, s28")
    e("s_cselect_b32 s25, 0, s25")
    e("s_add_u32 s24, s24, 1")
    e("s_cmp_eq_u32 s24, 10")
    e("s_waitcnt lgkmcnt(0)")
    e("s_barrier")
    e("s_cbranch_scc1 P1_C_DONE")
    adv = [f"v_add_u32 v{BA}, s28, v{BA}", f"v_add_u32 v{AA}, s28, v{AA}"]
    rd = reads(0, 0)
    seq = [adv[0], rd[0], adv[1], rd[1], rd[2], rd[3], rd[4]]
    for T in range(1, 8):
        seq += [f"v_add_u32 v{AA+T}, s28, v{AA+T}", rd[3+2*T], rd[4+2*T]]
    seq += [f"v_add_u32 v{BA+1}, s28, v{BA+1}"]
    interleave(mf(1), seq, [2]*16)
    e("s_waitcnt lgkmcnt(0)")
    e("s_branch P1_C_LOOP")
    lab("P1_C_DONE")
    stamp(2, 84, 250)
    KB = [200, 216]
    def kreads(kt):
        return [f"ds_read_b128 {vr(KB[kt&1]+4*s,4)}, v{KA} offset:{(kt*4+s)*KFR}" for s in range(4)]
    interleave(mf(1), kreads(0) + kreads(1), [1]*8)
    e("s_nop 7")
    QB = 96
    for s in range(4):
        for j in range(3):
            d = QB + (s*3+j)*4
            a0 = ACC + ((2*s)*3+j)*4
            a1 = ACC + ((2*s+1)*3+j)*4
            e(f"v_cvt_pk_bf16_f32 v{d}, v{a0}, v{a0+1}")
            e(f"v_cvt_pk_bf16_f32 v{d+1}, v{a0+2}, v{a0+3}")
            e(f"v_cvt_pk_bf16_f32 v{d+2}, v{a1}, v{a1+1}")
            e(f"v_cvt_pk_bf16_f32 v{d+3}, v{a1+2}, v{a1+3}")
    SS = 0
    for kt in range(6):
        e(f"s_waitcnt lgkmcnt({4 if kt < 5 else 0})")
        if kt == 0:
            e("s_nop 0")
        m = []
        for s in range(4):
            for j in range(3):
                m.append(mfma(SS + (kt*3+j)*4, KB[kt&1]+4*s, QB+(s*3+j)*4, "0" if s == 0 else None))
        for x in m:
            e(x)
        if kt + 2 < 6:
            for r in kreads(kt+2):
                e(r)
    stamp(3, 84, 250)
    e("s_nop 7")
    c = math.log2(math.e) / math.sqrt(128.0)
    import struct
    cbits = struct.unpack("<I", struct.pack("<f", c))[0]
    e(f"s_mov_b32 s28, {cbits:#x}")
    PB = 96
    M = 200
    for j in range(3):
        vals = [SS + (kt*3+j)*4 + r for kt in range(6) for r in range(4)]
        e(f"v_max3_f32 v{M+j}, v{vals[0]}, v{vals[1]}, v{vals[2]}")
        k = 3
        while k + 1 < 24:
            e(f"v_max3_f32 v{M+j}, v{M+j}, v{vals[k]}, v{vals[k+1]}")
            k += 2
        e(f"v_max_f32 v{M+j}, v{M+j}, v{vals[23]}")
    for op in ("v_permlane32_swap_b32", "v_permlane16_swap_b32"):
        for j in range(3):
            e(f"v_mov_b32 v{M+4+j}, v{M+j}")
        e("s_nop 1")
        for j in range(3):
            e(f"{op} v{M+j}, v{M+4+j}")
        e("s_nop 1")
        for j in range(3):
            e(f"v_max_f32 v{M+j}, v{M+j}, v{M+4+j}")
    for j in range(3):
        e(f"v_mul_f32 v{M+j}, s28, v{M+j}")
    for j in range(3):
        for kt in range(6):
            b = SS + (kt*3+j)*4
            for r in range(4):
                e(f"v_fma_f32 v{b+r}, v{b+r}, s28, -v{M+j}")
            for r in range(4):
                e(f"v_exp_f32 v{b+r}, v{b+r}")
    ONES = 204
    for r in range(4):
        e(f"v_mov_b32 v{ONES+r}, 0x3f803f80")
    for s in range(3):
        for j in range(3):
            d = PB + (s*3+j)*4
            a0 = SS + ((2*s)*3+j)*4
            a1 = SS + ((2*s+1)*3+j)*4
            e(f"v_cvt_pk_bf16_f32 v{d}, v{a0}, v{a0+1}")
            e(f"v_cvt_pk_bf16_f32 v{d+1}, v{a0+2}, v{a0+3}")
            e(f"v_cvt_pk_bf16_f32 v{d+2}, v{a1}, v{a1+1}")
            e(f"v_cvt_pk_bf16_f32 v{d+3}, v{a1+2}, v{a1+3}")
    stamp(4, 84, 250)
    e("s_barrier")
    stamp(5, 84, 250)
    VB = [144, 156]
    def vreads(T):
        r = []
        for s in range(3):
            for hh in range(2):
                r.append(f"ds_read_b64_tr_b16 {vr(VB[T&1]+4*s+2*hh,2)}, v{VA} offset:{(32*s+16*hh)*VROW + T*32}")
        return r
    for r in vreads(0) + vreads(1):
        e(r)
    LS = 208
    for s in range(3):
        for j in range(3):
            e(mfma(LS+4*j, ONES, PB+(s*3+j)*4, "0" if s == 0 else None))
    OO = 0
    for T in range(8):
        e(f"s_waitcnt lgkmcnt({6 if T < 7 else 0})")
        for s in range(3):
            for j in range(3):
                e(mfma(OO+(T*3+j)*4, VB[T&1]+4*s, PB+(s*3+j)*4, "0" if s == 0 else None))
        if T + 2 < 8:
            for r in vreads(T+2):
                e(r)
        if T == 1:
            for j in range(3):
                e(f"v_rcp_f32 v{M+j}, v{LS+4*j}")
    e("s_nop 7")
    stamp(6, 84, 250)
    OB = 96
    for s in range(4):
        for j in range(3):
            d = OB + (s*3+j)*4
            a0 = OO + ((2*s)*3+j)*4
            a1 = OO + ((2*s+1)*3+j)*4
            for a in (a0, a1):
                for r in range(4):
                    e(f"v_mul_f32 v{a+r}, v{a+r}, v{M+j}")
            e(f"v_cvt_pk_bf16_f32 v{d}, v{a0}, v{a0+1}")
            e(f"v_cvt_pk_bf16_f32 v{d+1}, v{a0+2}, v{a0+3}")
            e(f"v_cvt_pk_bf16_f32 v{d+2}, v{a1}, v{a1+1}")
            e(f"v_cvt_pk_bf16_f32 v{d+3}, v{a1+2}, v{a1+3}")
            e(f"buffer_store_dwordx4 {vr(d,4)}, v{OA}, s[32:35], s{40+j} offen{cfg.o_st}")
        if s < 3:
            e(f"v_add_u32 v{OA}, 4096, v{OA}")
    stamp(7, 84, 250)
    if cfg.stamps:
        e("s_waitcnt vmcnt(0)")
        stamp(8, 84, 250)
        stamp_flush(9)
    e("s_endpgm")

def gen_p2():
    lab("p2_kernel")
    e("s_cmp_ge_u32 s2, 240")
    e("s_cbranch_scc1 P2_END")
    if cfg.stamps:
        e("s_memrealtime s[52:53]")
    e("s_and_b32 s3, s2, 7")
    e("s_lshr_b32 s4, s3, 2")
    e("s_mul_i32 s5, s4, 40")
    e("s_load_dwordx2 s[8:9], s[0:1], s5 offset:32")
    e("s_load_dwordx2 s[10:11], s[0:1], 80")
    e("s_load_dwordx2 s[26:27], s[0:1], 96")
    e("v_lshrrev_b32 v1, 6, v0")
    e("s_lshr_b32 s6, s2, 3")
    e("v_readfirstlane_b32 s7, v1")
    e("v_mov_b32 v255, v0")
    e("v_and_b32 v0, 63, v0")
    e("s_mul_i32 s16, s6, 52")
    e("s_lshr_b32 s16, s16, 8")
    e("s_mul_i32 s17, s16, 5")
    e("s_sub_u32 s17, s6, s17")
    e("s_bfe_u32 s18, s3, 0x10001")
    e("s_mul_i32 s18, s18, 6")
    e("s_add_u32 s16, s16, s18")
    e("s_and_b32 s18, s3, 1")
    e("s_mul_i32 s18, s18, 5")
    e("s_add_u32 s17, s17, s18")
    ACC = 0
    AF = 64
    OBUF = 80
    WV = 160
    OV = 164
    AA = 165
    T0 = 170
    D = 5
    e(f"v_lshrrev_b32 v{T0}, 3, v0")
    e(f"v_and_b32 v{T0+1}, 7, v0")
    e(f"v_and_b32 v{T0+2}, 6, v{T0}")
    e(f"v_xor_b32 v{T0+1}, v{T0+1}, v{T0+2}")
    e(f"v_mul_u32_u24 v{T0}, 1280, v{T0}")
    e(f"v_lshl_add_u32 v{WV}, v{T0+1}, 4, v{T0}")
    for t in range(1, 4):
        e(f"v_add_u32 v{WV+t}, {t*(10240-1024)}, v{WV}")
    e(f"v_lshlrev_b32 v{OV}, 4, v0")
    e(f"v_lshrrev_b32 v{T0}, 2, v0")
    e(f"v_bfe_u32 v{T0+1}, v0, 3, 2")
    e(f"v_and_b32 v{T0+2}, 3, v0")
    e(f"v_lshlrev_b32 v{T0}, 7, v{T0}")
    e(f"v_lshl_add_u32 v{T0}, v{T0+2}, 3, v{T0}")
    e(f"s_mul_i32 s20, s7, {D*4096}")
    e(f"v_add_u32 v{T0}, s20, v{T0}")
    for T in range(4):
        e(f"v_xor_b32 v{T0+2}, {T}, v{T0+1}")
        e(f"v_lshl_add_u32 v{AA+T}, v{T0+2}, 5, v{T0}")
    e("s_waitcnt lgkmcnt(0)")
    stamp_setup(1)
    e(f"s_mul_i32 s21, s7, {512*1280}")
    e("s_lshl_b32 s22, s17, 7")
    e("s_add_u32 s21, s21, s22")
    e("s_add_u32 s32, s8, s21")
    e("s_addc_u32 s33, s9, 0")
    e(f"s_sub_u32 s34, {4096*1280}, s21")
    e("s_mov_b32 s35, 0x20000")
    e(f"s_mul_i32 s21, s4, {O_BR}")
    e(f"s_mul_i32 s22, s7, {4*196608}")
    e("s_add_u32 s21, s21, s22")
    e("s_lshl_b32 s22, s16, 14")
    e("s_add_u32 s21, s21, s22")
    e("s_add_u32 s36, s26, s21")
    e("s_addc_u32 s37, s27, 0")
    e(f"s_mov_b32 s38, {4*196608}")
    e("s_mov_b32 s39, 0x20000")
    e(f"s_mul_i32 s21, s16, {64*2560}")
    e("s_mul_i32 s22, s4, 1280")
    e("s_add_u32 s21, s21, s22")
    e("s_lshl_b32 s22, s17, 7")
    e("s_add_u32 s21, s21, s22")
    e("s_add_u32 s40, s10, s21")
    e("s_addc_u32 s41, s11, 0")
    e(f"s_sub_u32 s42, {768*2560}, s21")
    e("s_mov_b32 s43, 0x20000")
    def dma(u):
        e(f"s_add_u32 m0, s20, {(u % D)*4096}")
        e(f"s_mov_b32 s22, {u*40960}")
        for t in range(4):
            e(f"buffer_load_dwordx4 v{WV+t}, s[32:35], s22 offen offset:{t*1024}{cfg.nt_wo} lds")
    def oload(u):
        e(f"s_mov_b32 s23, {(u>>2)*196608 + (u&3)*4096}")
        for j in range(4):
            e(f"buffer_load_dwordx4 {vr(OBUF+(u%D)*16+4*j,4)}, v{OV}, s[36:39], s23 offen offset:{j*1024}{cfg.o_ld}")
    for u in range(D):
        dma(u); oload(u)
    for u in range(16):
        nafter = min(D-1, 15-u)
        e(f"s_waitcnt vmcnt({8*nafter})")
        for T in range(4):
            for hh in range(2):
                e(f"ds_read_b64_tr_b16 {vr(AF+4*T+2*hh,2)}, v{AA+T} offset:{(u%D)*4096 + hh*2048}")
        e("s_waitcnt lgkmcnt(0)")
        if u + D < 16:
            dma(u+D)
        for T in range(4):
            for j in range(4):
                e(mfma(ACC+(T*4+j)*4, AF+4*T, OBUF+(u%D)*16+4*j, "0" if u == 0 else None))
        if u + D < 16:
            oload(u+D)
    stamp(1, 84, 250)
    RS = 272
    PSZ = 64*RS
    e(f"v_and_b32 v{T0}, 15, v255")
    e(f"v_bfe_u32 v{T0+1}, v255, 4, 2")
    e(f"v_mul_u32_u24 v{T0}, {RS}, v{T0}")
    e(f"v_lshl_add_u32 v{T0}, v{T0+1}, 4, v{T0}")
    e(f"s_mul_i32 s21, s7, {PSZ}")
    e(f"v_add_u32 v{T0}, s21, v{T0}")
    e(f"v_lshrrev_b32 v{T0+1}, 3, v255")
    e(f"v_and_b32 v{T0+2}, 7, v255")
    e(f"v_mul_u32_u24 v{T0+3}, {RS}, v{T0+1}")
    e(f"v_lshl_add_u32 v{T0+3}, v{T0+2}, 5, v{T0+3}")
    e(f"v_add_u32 v{T0+5}, {4*PSZ}, v{T0+3}")
    e(f"v_mul_u32_u24 v{T0+4}, 2560, v{T0+1}")
    e(f"v_lshl_add_u32 v{T0+4}, v{T0+2}, 4, v{T0+4}")
    e("s_barrier")
    for T in range(4):
        for j in range(4):
            e(f"ds_write_b128 v{T0}, {vr(ACC+(T*4+j)*4,4)} offset:{j*16*RS + T*64}")
    e("s_waitcnt lgkmcnt(0)")
    e("s_barrier")
    for p in range(8):
        a = T0+3 if p < 4 else T0+5
        e(f"ds_read_b128 {vr(64+8*p,4)}, v{a} offset:{(p&3)*PSZ}")
        e(f"ds_read_b128 {vr(64+8*p+4,4)}, v{a} offset:{(p&3)*PSZ+16}")
    for p in range(1, 8):
        e(f"s_waitcnt lgkmcnt({14-2*p})")
        for r in range(8):
            e(f"v_add_f32 v{64+r}, v{64+r}, v{64+8*p+r}")
    for r in range(4):
        e(f"v_cvt_pk_bf16_f32 v{64+r}, v{64+2*r}, v{64+2*r+1}")
    e(f"buffer_store_dwordx4 v[64:67], v{T0+4}, s[40:43], 0 offen{cfg.out_st}")
    stamp(2, 84, 250)
    if cfg.stamps:
        e("s_waitcnt vmcnt(0)")
        stamp(3, 84, 250)
        stamp_flush(4)
    lab("P2_END")
    e("s_endpgm")

def kd(name):
    return f""".amdhsa_kernel {name}
  .amdhsa_next_free_vgpr 256
  .amdhsa_next_free_sgpr 102
  .amdhsa_accum_offset 256
  .amdhsa_group_segment_fixed_size 0
  .amdhsa_kernarg_size 104
  .amdhsa_user_sgpr_count 2
  .amdhsa_user_sgpr_kernarg_segment_ptr 1
  .amdhsa_system_sgpr_workgroup_id_x 1
.end_amdhsa_kernel
"""

LL = {"1": "; @launch kernel=p1_kernel grid=(256,1,1) block=(512,1,1) lds=163840\n",
      "2": "; @launch kernel=p2_kernel grid=(240,1,1) block=(512,1,1) lds=163840\n",
      "e": "; @launch kernel=e_kernel grid=(1,1,1) block=(64,1,1) lds=0\n"}
hdr = "; p1 = Q projection + attention, p2 = output projection\n" + "".join(LL[c] for c in cfg.seq.strip()) + """.amdgcn_target "amdgcn-amd-amdhsa--gfx950"
.text
"""
def gen_e():
    lab("e_kernel")
    e("s_endpgm")
out = hdr
ks = [("p1_kernel", gen_p1), ("p2_kernel", gen_p2)] + ([("e_kernel", gen_e)] if "e" in cfg.seq else [])
for name, fn in ks:
    L.clear()
    fn()
    out += f".globl {name}\n.p2align 8\n.type {name},@function\n" + "\n".join(L) + "\n"
out += '.section .rodata,"a"\n' + "".join(".p2align 6\n" + kd(n) for n, _ in ks)
open(sys.argv[1], "w").write(out)
```

```python
def gen_diag(spec, stamp_off):
    ka, wa, ia, opa, kb, wb, ib, opb, nwg, mult = spec.split(":")
    ka, wa, ia, kb, wb, ib, nwg, mult = map(int, (ka, wa, ia, kb, wb, ib, nwg, mult))
    L = ["d_kernel:"]
    e = lambda s: L.append("    " + s)
    e("s_cmp_ge_u32 s2, 1")
    e("s_cbranch_scc1 D_END")
    e("s_load_dwordx2 s[26:27], s[0:1], 96")
    e(f"v_min_u32 v1, {nwg-1}, v0")
    e("v_lshlrev_b32 v1, 9, v1")
    e("s_waitcnt lgkmcnt(0)")
    e(f"s_add_u32 s84, s26, {stamp_off}")
    e("s_addc_u32 s85, s27, 0")
    e("s_mov_b32 s86, 0x100000")
    e("s_mov_b32 s87, 0x20000")
    e(f"s_mov_b32 s4, {ka*256*512 + wa*64 + ia*4}")
    e(f"s_mov_b32 s5, {kb*256*512 + wb*64 + ib*4}")
    e("v_mov_b32 v10, 0")
    e("buffer_load_dword v2, v1, s[84:87], s4 offen")
    e("buffer_load_dword v3, v1, s[84:87], s5 offen")
    e("buffer_load_dword v4, v10, s[84:87], 0 offen")
    init = {"min": "-1", "max": "0", "avg": "0"}
    e(f"v_mov_b32 v5, {init[opa]}")
    e(f"v_mov_b32 v6, {init[opb]}")
    e("ds_write_b32 v10, v5")
    e("ds_write_b32 v10, v6 offset:4")
    e("s_waitcnt vmcnt(0) lgkmcnt(0)")
    e("s_barrier")
    e("v_subrev_u32 v4, 100000, v4")
    e("v_sub_u32 v2, v2, v4")
    e("v_sub_u32 v3, v3, v4")
    op = {"min": "ds_min_u32", "max": "ds_max_u32", "avg": "ds_add_u32"}
    e(f"{op[opa]} v10, v2")
    e(f"{op[opb]} v10, v3 offset:4")
    e("s_waitcnt lgkmcnt(0)")
    e("s_barrier")
    e("ds_read_b64 v[2:3], v10")
    e("s_waitcnt lgkmcnt(0)")
    if opa == "avg": e("v_lshrrev_b32 v2, 8, v2")
    if opb == "avg": e("v_lshrrev_b32 v3, 8, v3")
    e("v_sub_u32 v2, v3, v2")
    e("v_min_u32 v2, 20000, v2")
    e("s_nop 1")
    e("v_readfirstlane_b32 s6, v2")
    e("s_memrealtime s[8:9]")
    e("s_waitcnt lgkmcnt(0)")
    e(f"s_mul_i32 s6, s6, {mult}")
    L.append("D_SPIN:")
    e("s_memrealtime s[10:11]")
    e("s_waitcnt lgkmcnt(0)")
    e("s_sub_u32 s12, s10, s8")
    e("s_cmp_lt_u32 s12, s6")
    e("s_cbranch_scc1 D_SPIN")
    L.append("D_END:")
    e("s_endpgm")
    return L
```

```python
import sys, math

NAME = "concat_heads__gqa_block_cached__mha_block_cached__near_ridge"

class Cfg:
    nt_x = ""
    nt_wq = ""
    nt_kv = " nt"
    nt_wo = ""
    o_st = " sc1"
    o_ld = ""
    out_st = ""
    rot = 1
    k_after = 0
    v_after = 1
    stamps = 0
    seq = ' 12'
    diag = ''

cfg = Cfg()
for a in sys.argv[2:]:
    k, v = a.split("=")
    old = getattr(cfg, k)
    if isinstance(old, int):
        setattr(cfg, k, int(v))
    else:
        setattr(cfg, k, (" " + v.replace("+", " ")) if v else "")

L = []
def e(s=""):
    L.append("    " + s)
def lab(s):
    L.append(s + ":")
def cmt(s):
    L.append("    ; " + s)

def vr(a, n=1):
    return f"v{a}" if n == 1 else f"v[{a}:{a+n-1}]"
def sr(a, n=1):
    return f"s{a}" if n == 1 else f"s[{a}:{a+n-1}]"
def mfma(d, a, b, c=None):
    cs = vr(d, 4) if c is None else c
    return f"v_mfma_f32_16x16x32_bf16 {vr(d,4)}, {vr(a,4)}, {vr(b,4)}, {cs}"

STAMP_OFF = 64 << 20
def stamp(idx, srd=None, tmpv=None):
    if not cfg.stamps:
        return
    e(f"s_memrealtime s[{52+2*idx}:{53+2*idx}]")
def stamp_flush(n):
    if not cfg.stamps:
        return
    e("s_waitcnt lgkmcnt(0)")
    e("v_mov_b32 v251, 0")
    for i in range(n):
        e(f"v_mov_b32 v250, s{52+2*i}")
        e(f"buffer_store_dword v250, v251, s[84:87], s92 offen offset:{i*4}")
        e("s_nop 1")

SLOT = 40960
XB = 24576
KFR = 1056
KSZ = 24 * KFR
KBASE = 2 * SLOT
VROW = 288
VSZ = 96 * VROW
VBASE = 0
O_BR = 768 * 4096 * 2

def stamp_setup(kidx):
    if not cfg.stamps:
        return
    e(f"s_add_u32 s84, s26, {STAMP_OFF}")
    e("s_addc_u32 s85, s27, 0")
    e("s_mov_b32 s86, 0x100000")
    e("s_mov_b32 s87, 0x20000")
    e(f"s_add_u32 s92, s2, {kidx*256}")
    e("s_lshl_b32 s92, s92, 3")
    e("s_add_u32 s92, s92, s7")
    e("s_lshl_b32 s92, s92, 6")

def gen_p1():
    lab("p1_kernel")
    e("s_cmp_ge_u32 s2, 256")
    e("s_cbranch_scc1 P1_END")
    if cfg.stamps:
        e("s_memrealtime s[52:53]")
    e("s_and_b32 s3, s2, 7")
    e("s_lshr_b32 s4, s3, 2")
    e("s_mul_i32 s5, s4, 40")
    e("s_load_dwordx8 s[8:15], s[0:1], s5")
    e("s_load_dwordx2 s[26:27], s[0:1], 96")
    e("v_lshrrev_b32 v1, 6, v0")
    e("s_lshr_b32 s6, s2, 3")
    e("v_readfirstlane_b32 s7, v1")
    e("v_and_b32 v0, 63, v0")
    e("s_and_b32 s16, s3, 3")
    e("s_lshl_b32 s16, s16, 3")
    e("s_and_b32 s17, s6, 7")
    e("s_add_u32 s16, s16, s17")
    e("s_lshr_b32 s18, s6, 3")
    e("s_cmp_ge_u32 s7, 6")
    e("s_cbranch_scc1 P1_KV")
    e("s_cmp_ge_u32 s7, 4")
    e("s_cbranch_scc1 P1_STREAM")
    gen_p1_compute()
    gen_p1_stream()
    gen_p1_kv()
    lab("P1_END")
    e("s_endpgm")

def gen_p1_stream():
    lab("P1_STREAM")
    e("s_sub_u32 s19, s7, 4")
    if cfg.rot == 0:
        e("s_mov_b32 s20, 0")
    elif cfg.rot == 1:
        e("s_add_u32 s20, s17, s18")
        e("s_and_b32 s20, s20, 1")
        e("s_mul_i32 s20, s20, 5")
    elif cfg.rot == 2:
        e("s_lshl_b32 s20, s18, 1")
        e("s_add_u32 s20, s20, s17")
        e("s_and_b32 s20, s20, 7")
        e("s_mul_i32 s20, s20, 5")
        e("s_lshr_b32 s20, s20, 2")
    elif cfg.rot == 3:
        e("s_add_u32 s20, s17, s18")
        e("s_and_b32 s20, s20, 3")
        e("s_mul_i32 s20, s20, 5")
        e("s_lshr_b32 s20, s20, 1")
    e("v_lshrrev_b32 v1, 3, v0")
    e("v_and_b32 v2, 7, v0")
    e("v_and_b32 v3, 6, v1")
    e("v_xor_b32 v2, v2, v3")
    e("v_lshlrev_b32 v2, 4, v2")
    e("s_mul_i32 s21, s19, 96")
    e("v_add_u32 v1, s21, v1")
    e("v_mul_u32_u24 v1, 1280, v1")
    e("v_add_u32 v10, v1, v2")
    e("v_lshrrev_b32 v1, 4, v0")
    e("v_and_b32 v2, 15, v0")
    e("v_lshlrev_b32 v3, 1, v1")
    e("v_xor_b32 v2, v2, v3")
    e("v_lshlrev_b32 v2, 4, v2")
    e("s_lshl_b32 s21, s19, 5")
    e("v_add_u32 v1, s21, v1")
    e("v_lshlrev_b32 v1, 13, v1")
    e("v_add_u32 v11, v1, v2")
    e("v_xor_b32 v12, 128, v11")
    e("s_waitcnt lgkmcnt(0)")
    stamp_setup(0)
    e(f"s_mul_i32 s21, s18, {192*1280}")
    e("s_add_u32 s32, s8, s21")
    e("s_addc_u32 s33, s9, 0")
    e(f"s_mov_b32 s34, {192*1280}")
    e("s_mov_b32 s35, 0x20000")
    e("s_lshl_b32 s21, s16, 8")
    e("s_add_u32 s36, s14, s21")
    e("s_addc_u32 s37, s15, 0")
    e(f"s_sub_u32 s38, {640*8192}, s21")
    e("s_mov_b32 s39, 0x20000")
    e(f"s_mul_i32 s22, s19, {96*128}")
    e(f"s_mul_i32 s23, s19, {32*256}")
    e(f"s_add_u32 s23, s23, {XB}")
    e("s_mov_b32 s24, 0")
    e("s_mov_b32 s25, 0")
    lab("P1_ST_LOOP")
    e("s_lshl_b32 s28, s20, 19")
    e("s_add_u32 m0, s24, s23")
    e("s_lshl_b32 s29, s20, 7")
    for t in range(8):
        e(f"buffer_load_dwordx4 {vr(11 + ((t>>1)&1))}, s[36:39], s28 offen{cfg.nt_wq} lds")
        if t < 7:
            e("s_add_u32 m0, m0, 1024")
            e("s_add_u32 s28, s28, 32768")
    e("s_add_u32 m0, s24, s22")
    e("s_add_u32 s20, s20, 1")
    for t in range(12):
        e(f"buffer_load_dwordx4 v10, s[32:35], s29 offen{cfg.nt_x} lds")
        if t < 11:
            e("s_add_u32 m0, m0, 1024")
            e("s_add_u32 s29, s29, 10240")
    e("s_cmp_eq_u32 s20, 10")
    e("s_cselect_b32 s20, 0, s20")
    e(f"s_add_u32 s24, s24, {SLOT}")
    e(f"s_cmp_eq_u32 s24, {4*SLOT}")
    e("s_cselect_b32 s24, 0, s24")
    e("s_add_u32 s25, s25, 1")
    e("s_cmp_lt_u32 s25, 3")
    e("s_cbranch_scc1 P1_ST_LOOP")
    e("s_waitcnt vmcnt(40)")
    e("s_barrier")
    e("s_cmp_lt_u32 s25, 10")
    e("s_cbranch_scc1 P1_ST_LOOP")
    e("s_waitcnt vmcnt(20)")
    e("s_barrier")
    e("s_waitcnt vmcnt(0)")
    e("s_barrier")
    e("s_barrier")
    e("s_barrier")
    e("s_endpgm")

def gen_p1_kv():
    lab("P1_KV")
    e("s_sub_u32 s19, s7, 6")
    e("s_lshl_b32 s20, s18, 1")
    e("s_add_u32 s20, s20, s19")
    e("s_lshl_b32 s20, s20, 5")
    e("s_add_u32 s20, s20, s16")
    e("s_mul_i32 s20, s20, 24576")
    e("v_lshlrev_b32 v1, 4, v0")
    e("v_bfe_u32 v4, v0, 2, 2")
    e(f"v_mul_u32_u24 v2, {KFR}, v4")
    e("v_and_b32 v4, 1, v0")
    e("v_mul_u32_u24 v4, 528, v4")
    e("v_add_u32 v2, v2, v4")
    e("v_lshrrev_b32 v5, 4, v0")
    e("v_lshl_add_u32 v2, v5, 4, v2")
    e("v_bfe_u32 v4, v0, 1, 1")
    e("v_lshl_add_u32 v2, v4, 3, v2")
    e(f"s_mul_i32 s21, s19, {KSZ}")
    e(f"s_add_u32 s21, s21, {KBASE}")
    e("v_add_u32 v2, s21, v2")
    e(f"v_mul_u32_u24 v3, {VROW}, v5")
    e("v_and_b32 v4, 15, v0")
    e("v_lshl_add_u32 v3, v4, 4, v3")
    e(f"s_mul_i32 s21, s19, {VSZ}")
    e(f"s_add_u32 s21, s21, {VBASE}")
    e("v_add_u32 v3, s21, v3")
    e("s_waitcnt lgkmcnt(0)")
    stamp_setup(0)
    e("s_add_u32 s32, s10, s20")
    e("s_addc_u32 s33, s11, 0")
    e("s_mov_b32 s34, 24576")
    e("s_mov_b32 s35, 0x20000")
    e("s_add_u32 s36, s12, s20")
    e("s_addc_u32 s37, s13, 0")
    e("s_mov_b32 s38, 24576")
    e("s_mov_b32 s39, 0x20000")
    KR, VR = 16, 112
    def loads(base, srd):
        for t in range(24):
            if t % 4 == 0:
                e(f"s_movk_i32 s22, {t*1024}")
            e(f"buffer_load_dwordx4 {vr(base+4*t,4)}, v1, {sr(srd,4)}, s22 offen offset:{(t%4)*1024}{cfg.nt_kv}")
    assert cfg.k_after <= cfg.v_after <= 7
    for b in range(-1, 9):
        if b >= 0:
            e("s_barrier")
        if b == cfg.k_after:
            loads(KR, 32)
        if b == cfg.v_after:
            loads(VR, 36)
    e("s_barrier")
    e("s_waitcnt vmcnt(24)")
    stamp(1)
    for t in range(24):
        off = (t >> 2) * 4 * KFR + (t & 3) * 64
        e(f"ds_write_b64 v2, {vr(KR+4*t,2)} offset:{off}")
        e(f"ds_write_b64 v2, {vr(KR+4*t+2,2)} offset:{off+256}")
    e("s_waitcnt lgkmcnt(0)")
    e("s_barrier")
    stamp(2)
    e("s_waitcnt vmcnt(0)")
    stamp(3)
    for t in range(24):
        e(f"ds_write_b128 v3, {vr(VR+4*t,4)} offset:{t*4*VROW}")
    e("s_waitcnt lgkmcnt(0)")
    stamp(4)
    e("s_barrier")
    stamp_flush(5)
    e("s_endpgm")

def interleave(mf, others, per=None):
    oi = 0
    for i, m in enumerate(mf):
        e(m)
        n = per[i] if per and i < len(per) else 0
        for _ in range(n):
            if oi < len(others):
                e(others[oi]); oi += 1
    while oi < len(others):
        e(others[oi]); oi += 1

def gen_p1_compute():
    cmt("compute waves 0..3")
    ACC = 0
    AB = [96, 128]
    BB = [160, 172]
    AA = 184
    BA = 192
    KA, VA, OA = 194, 195, 196
    T0 = 200
    e(f"v_lshrrev_b32 v{T0}, 4, v0")
    e(f"v_and_b32 v{T0+1}, 15, v0")
    e(f"v_bfe_u32 v{T0+2}, v0, 2, 2")
    e(f"v_and_b32 v{T0+3}, 3, v0")
    e(f"v_lshl_add_u32 v{T0+4}, v{T0}, 3, v{T0+2}")
    e(f"v_lshlrev_b32 v{T0+4}, 8, v{T0+4}")
    e(f"v_lshl_add_u32 v{T0+4}, v{T0+3}, 3, v{T0+4}")
    e(f"v_add_u32 v{T0+4}, {XB}, v{T0+4}")
    e(f"v_and_b32 v{T0+5}, 1, v{T0}")
    e(f"v_lshl_add_u32 v{T0+5}, v{T0+5}, 2, v{T0+2}")
    for T in range(8):
        e(f"v_xor_b32 v{T0+6}, {T}, v{T0+5}")
        e(f"v_lshl_add_u32 v{AA+T}, v{T0+6}, 5, v{T0+4}")
    e(f"v_and_b32 v{T0+6}, 6, v{T0+1}")
    e(f"v_xor_b32 v{T0+6}, v{T0+6}, v{T0}")
    e(f"v_lshlrev_b32 v{T0+6}, 4, v{T0+6}")
    e(f"v_lshl_add_u32 v{T0+6}, v{T0+1}, 7, v{T0+6}")
    e(f"s_mul_i32 s21, s7, {48*128}")
    e(f"v_add_u32 v{BA}, s21, v{T0+6}")
    e(f"v_xor_b32 v{BA+1}, 64, v{BA}")
    e("s_lshr_b32 s19, s7, 1")
    e(f"v_lshrrev_b32 v{T0+6}, 1, v{T0}")
    e(f"v_mul_u32_u24 v{T0+6}, 528, v{T0+6}")
    e(f"v_and_b32 v{T0+7}, 1, v{T0}")
    e(f"v_lshl_add_u32 v{T0+6}, v{T0+7}, 8, v{T0+6}")
    e(f"v_lshl_add_u32 v{T0+6}, v{T0+1}, 4, v{T0+6}")
    e(f"s_mul_i32 s21, s19, {KSZ}")
    e(f"s_add_u32 s21, s21, {KBASE}")
    e(f"v_add_u32 v{KA}, s21, v{T0+6}")
    e(f"v_lshl_add_u32 v{T0+6}, v{T0}, 2, v{T0+2}")
    e(f"v_mul_u32_u24 v{T0+6}, {VROW}, v{T0+6}")
    e(f"v_lshl_add_u32 v{T0+6}, v{T0+3}, 3, v{T0+6}")
    e(f"s_mul_i32 s21, s19, {VSZ}")
    e(f"s_add_u32 s21, s21, {VBASE}")
    e(f"v_add_u32 v{VA}, s21, v{T0+6}")
    e(f"v_lshlrev_b32 v{OA}, 4, v0")
    for i in range(96):
        e(f"v_mov_b32 v{ACC+i}, 0")
    e("s_waitcnt lgkmcnt(0)")
    stamp_setup(0)
    e(f"s_mul_i32 s21, s4, {O_BR}")
    e("s_mul_i32 s22, s16, 196608")
    e("s_add_u32 s21, s21, s22")
    e("s_add_u32 s32, s26, s21")
    e("s_addc_u32 s33, s27, 0")
    e("s_mov_b32 s34, 196608")
    e("s_mov_b32 s35, 0x20000")
    e("s_mul_i32 s21, s18, 12")
    e("s_mul_i32 s22, s7, 3")
    e("s_add_u32 s21, s21, s22")
    for j in range(3):
        e(f"s_add_u32 s22, s21, {j}")
        e("s_lshr_b32 s23, s22, 2")
        e("s_lshl_b32 s23, s23, 14")
        e("s_and_b32 s22, s22, 3")
        e("s_lshl_b32 s22, s22, 10")
        e(f"s_add_u32 s{40+j}, s22, s23")

    def reads(buf, hh):
        r = []
        def a(T):
            r.append(f"ds_read_b64_tr_b16 {vr(AB[buf]+4*T,2)}, v{AA+T} offset:{hh*8192}")
            r.append(f"ds_read_b64_tr_b16 {vr(AB[buf]+4*T+2,2)}, v{AA+T} offset:{hh*8192+1024}")
        def b(j):
            r.append(f"ds_read_b128 {vr(BB[buf]+4*j,4)}, v{BA+hh} offset:{j*2048}")
        b(0); a(0); b(1); b(2)
        for T in range(1, 8):
            a(T)
        return r
    def mf(buf):
        return [mfma(ACC + (T*3+j)*4, AB[buf]+4*T, BB[buf]+4*j) for T in range(8) for j in range(3)]

    e("s_mov_b32 s24, 0")
    e("s_mov_b32 s25, 0")
    e("s_barrier")
    stamp(1, 84, 250)
    for r in reads(0, 0):
        e(r)
    e("s_waitcnt lgkmcnt(0)")
    per = [2,1]*8
    lab("P1_C_LOOP")
    interleave(mf(0), reads(1, 1), per)
    e("s_add_u32 s25, s25, 1")
    e("s_cmp_eq_u32 s25, 4")
    e(f"s_cselect_b32 s28, {-3*SLOT}, {SLOT}" if False else f"s_mov_b32 s28, {SLOT}")
    e(f"s_cselect_b32 s28, {(-3*SLOT) & 0xffffffff}, s28")
    e("s_cselect_b32 s25, 0, s25")
    e("s_add_u32 s24, s24, 1")
    e("s_cmp_eq_u32 s24, 10")
    e("s_waitcnt lgkmcnt(0)")
    e("s_barrier")
    e("s_cbranch_scc1 P1_C_DONE")
    adv = [f"v_add_u32 v{BA}, s28, v{BA}", f"v_add_u32 v{AA}, s28, v{AA}"]
    rd = reads(0, 0)
    seq = [adv[0], rd[0], adv[1], rd[1], rd[2], rd[3], rd[4]]
    for T in range(1, 8):
        seq += [f"v_add_u32 v{AA+T}, s28, v{AA+T}", rd[3+2*T], rd[4+2*T]]
    seq += [f"v_add_u32 v{BA+1}, s28, v{BA+1}"]
    interleave(mf(1), seq, [2]*16)
    e("s_waitcnt lgkmcnt(0)")
    e("s_branch P1_C_LOOP")
    lab("P1_C_DONE")
    stamp(2, 84, 250)
    KB = [200, 216]
    def kreads(kt):
        return [f"ds_read_b128 {vr(KB[kt&1]+4*s,4)}, v{KA} offset:{(kt*4+s)*KFR}" for s in range(4)]
    interleave(mf(1), kreads(0) + kreads(1), [1]*8)
    e("s_nop 7")
    QB = 96
    for s in range(4):
        for j in range(3):
            d = QB + (s*3+j)*4
            a0 = ACC + ((2*s)*3+j)*4
            a1 = ACC + ((2*s+1)*3+j)*4
            e(f"v_cvt_pk_bf16_f32 v{d}, v{a0}, v{a0+1}")
            e(f"v_cvt_pk_bf16_f32 v{d+1}, v{a0+2}, v{a0+3}")
            e(f"v_cvt_pk_bf16_f32 v{d+2}, v{a1}, v{a1+1}")
            e(f"v_cvt_pk_bf16_f32 v{d+3}, v{a1+2}, v{a1+3}")
    SS = 0
    for kt in range(6):
        e(f"s_waitcnt lgkmcnt({4 if kt < 5 else 0})")
        if kt == 0:
            e("s_nop 0")
        m = []
        for s in range(4):
            for j in range(3):
                m.append(mfma(SS + (kt*3+j)*4, KB[kt&1]+4*s, QB+(s*3+j)*4, "0" if s == 0 else None))
        for x in m:
            e(x)
        if kt + 2 < 6:
            for r in kreads(kt+2):
                e(r)
    stamp(3, 84, 250)
    e("s_nop 7")
    c = math.log2(math.e) / math.sqrt(128.0)
    import struct
    cbits = struct.unpack("<I", struct.pack("<f", c))[0]
    e(f"s_mov_b32 s28, {cbits:#x}")
    PB = 96
    M = 200
    for j in range(3):
        vals = [SS + (kt*3+j)*4 + r for kt in range(6) for r in range(4)]
        e(f"v_max3_f32 v{M+j}, v{vals[0]}, v{vals[1]}, v{vals[2]}")
        k = 3
        while k + 1 < 24:
            e(f"v_max3_f32 v{M+j}, v{M+j}, v{vals[k]}, v{vals[k+1]}")
            k += 2
        e(f"v_max_f32 v{M+j}, v{M+j}, v{vals[23]}")
    for op in ("v_permlane32_swap_b32", "v_permlane16_swap_b32"):
        for j in range(3):
            e(f"v_mov_b32 v{M+4+j}, v{M+j}")
        e("s_nop 1")
        for j in range(3):
            e(f"{op} v{M+j}, v{M+4+j}")
        e("s_nop 1")
        for j in range(3):
            e(f"v_max_f32 v{M+j}, v{M+j}, v{M+4+j}")
    for j in range(3):
        e(f"v_mul_f32 v{M+j}, s28, v{M+j}")
    for j in range(3):
        for kt in range(6):
            b = SS + (kt*3+j)*4
            for r in range(4):
                e(f"v_fma_f32 v{b+r}, v{b+r}, s28, -v{M+j}")
            for r in range(4):
                e(f"v_exp_f32 v{b+r}, v{b+r}")
    ONES = 204
    for r in range(4):
        e(f"v_mov_b32 v{ONES+r}, 0x3f803f80")
    for s in range(3):
        for j in range(3):
            d = PB + (s*3+j)*4
            a0 = SS + ((2*s)*3+j)*4
            a1 = SS + ((2*s+1)*3+j)*4
            e(f"v_cvt_pk_bf16_f32 v{d}, v{a0}, v{a0+1}")
            e(f"v_cvt_pk_bf16_f32 v{d+1}, v{a0+2}, v{a0+3}")
            e(f"v_cvt_pk_bf16_f32 v{d+2}, v{a1}, v{a1+1}")
            e(f"v_cvt_pk_bf16_f32 v{d+3}, v{a1+2}, v{a1+3}")
    stamp(4, 84, 250)
    e("s_barrier")
    stamp(5, 84, 250)
    VB = [144, 156]
    def vreads(T):
        r = []
        for s in range(3):
            for hh in range(2):
                r.append(f"ds_read_b64_tr_b16 {vr(VB[T&1]+4*s+2*hh,2)}, v{VA} offset:{(32*s+16*hh)*VROW + T*32}")
        return r
    for r in vreads(0) + vreads(1):
        e(r)
    LS = 208
    for s in range(3):
        for j in range(3):
            e(mfma(LS+4*j, ONES, PB+(s*3+j)*4, "0" if s == 0 else None))
    OO = 0
    for T in range(8):
        e(f"s_waitcnt lgkmcnt({6 if T < 7 else 0})")
        for s in range(3):
            for j in range(3):
                e(mfma(OO+(T*3+j)*4, VB[T&1]+4*s, PB+(s*3+j)*4, "0" if s == 0 else None))
        if T + 2 < 8:
            for r in vreads(T+2):
                e(r)
        if T == 1:
            for j in range(3):
                e(f"v_rcp_f32 v{M+j}, v{LS+4*j}")
    e("s_nop 7")
    stamp(6, 84, 250)
    OB = 96
    for s in range(4):
        for j in range(3):
            d = OB + (s*3+j)*4
            a0 = OO + ((2*s)*3+j)*4
            a1 = OO + ((2*s+1)*3+j)*4
            for a in (a0, a1):
                for r in range(4):
                    e(f"v_mul_f32 v{a+r}, v{a+r}, v{M+j}")
            e(f"v_cvt_pk_bf16_f32 v{d}, v{a0}, v{a0+1}")
            e(f"v_cvt_pk_bf16_f32 v{d+1}, v{a0+2}, v{a0+3}")
            e(f"v_cvt_pk_bf16_f32 v{d+2}, v{a1}, v{a1+1}")
            e(f"v_cvt_pk_bf16_f32 v{d+3}, v{a1+2}, v{a1+3}")
            e(f"buffer_store_dwordx4 {vr(d,4)}, v{OA}, s[32:35], s{40+j} offen{cfg.o_st}")
        if s < 3:
            e(f"v_add_u32 v{OA}, 4096, v{OA}")
    stamp(7, 84, 250)
    if cfg.stamps:
        e("s_waitcnt vmcnt(0)")
        stamp(8, 84, 250)
        stamp_flush(9)
    e("s_endpgm")

def gen_p2():
    lab("p2_kernel")
    e("s_cmp_ge_u32 s2, 240")
    e("s_cbranch_scc1 P2_END")
    if cfg.stamps:
        e("s_memrealtime s[52:53]")
    e("s_and_b32 s3, s2, 7")
    e("s_lshr_b32 s4, s3, 2")
    e("s_mul_i32 s5, s4, 40")
    e("s_load_dwordx2 s[8:9], s[0:1], s5 offset:32")
    e("s_load_dwordx2 s[10:11], s[0:1], 80")
    e("s_load_dwordx2 s[26:27], s[0:1], 96")
    e("v_lshrrev_b32 v1, 6, v0")
    e("s_lshr_b32 s6, s2, 3")
    e("v_readfirstlane_b32 s7, v1")
    e("v_mov_b32 v255, v0")
    e("v_and_b32 v0, 63, v0")
    e("s_mul_i32 s16, s6, 52")
    e("s_lshr_b32 s16, s16, 8")
    e("s_mul_i32 s17, s16, 5")
    e("s_sub_u32 s17, s6, s17")
    e("s_bfe_u32 s18, s3, 0x10001")
    e("s_mul_i32 s18, s18, 6")
    e("s_add_u32 s16, s16, s18")
    e("s_and_b32 s18, s3, 1")
    e("s_mul_i32 s18, s18, 5")
    e("s_add_u32 s17, s17, s18")
    ACC = 0
    AF = 64
    OBUF = 80
    WV = 160
    OV = 164
    AA = 165
    T0 = 170
    D = 5
    e(f"v_lshrrev_b32 v{T0}, 3, v0")
    e(f"v_and_b32 v{T0+1}, 7, v0")
    e(f"v_and_b32 v{T0+2}, 6, v{T0}")
    e(f"v_xor_b32 v{T0+1}, v{T0+1}, v{T0+2}")
    e(f"v_mul_u32_u24 v{T0}, 1280, v{T0}")
    e(f"v_lshl_add_u32 v{WV}, v{T0+1}, 4, v{T0}")
    for t in range(1, 4):
        e(f"v_add_u32 v{WV+t}, {t*(10240-1024)}, v{WV}")
    e(f"v_lshlrev_b32 v{OV}, 4, v0")
    e(f"v_lshrrev_b32 v{T0}, 2, v0")
    e(f"v_bfe_u32 v{T0+1}, v0, 3, 2")
    e(f"v_and_b32 v{T0+2}, 3, v0")
    e(f"v_lshlrev_b32 v{T0}, 7, v{T0}")
    e(f"v_lshl_add_u32 v{T0}, v{T0+2}, 3, v{T0}")
    e(f"s_mul_i32 s20, s7, {D*4096}")
    e(f"v_add_u32 v{T0}, s20, v{T0}")
    for T in range(4):
        e(f"v_xor_b32 v{T0+2}, {T}, v{T0+1}")
        e(f"v_lshl_add_u32 v{AA+T}, v{T0+2}, 5, v{T0}")
    e("s_waitcnt lgkmcnt(0)")
    stamp_setup(1)
    e(f"s_mul_i32 s21, s7, {512*1280}")
    e("s_lshl_b32 s22, s17, 7")
    e("s_add_u32 s21, s21, s22")
    e("s_add_u32 s32, s8, s21")
    e("s_addc_u32 s33, s9, 0")
    e(f"s_sub_u32 s34, {4096*1280}, s21")
    e("s_mov_b32 s35, 0x20000")
    e(f"s_mul_i32 s21, s4, {O_BR}")
    e(f"s_mul_i32 s22, s7, {4*196608}")
    e("s_add_u32 s21, s21, s22")
    e("s_lshl_b32 s22, s16, 14")
    e("s_add_u32 s21, s21, s22")
    e("s_add_u32 s36, s26, s21")
    e("s_addc_u32 s37, s27, 0")
    e(f"s_mov_b32 s38, {4*196608}")
    e("s_mov_b32 s39, 0x20000")
    e(f"s_mul_i32 s21, s16, {64*2560}")
    e("s_mul_i32 s22, s4, 1280")
    e("s_add_u32 s21, s21, s22")
    e("s_lshl_b32 s22, s17, 7")
    e("s_add_u32 s21, s21, s22")
    e("s_add_u32 s40, s10, s21")
    e("s_addc_u32 s41, s11, 0")
    e(f"s_sub_u32 s42, {768*2560}, s21")
    e("s_mov_b32 s43, 0x20000")
    def dma(u):
        e(f"s_add_u32 m0, s20, {(u % D)*4096}")
        e(f"s_mov_b32 s22, {u*40960}")
        for t in range(4):
            e(f"buffer_load_dwordx4 v{WV+t}, s[32:35], s22 offen offset:{t*1024}{cfg.nt_wo} lds")
    def oload(u):
        e(f"s_mov_b32 s23, {(u>>2)*196608 + (u&3)*4096}")
        for j in range(4):
            e(f"buffer_load_dwordx4 {vr(OBUF+(u%D)*16+4*j,4)}, v{OV}, s[36:39], s23 offen offset:{j*1024}{cfg.o_ld}")
    for u in range(D):
        dma(u); oload(u)
    for u in range(16):
        nafter = min(D-1, 15-u)
        e(f"s_waitcnt vmcnt({8*nafter})")
        for T in range(4):
            for hh in range(2):
                e(f"ds_read_b64_tr_b16 {vr(AF+4*T+2*hh,2)}, v{AA+T} offset:{(u%D)*4096 + hh*2048}")
        e("s_waitcnt lgkmcnt(0)")
        if u + D < 16:
            dma(u+D)
        for T in range(4):
            for j in range(4):
                e(mfma(ACC+(T*4+j)*4, AF+4*T, OBUF+(u%D)*16+4*j, "0" if u == 0 else None))
        if u + D < 16:
            oload(u+D)
    stamp(1, 84, 250)
    RS = 272
    PSZ = 64*RS
    e(f"v_and_b32 v{T0}, 15, v255")
    e(f"v_bfe_u32 v{T0+1}, v255, 4, 2")
    e(f"v_mul_u32_u24 v{T0}, {RS}, v{T0}")
    e(f"v_lshl_add_u32 v{T0}, v{T0+1}, 4, v{T0}")
    e(f"s_mul_i32 s21, s7, {PSZ}")
    e(f"v_add_u32 v{T0}, s21, v{T0}")
    e(f"v_lshrrev_b32 v{T0+1}, 3, v255")
    e(f"v_and_b32 v{T0+2}, 7, v255")
    e(f"v_mul_u32_u24 v{T0+3}, {RS}, v{T0+1}")
    e(f"v_lshl_add_u32 v{T0+3}, v{T0+2}, 5, v{T0+3}")
    e(f"v_add_u32 v{T0+5}, {4*PSZ}, v{T0+3}")
    e(f"v_mul_u32_u24 v{T0+4}, 2560, v{T0+1}")
    e(f"v_lshl_add_u32 v{T0+4}, v{T0+2}, 4, v{T0+4}")
    e("s_barrier")
    for T in range(4):
        for j in range(4):
            e(f"ds_write_b128 v{T0}, {vr(ACC+(T*4+j)*4,4)} offset:{j*16*RS + T*64}")
    e("s_waitcnt lgkmcnt(0)")
    e("s_barrier")
    for p in range(8):
        a = T0+3 if p < 4 else T0+5
        e(f"ds_read_b128 {vr(64+8*p,4)}, v{a} offset:{(p&3)*PSZ}")
        e(f"ds_read_b128 {vr(64+8*p+4,4)}, v{a} offset:{(p&3)*PSZ+16}")
    for p in range(1, 8):
        e(f"s_waitcnt lgkmcnt({14-2*p})")
        for r in range(8):
            e(f"v_add_f32 v{64+r}, v{64+r}, v{64+8*p+r}")
    for r in range(4):
        e(f"v_cvt_pk_bf16_f32 v{64+r}, v{64+2*r}, v{64+2*r+1}")
    e(f"buffer_store_dwordx4 v[64:67], v{T0+4}, s[40:43], 0 offen{cfg.out_st}")
    stamp(2, 84, 250)
    if cfg.stamps:
        e("s_waitcnt vmcnt(0)")
        stamp(3, 84, 250)
        stamp_flush(4)
    lab("P2_END")
    e("s_endpgm")

def kd(name):
    return f""".amdhsa_kernel {name}
  .amdhsa_next_free_vgpr 256
  .amdhsa_next_free_sgpr 102
  .amdhsa_accum_offset 256
  .amdhsa_group_segment_fixed_size 0
  .amdhsa_kernarg_size 104
  .amdhsa_user_sgpr_count 2
  .amdhsa_user_sgpr_kernarg_segment_ptr 1
  .amdhsa_system_sgpr_workgroup_id_x 1
.end_amdhsa_kernel
"""

LL = {"1": "; @launch kernel=p1_kernel grid=(256,1,1) block=(512,1,1) lds=163840\n",
      "2": "; @launch kernel=p2_kernel grid=(240,1,1) block=(512,1,1) lds=163840\n",
      "d": "; @launch kernel=d_kernel grid=(1,1,1) block=(256,1,1) lds=256\n",
      "e": "; @launch kernel=e_kernel grid=(1,1,1) block=(64,1,1) lds=0\n"}
hdr = "; p1 = Q projection + attention, p2 = output projection\n" + "".join(LL[c] for c in cfg.seq.strip()) + """.amdgcn_target "amdgcn-amd-amdhsa--gfx950"
.text
"""
def gen_e():
    lab("e_kernel")
    e("s_endpgm")
out = hdr
ks = [("p1_kernel", gen_p1), ("p2_kernel", gen_p2)] + ([("e_kernel", gen_e)] if "e" in cfg.seq else [])
if "d" in cfg.seq:
    import os
    sys.path.insert(0, os.path.dirname(os.path.abspath(__file__)))
    from diag import gen_diag
    ks.append(("d_kernel", lambda: L.extend(gen_diag(cfg.diag.strip(), STAMP_OFF))))
for name, fn in ks:
    L.clear()
    fn()
    out += f".globl {name}\n.p2align 8\n.type {name},@function\n" + "\n".join(L) + "\n"
out += '.section .rodata,"a"\n' + "".join(".p2align 6\n" + kd(n) for n, _ in ks)
open(sys.argv[1], "w").write(out)
```

```python
import re

def vr(a, n=1):
    return f"v{a}" if n == 1 else f"v[{a}:{a+n-1}]"
def sr(a, n=1):
    return f"s{a}" if n == 1 else f"s[{a}:{a+n-1}]"
def mfma(d, a, b, c=None):
    cs = vr(d, 4) if c is None else c
    return f"v_mfma_f32_16x16x32_bf16 {vr(d,4)}, {vr(a,4)}, {vr(b,4)}, {cs}"

class Asm:
    def __init__(self):
        self.L = []
    def e(self, s):
        self.L.append("    " + s)
    def lab(self, s):
        self.L.append(s + ":")
    def cmt(self, s):
        self.L.append("    ; " + s)
    def text(self):
        return "\n".join(self.L) + "\n"

class Counter:
    def __init__(self, asm, name, cap):
        self.asm, self.name, self.cap = asm, name, cap
        self.pend = []
    def issue(self, instr, *tags):
        self.asm.e(instr)
        self.pend.append(set(tags))
    def need(self, *tags):
        tags = set(tags)
        last = -1
        for i, t in enumerate(self.pend):
            if t & tags:
                last = i
        if last < 0:
            return
        n = min(len(self.pend) - 1 - last, self.cap)
        self.asm.e(f"s_waitcnt {self.name}({n})")
        self.pend = self.pend[len(self.pend) - n:] if n else []
    def drain(self):
        self.asm.e(f"s_waitcnt {self.name}(0)")
        self.pend = []

_reg = re.compile(r"\b([vs])(?:(\d+)|\[(\d+):(\d+)\])")
def regs_of(tok):
    out = set()
    for k, a, b, c in _reg.findall(tok):
        if a:
            out.add((k, int(a)))
        else:
            out.update((k, i) for i in range(int(b), int(c) + 1))
    if re.search(r"\bvcc\b", tok):
        out.add(("s", "vcc"))
    if re.search(r"\bm0\b", tok):
        out.add(("s", "m0"))
    return out

TRANS = ("v_exp_", "v_log_", "v_rcp_", "v_rsq_", "v_sqrt_", "v_sin_", "v_cos_")
def parse(line):
    s = line.split(";")[0].strip()
    if not s or s.endswith(":") or s.startswith("."):
        return None
    op, _, rest = s.partition(" ")
    ops = [x.strip() for x in re.split(r",(?![^\[]*\])", rest)] if rest else []
    d = dict(op=op, text=s, wr=set(), rd=set(), states=1, srcc=set(), data=set())
    if op == "s_nop":
        d["states"] = int(ops[0], 0) + 1
        d["cls"] = "nop"
        return d
    if op.startswith("v_mfma"):
        d["cls"] = "mfma"
        d["wr"] = regs_of(ops[0]); d["ab"] = regs_of(ops[1]) | regs_of(ops[2]); d["srcc"] = regs_of(ops[3])
        d["rd"] = d["ab"] | d["srcc"]
        return d
    if op.startswith("v_"):
        d["cls"] = "valu"
        d["wr"] = regs_of(ops[0])
        rs = ops[1:]
        if "_co_" in op or op.startswith("v_div_scale"):
            d["wr"] |= regs_of(ops[1]); rs = ops[2:]
        for x in rs:
            d["rd"] |= regs_of(x)
        if op.startswith("v_permlane") and "swap" in op:
            d["rd"] |= regs_of(ops[0]); d["wr"] |= regs_of(ops[1])
        if op.startswith("v_fmac") or op.startswith("v_pk_fmac") or op.startswith("v_writelane"):
            d["rd"] |= regs_of(ops[0])
        return d
    if op.startswith("ds_"):
        d["cls"] = "ds"
        if op.startswith("ds_read") or "_rtn" in op or "permute" in op:
            d["wr"] = regs_of(ops[0]); rs = ops[1:]
        else:
            rs = ops
        for x in rs:
            d["rd"] |= regs_of(x)
        return d
    if op.startswith("buffer_") or op.startswith("global_"):
        d["cls"] = "vmem"
        lds = s.endswith(" lds") or "load_lds" in op
        d["lds"] = lds
        if "load" in op and not lds:
            d["wr"] = regs_of(ops[0]); rs = ops[1:]
        else:
            rs = ops
            if "store" in op and ("x4" in op or "x3" in op):
                d["data"] = regs_of(ops[0] if op.startswith("buffer_") else ops[1])
            if "atomic" in op and " sc0" in s:
                d["wr"] = regs_of(ops[0])
        for x in rs:
            d["rd"] |= regs_of(x)
        return d
    d["cls"] = "salu"
    if op.startswith("s_cmp") or op.startswith("s_bitcmp") or op.startswith("s_cbranch") or op in ("s_barrier", "s_waitcnt", "s_branch", "s_endpgm", "s_setprio", "s_sleep"):
        for x in ops:
            d["rd"] |= regs_of(x)
    elif ops:
        d["wr"] = regs_of(ops[0])
        for x in ops[1:]:
            d["rd"] |= regs_of(x)
    return d

def required(p, c):
    n = 0
    V = lambda s: {r for r in s if r[0] == "v"}
    S = lambda s: {r for r in s if r[0] == "s"}
    if p["cls"] == "valu":
        if c["cls"] == "mfma" and V(p["wr"]) & c["rd"]: n = max(n, 2)
        if c["cls"] == "valu":
            if c["op"].startswith("v_permlane") and V(p["wr"]) & c["rd"]: n = max(n, 2)
            if c["op"].startswith(("v_readlane", "v_readfirstlane")) and V(p["wr"]) & c["rd"]: n = max(n, 1)
            if p["op"].startswith(TRANS) and not c["op"].startswith(TRANS) and V(p["wr"]) & c["rd"]: n = max(n, 1)
            if "dpp" in c["text"] or "row_" in c["text"]:
                if V(p["wr"]) & c["rd"]: n = max(n, 2)
            if S(p["wr"]) & c["rd"]: n = max(n, 4 if c["op"].startswith(("v_readlane", "v_writelane")) else 2)
            if "op_sel" in p["text"] and not p["op"].startswith("v_pk_") and V(p["wr"]) & (c["rd"] | c["wr"]): n = max(n, 1)
        if c["cls"] == "vmem" and S(p["wr"]) & c["rd"]: n = max(n, 5)
    if p["cls"] == "mfma":
        if c["cls"] == "mfma":
            if p["wr"] & c["ab"]: n = max(n, 8)
            if p["wr"] & c["srcc"] and p["wr"] != c["srcc"]: n = max(n, 6)
        elif c["cls"] in ("valu", "ds", "vmem"):
            if p["wr"] & (c["rd"] | c["wr"]): n = max(n, 8)
            if c["cls"] == "valu" and p["srcc"] & c["wr"]: n = max(n, 3)
    if p["cls"] == "vmem" and p["data"]:
        if p["data"] & c["wr"]: n = max(n, 2 if c["cls"] in ("valu", "mfma") else 1)
    if p["cls"] == "salu" and ("s", "m0") in p["wr"] and c["cls"] == "vmem" and c.get("lds"):
        n = max(n, 1)
    return n

def check_hazards(lines):
    ins, labels = [], {}
    for ln in lines:
        s = ln.split(";")[0].strip()
        if s.endswith(":"):
            labels[s[:-1]] = len(ins)
            continue
        d = parse(ln)
        if d:
            ins.append(d)
    succ = []
    for i, d in enumerate(ins):
        op = d["op"]
        if op == "s_endpgm":
            succ.append([])
        elif op == "s_branch":
            succ.append([labels[d["text"].split()[1]]])
        elif op.startswith("s_cbranch"):
            succ.append([i + 1, labels[d["text"].split()[1]]])
        else:
            succ.append([i + 1] if i + 1 < len(ins) else [])
    probs = set()
    for i, p in enumerate(ins):
        if p["cls"] in ("nop",):
            continue
        stack = [(j, 0) for j in succ[i]]
        seen = {}
        while stack:
            j, dist = stack.pop()
            if dist >= 9 or seen.get(j, 99) <= dist:
                continue
            seen[j] = dist
            c = ins[j]
            if c["cls"] != "nop":
                r = required(p, c)
                if r > dist:
                    probs.add(f"need {r} have {dist}: [{p['text']}] -> [{c['text']}]")
            for k in succ[j]:
                stack.append((k, dist + c["states"]))
    return sorted(probs)
```

```python
def gen_diag(spec, stamp_off):
    ka, wa, ia, opa, kb, wb, ib, opb, nwg, mult = spec.split(":")
    ka, wa, ia, kb, wb, ib, nwg, mult = map(int, (ka, wa, ia, kb, wb, ib, nwg, mult))
    L = ["d_kernel:"]
    e = lambda s: L.append("    " + s)
    e("s_cmp_ge_u32 s2, 1")
    e("s_cbranch_scc1 D_END")
    e("s_load_dwordx2 s[26:27], s[0:1], 96")
    e(f"v_min_u32 v1, {nwg-1}, v0")
    e("v_lshlrev_b32 v1, 9, v1")
    e("s_waitcnt lgkmcnt(0)")
    e(f"s_add_u32 s84, s26, {stamp_off}")
    e("s_addc_u32 s85, s27, 0")
    e("s_mov_b32 s86, 0x100000")
    e("s_mov_b32 s87, 0x20000")
    e(f"s_mov_b32 s4, {ka*256*512 + wa*64 + ia*4}")
    e(f"s_mov_b32 s5, {kb*256*512 + wb*64 + ib*4}")
    e("v_mov_b32 v10, 0")
    e("buffer_load_dword v2, v1, s[84:87], s4 offen")
    e("buffer_load_dword v3, v1, s[84:87], s5 offen")
    e("buffer_load_dword v4, v10, s[84:87], 0 offen")
    init = {"min": "-1", "max": "0", "avg": "0"}
    e(f"v_mov_b32 v5, {init[opa]}")
    e(f"v_mov_b32 v6, {init[opb]}")
    e("ds_write_b32 v10, v5")
    e("ds_write_b32 v10, v6 offset:4")
    e("s_waitcnt vmcnt(0) lgkmcnt(0)")
    e("s_barrier")
    if opa == "avg" and opb == "avg":
        e("v_mov_b32 v4, v2")
    e("v_subrev_u32 v4, 100000, v4")
    e("v_sub_u32 v2, v2, v4")
    e("v_sub_u32 v3, v3, v4")
    op = {"min": "ds_min_u32", "max": "ds_max_u32", "avg": "ds_add_u32"}
    e(f"{op[opa]} v10, v2")
    e(f"{op[opb]} v10, v3 offset:4")
    e("s_waitcnt lgkmcnt(0)")
    e("s_barrier")
    e("ds_read_b64 v[2:3], v10")
    e("s_waitcnt lgkmcnt(0)")
    if opa == "avg": e("v_lshrrev_b32 v2, 8, v2")
    if opb == "avg": e("v_lshrrev_b32 v3, 8, v3")
    e("v_sub_u32 v2, v3, v2")
    e("v_min_u32 v2, 20000, v2")
    e("s_nop 1")
    e("v_readfirstlane_b32 s6, v2")
    e("s_memrealtime s[8:9]")
    e("s_waitcnt lgkmcnt(0)")
    if mult < 0:
        e(f"s_mov_b32 s6, {-mult}")
    else:
        e(f"s_mul_i32 s6, s6, {mult}")
    L.append("D_SPIN:")
    e("s_memrealtime s[10:11]")
    e("s_waitcnt lgkmcnt(0)")
    e("s_sub_u32 s12, s10, s8")
    e("s_cmp_lt_u32 s12, s6")
    e("s_cbranch_scc1 D_SPIN")
    L.append("D_END:")
    e("s_endpgm")
    return L
```

```python
import sys, os, math, struct
sys.path.insert(0, os.path.dirname(os.path.abspath(__file__)))
from asmlib import *

NAME = "concat_heads__gqa_block_cached__mha_block_cached__near_ridge"

class Cfg:
    nt_x = ""; nt_wq = ""; nt_k = ""; nt_v = ""; nt_wo = ""
    o_st = " sc1"; o_ld = " sc1"; out_st = " sc1"
    rot = 3
    sched = " S0 S1/S2/S3/S4/S5/S6/S7/S8/S9/K012/K345 V0//V1"
    sched2 = " S0 S1/S2/K01234 Va S3/S4/S5/S6/S7/S8/S9/K5/V1//W0"
    selbit = 1
    wpre = 2
    wmid = 2
    wpoll = 7
    wla = 2
    prog = 0
    rtt = 16
    rnt = 0
    fine = 1
    wfirst = 2
    ntsh = 0
    split = 2
    p_st = " sc1"; p_ld = " sc1"
    slp = 0
    alt = 1
    poll = 1
    wp = " 2,2/2,2"
    rtab = " 0,2,5,8,10,13"
    sflag = 0
    numa = 0
    p3s = 1
    late0 = 1
    kbar = 33
    ksplit = 0
    qn = 0
    pn = 0
    ksp = 1
    cpf = 1
    hst = 0
    touch = 0
    slp3 = 0
    fl_ld = " sc1"; fl_st = " sc1"
    prio = 1
    pk = 1
    pk2 = 0
    stamps = 0
    spin = 200000
    diag = ""
cfg = Cfg()
for a in sys.argv[2:]:
    k, v = a.split("=")
    old = getattr(cfg, k)
    setattr(cfg, k, int(v) if isinstance(old, int) else ((" " + v.replace("+", " ")) if v else ""))

A = Asm()
e, lab, cmt = A.e, A.lab, A.cmt

STAMP_OFF = 64 << 20
G = 16384 if cfg.numa else 8192
FLAG_OFF = 0
O_OFF = 4 << 20
PART_OFF = 40 << 20
if cfg.numa:
    O_H1, O_H4 = 512 << 10, 4 << 20
    P_W, P_T1, P_T8 = 16384, 256 << 10, 4 << 20
else:
    O_H1, O_H4 = 196608, 4*196608
    P_W, P_T1, P_T8 = 6144, 16*6144, 8*16*6144
def branch_off(dst, plain):
    if cfg.numa:
        e(f"s_xor_b32 s{dst}, s4, {cfg.numa - 1}")
        e(f"s_lshl_b32 s{dst}, s{dst}, 13")
    else:
        e(f"s_mul_i32 s{dst}, s4, {plain}")
SLOT = 40960
XB = 24576
PHYS = [0, 2*SLOT, SLOT]
V1B, V0B, K0B = 49152, 90112, 114688
WSL = [0, 16384, 32768, 73728, 114688, 131072, 147456]
kpos = lambda kt: K0B + ((kt + 1) % 6) * 8192

def stamp(i):
    if cfg.stamps == 3:
        sub = [0, 1, 2, 4, 7, 9, 10, 15]
        if i in sub:
            k = sub.index(i)
            e(f"s_memrealtime s[{52+4*k}:{53+4*k}]")
            e(f"s_memtime s[{54+4*k}:{55+4*k}]")
    elif cfg.stamps:
        e(f"{'s_memtime' if cfg.stamps == 2 else 's_memrealtime'} s[{52+2*i}:{53+2*i}]")
def stamp_flush():
    if not cfg.stamps:
        return
    e(f"s_add_u32 s84, s24, {STAMP_OFF}")
    e("s_addc_u32 s85, s25, 0")
    e("s_mov_b32 s86, 0x100000")
    e("s_mov_b32 s87, 0x20000")
    e("s_lshl_b32 s92, s2, 3")
    e("s_add_u32 s92, s92, s7")
    e("s_lshl_b32 s92, s92, 6")
    e("s_waitcnt lgkmcnt(0)")
    e("v_mbcnt_lo_u32_b32 v251, -1, 0")
    e("v_lshlrev_b32 v251, 2, v251")
    for i in range(16):
        e(f"v_writelane_b32 v250, s{52+2*i}, {i}")
    e("s_mov_b64 exec, 0xffff")
    e(f"buffer_store_dword v250, v251, s[84:87], s92 offen sc1")

def srd(d, lo, hi, off, size):
    e(f"s_add_u32 s{d}, s{lo}, {off}")
    e(f"s_addc_u32 s{d+1}, s{hi}, 0")
    e(f"s_mov_b32 s{d+2}, {size}")
    e(f"s_mov_b32 s{d+3}, 0x20000")

def prologue():
    lab(NAME + "_kernel")
    e("s_cmp_ge_u32 s2, 256")
    e("s_cbranch_scc1 L_END")
    e("s_and_b32 s3, s2, 7")
    e("s_lshr_b32 s4, s3, 2")
    e("s_mul_i32 s5, s4, 40")
    e("s_load_dwordx8 s[8:15], s[0:1], s5")
    e("s_load_dwordx2 s[16:17], s[0:1], s5 offset:32")
    e("s_load_dwordx4 s[20:23], s[0:1], 80")
    e("s_load_dwordx2 s[24:25], s[0:1], 96")
    if cfg.stamps:
        for i in range(1, 16):
            e(f"s_mov_b32 s{52+2*i}, 0")
    stamp(0)
    e("v_lshrrev_b32 v1, 6, v0")
    e("s_lshr_b32 s6, s2, 3")
    e("v_readfirstlane_b32 s7, v1")
    e("v_mov_b32 v255, v0")
    e("v_and_b32 v0, 63, v0")
    if cfg.alt:
        e("s_bfe_u32 s26, s6, 0x10002")
        e("s_lshr_b32 s27, s6, 3")
        e("s_and_b32 s6, s6, 3")
        e("s_lshl_b32 s27, s27, 2")
        e("s_lshl_b32 s26, s26, 4")
        e("s_or_b32 s6, s6, s27")
        e("s_or_b32 s6, s6, s26")
        if cfg.stamps:
            e("s_lshl_b32 s2, s6, 3")
            e("s_or_b32 s2, s2, s3")
    e("s_and_b32 s26, s3, 3")
    e("s_lshl_b32 s26, s26, 3")
    e("s_and_b32 s27, s6, 7")
    e("s_add_u32 s26, s26, s27")
    e("s_lshr_b32 s28, s6, 3")
    e("s_cmp_lt_u32 s7, 4")
    e("s_cbranch_scc1 L_COMPUTE")

def helper():
    cmt("---------------- helper waves 4..7: stream x / wq, then K, V")
    vm = Counter(A, "vmcnt", 63)
    e("s_sub_u32 s19, s7, 4")
    if cfg.rot == 0:
        e("s_mov_b32 s30, 0")
    elif cfg.rot == 1:
        e("s_add_u32 s30, s27, s28"); e("s_and_b32 s30, s30, 1"); e("s_mul_i32 s30, s30, 5")
    elif cfg.rot == 2:
        e("s_lshl_b32 s30, s28, 1"); e("s_add_u32 s30, s30, s27"); e("s_and_b32 s30, s30, 7")
        e("s_mul_i32 s30, s30, 5"); e("s_lshr_b32 s30, s30, 2")
    elif cfg.rot == 3:
        e("s_add_u32 s30, s27, s28"); e("s_and_b32 s30, s30, 3"); e("s_mul_i32 s30, s30, 5"); e("s_lshr_b32 s30, s30, 1")
    elif cfg.rot in (4, 5, 6):
        base = {4: (0, 5, 3, 8), 5: (0, 5, 2, 7), 6: (0, 5, 3, 8)}[cfg.rot]
        e(f"s_lshl_b32 s29, s28, 2")
        e(f"s_lshr_b32 s30, {sum(b << (4*i) for i, b in enumerate(base)):#x}, s29")
        e("s_and_b32 s30, s30, 15")
        e("s_lshl_b32 s29, s27, 2")
        offs = [2*(h % 5) for h in range(8)] if cfg.rot != 6 else [0, 1, 2, 4, 5, 6, 7, 9]
        e(f"s_lshr_b32 s29, {sum(b << (4*i) for i, b in enumerate(offs)):#x}, s29")
        e("s_and_b32 s29, s29, 15")
        e("s_add_u32 s30, s30, s29")
        e("s_cmp_ge_u32 s30, 10")
        e("s_cselect_b32 s29, 10, 0")
        e("s_sub_u32 s30, s30, s29")
    XV, WV = 10, 14
    e("v_lshrrev_b32 v1, 4, v0")
    e("v_and_b32 v2, 15, v0")
    e("v_lshlrev_b32 v3, 1, v1")
    e("v_xor_b32 v4, v2, v3")
    e("v_lshlrev_b32 v4, 4, v4")
    e("s_lshl_b32 s29, s19, 4")
    e("v_add_u32 v5, s29, v1")
    e(f"v_lshl_add_u32 v{WV}, v5, 13, v4")
    e(f"v_add_u32 v{WV+1}, {32768-1024}, v{WV}")
    e(f"v_xor_b32 v5, 128, v{WV}")
    e(f"v_add_u32 v{WV+2}, {2*(32768-1024)}, v5")
    e(f"v_add_u32 v{WV+3}, {3*(32768-1024)}, v5")
    e("v_lshrrev_b32 v5, 3, v0")
    e("v_and_b32 v6, 7, v0")
    e("v_and_b32 v7, 6, v5")
    e("v_xor_b32 v6, v6, v7")
    e("s_mul_i32 s29, s19, 48")
    e("v_add_u32 v5, s29, v5")
    e("v_mul_u32_u24 v5, 1280, v5")
    e(f"v_lshl_add_u32 v{XV}, v6, 4, v5")
    for t in range(1, 4):
        e(f"v_add_u32 v{XV+t}, {t*(10240-1024)}, v{XV}")
    e(f"s_mul_i32 s88, s19, {48*128}")
    e("s_lshl_b32 s89, s19, 12")
    e(f"s_mul_i32 s29, s28, {192*1280}")
    e("s_lshl_b32 s31, s26, 8")
    e(f"s_sub_u32 s18, {640*8192}, s31")
    e("s_waitcnt lgkmcnt(0)")
    srd(36, 14, 15, "s31", "s18")
    srd(32, 8, 9, "s29", 192*1280)

    def stage(i):
        slot = PHYS[i % 3]
        e(f"s_add_u32 m0, s89, {slot + XB}")
        e("s_lshl_b32 s90, s30, 19")
        for t in range(4):
            vm.issue(f"buffer_load_dwordx4 v{WV+t}, s[36:39], s90 offen offset:{t*1024}{cfg.nt_wq} lds", ("st", i))
        e(f"s_add_u32 m0, s88, {slot}")
        e("s_lshl_b32 s91, s30, 7")
        for t in range(4):
            vm.issue(f"buffer_load_dwordx4 v{XV+t}, s[32:35], s91 offen offset:{t*1024}{cfg.nt_x} lds", ("st", i))
        e("s_add_u32 m0, m0, 4096")
        e("s_add_u32 s91, s91, 40960")
        for t in range(2):
            vm.issue(f"buffer_load_dwordx4 v{XV+t}, s[32:35], s91 offen offset:{t*1024}{cfg.nt_x} lds", ("st", i))
        if i < 9:
            e("s_add_u32 s30, s30, 1")
            e("s_cmp_eq_u32 s30, 10")
            e("s_cselect_b32 s30, 0, s30")

    def kv_setup():
        e("s_lshl_b32 s29, s28, 6")
        e("s_add_u32 s29, s29, s26")
        e("s_mul_i32 s29, s29, 24576")
        srd(44, 12, 13, "s29", 33*24576)
        srd(40, 10, 11, "s29", 33*24576)
        e("v_lshlrev_b32 v18, 4, v0")
        e("s_and_b32 s31, s19, 1")
        e("s_lshl_b32 s31, s31, 7")
        e("v_xor_b32 v19, s31, v4")
        e("v_lshl_add_u32 v19, v1, 8, v19")
        e("s_lshl_b32 s93, s19, 10")
        e("v_add_u32 v19, s93, v19")
        e("s_lshl_b32 s31, s19, 2")
        e("v_add_u32 v5, s31, v1")
        e("v_xor_b32 v6, v2, v5")
        e("v_lshlrev_b32 v6, 4, v6")
        e("v_lshl_add_u32 v20, v5, 8, v6")
    def kload(kts):
        for kt in kts:
            for b in range(2):
                e(f"s_add_u32 m0, s93, {kpos(kt) + b*4096}")
                e(f"s_mov_b32 s90, {b*32*24576 + kt*4096}")
                vm.issue(f"buffer_load_dwordx4 v20, s[40:43], s90 offen{cfg.nt_k} lds", "k", "ka" if kt < 3 else "kb")
    def vload(b):
        for n in range(6):
            e(f"s_add_u32 m0, s93, {(V1B if b else V0B) + n*4096}")
            e(f"s_mov_b32 s90, {b*32*24576 + n*4096}")
            vm.issue(f"buffer_load_dwordx4 v19, s[44:47], s90 offen{cfg.nt_v} lds", "v")

    VR = 80
    def vreg(b):
        for n in range(6):
            e(f"s_mov_b32 s90, {b*32*24576 + n*4096}")
            vm.issue(f"buffer_load_dwordx4 {vr(VR+24*b+4*n,4)}, v19, s[44:47], s90 offen{cfg.nt_v}", ("vr", b))
    def vwrite(b):
        vm.need(("vr", b))
        e(f"s_add_u32 s90, s93, {V1B if b else V0B}")
        e("v_add_u32 v22, s90, v18")
        for n in range(6):
            e(f"ds_write_b128 v22, {vr(VR+24*b+4*n,4)} offset:{n*4096}")
    if cfg.sched2:
        if cfg.selbit == 0:
            e("s_add_u32 s29, s27, s28"); e("s_and_b32 s29, s29, 1")
        elif cfg.selbit == 1:
            e("s_and_b32 s29, s28, 2")
        else:
            e("s_and_b32 s29, s27, 1")
        e("s_cbranch_scc1 L_H2")
        run_sched(cfg.sched, locals())
        e("s_branch L_H3")
        lab("L_H2")
        vm.pend = []
        run_sched(cfg.sched2, locals())
        lab("L_H3")
    else:
        run_sched(cfg.sched, locals())
    helper_tail()

def run_sched(sched, env):
    vm, kv_setup, stage, kload, vload, vreg, vwrite = (env[k] for k in ("vm", "kv_setup", "stage", "kload", "vload", "vreg", "vwrite"))
    iv = [x.split() for x in sched.strip().split("/")]
    assert len(iv) == 13
    setup_done = False
    for i, toks in enumerate(iv):
        for tk in toks:
            if tk[0] != "S" and not setup_done:
                kv_setup(); setup_done = True
            if tk[0] == "S":
                n = int(tk[1:])
                assert n <= max(2, i + 1)
                stage(n)
            elif tk[0] == "K":
                assert i <= (11 if (cfg.ksplit and int(tk[1]) >= 3) else 10) and ("5" not in tk or i >= 9)
                kload([int(c) for c in tk[1:]])
            elif tk == "V0":
                assert i >= 9; vload(0)
            elif tk == "V1":
                assert i >= 10; vload(1)
            elif tk == "Va": vreg(0)
            elif tk == "Vb": vreg(1)
            elif tk == "W0":
                assert i >= 9; vwrite(0)
            elif tk == "W1":
                assert i >= 10; vwrite(1)
            else:
                assert False, tk
        if i == 0 and not setup_done:
            kv_setup(); setup_done = True
        if i < 10:
            vm.need(("st", i))
        if i == 10:
            vm.need("ka" if cfg.ksplit else "k")
        if i == 11 and cfg.ksplit:
            vm.need("kb")
        if i < 11 or (i == 11 and cfg.ksplit):
            e("s_barrier")
        if cfg.hst == 2: continue
        if i < (10 if cfg.hst else 8): stamp(1 + i)
        if i == 10: stamp(11)

def ids():
    cmt("s94 = m (15: no tile), s95 = tt, s96 = nt, s97 = hg, s98 = set, s99 = (branch*2+set)*4")
    e("s_and_b32 s94, s28, 1")
    e("s_lshl_b32 s94, s94, 3")
    e("s_add_u32 s94, s94, s27")
    e("s_mul_i32 s95, s94, 52")
    e("s_lshr_b32 s95, s95, 8")
    e("s_mul_i32 s96, s95, 5")
    e("s_sub_u32 s96, s94, s96")
    e("s_and_b32 s97, s3, 3")
    e("s_lshr_b32 s98, s28, 1")
    if cfg.ntsh:
        e(f"s_mul_i32 s99, s98, {cfg.ntsh}")
        e("s_add_u32 s96, s96, s99")
        e("s_cmp_ge_u32 s96, 5")
        e("s_cselect_b32 s99, 5, 0")
        e("s_sub_u32 s96, s96, s99")
    e("s_lshl_b32 s99, s4, 1")
    e("s_add_u32 s99, s99, s98")
    e("s_lshl_b32 s99, s99, 2")

def wslot(u):
    return WSL[u % 7]

def helper_tail():
    vm = Counter(A, "vmcnt", 63)
    ids()
    srd(48, 22, 23, 0, 256)
    e("s_lshl_b32 s101, s99, 2")
    e("v_mov_b32 v9, 0")
    e("s_cmp_eq_u32 s94, 15")
    e("s_cbranch_scc1 L_H_NOP2")
    e("buffer_load_dwordx4 v[32:35], v9, s[48:51], s101 offen sc1")
    WV, OV = 24, 28
    e("s_mul_i32 s29, s98, 3")
    e("s_add_u32 s29, s29, s95")
    e("s_lshl_b32 s31, s29, 2")
    e(f"s_lshr_b32 s30, {sum(int(b) << (4*i) for i, b in enumerate(cfg.rtab.split(','))):#x}, s31")
    e(f"s_mul_i32 s18, s97, {1024*1280}")
    e("s_lshl_b32 s31, s96, 8")
    e("s_add_u32 s18, s18, s31")
    e(f"s_sub_u32 s31, {4096*1280}, s18")
    srd(32, 16, 17, "s18", "s31")
    branch_off(18, 8*O_H4)
    e(f"s_mul_i32 s31, s97, {2*O_H4}")
    e("s_add_u32 s18, s18, s31")
    e(f"s_mul_i32 s31, s29, {4*G}")
    e("s_add_u32 s18, s18, s31")
    e(f"s_add_u32 s18, s18, {O_OFF - 4096}")
    srd(36, 24, 25, "s18", 2*O_H4)
    e("s_lshl_b32 s31, s19, 4")
    e("v_add_u32 v5, s31, v1")
    e("v_mul_u32_u24 v5, 1280, v5")
    e(f"v_add_u32 v{WV}, v5, v4")
    e("v_xor_b32 v6, 128, v4")
    e("v_add_u32 v6, v5, v6")
    e(f"v_add_u32 v{WV+1}, {4*1280-1024}, v6")
    e(f"v_add_u32 v{WV+2}, {2*(4*1280-1024)}, v{WV}")
    e(f"v_add_u32 v{WV+3}, {3*(4*1280-1024)}, v6")
    def wdma(u, ts=range(4)):
        e(f"s_add_u32 s90, s30, {u}")
        e("s_and_b32 s90, s90, 15")
        e(f"s_add_u32 m0, s89, {wslot(u)}")
        e("s_mul_i32 s90, s90, 81920")
        for t in ts:
            vm.issue(f"buffer_load_dwordx4 v{WV+t}, s[32:35], s90 offen offset:{t*1024}{cfg.nt_wo} lds", ("w", u))
    e("s_lshr_b32 s18, s19, 1")
    e(f"s_mul_i32 s18, s18, {G - 8192}")
    e("s_add_u32 s18, s18, s89")
    for j in range(4):
        e(f"s_add_u32 s31, s97, {j}")
        e("s_and_b32 s31, s31, 3")
        e(f"s_add_u32 s31, s31, {4-j}")
        e("s_lshl_b32 s31, s31, 10")
        e("s_add_u32 s31, s31, s18")
        e(f"v_add_u32 v{OV+j}, s31, v18")
    e("s_and_b32 s88, s19, 1")
    e("s_lshl_b32 s88, s88, 12")
    e("s_cmp_ge_u32 s19, 2")
    e(f"s_mov_b32 s31, {V1B}")
    e(f"s_cselect_b32 s31, {V0B}, s31")
    e("s_add_u32 s88, s88, s31")
    def cleared(k):
        cmt("the flag lines of all four head groups must have been cleared in this launch")
        lab(f"L_CNT{k}")
        e("v_and_b32 v32, v32, v33")
        e("v_and_b32 v34, v34, v35")
        e("v_and_b32 v32, v32, v34")
        e("s_sub_u32 s31, s31, 1")
        e("v_readfirstlane_b32 s29, v32")
        e(f"s_cbranch_scc1 L_CNTOK{k}")
        e("s_cmp_eq_u32 s29, 1")
        e(f"s_cbranch_scc1 L_CNTOK{k}")
        e("buffer_load_dwordx4 v[32:35], v9, s[48:51], s101 offen sc1")
        e("s_waitcnt vmcnt(0)")
        e(f"s_branch L_CNT{k}")
        lab(f"L_CNTOK{k}")
    e(f"s_mov_b32 s31, {cfg.spin}")
    plans = [tuple(int(x) for x in p.split(",")) for p in cfg.wp.strip().split("/")]
    if plans[0] == plans[1]:
        plans = plans[:1]
    else:
        e("s_cmp_lg_u32 s98, 0")
        e("s_cbranch_scc1 L_WP1")
    for k, (a, b) in enumerate(plans):
        assert a <= 4 and a <= b <= cfg.wpoll
        vm.pend = []
        if k:
            lab("L_WP1")
        for u in range(a):
            wdma(u)
        e(f"s_waitcnt vmcnt({4*a}) lgkmcnt(0)")
        cleared(k)
        e("s_barrier")
        for u in range(a, b):
            wdma(u)
        e("s_barrier")
        if not cfg.sflag:
            e("s_barrier")
        for u in range(b, cfg.wpoll):
            wdma(u)
        if k + 1 < len(plans):
            e("s_branch L_WP2")
    lab("L_WP2")
    nw = cfg.wpoll
    if not cfg.hst: stamp(9)
    def oaddr(u):
        e(f"s_add_u32 s90, s30, {u}")
        if cfg.numa:
            e("s_bfe_u32 s91, s90, 0x10003")
            e("s_bfe_u32 s18, s90, 0x20001")
            e(f"s_mul_i32 s91, s91, {O_H4}")
            e(f"s_mul_i32 s18, s18, {O_H1}")
            e("s_add_u32 s91, s91, s18")
        else:
            e("s_bfe_u32 s91, s90, 0x30001")
            e(f"s_mul_i32 s91, s91, {O_H1}")
        e("s_and_b32 s90, s90, 1")
        e(f"s_mul_i32 s90, s90, {2*G}")
        e(f"s_add_u32 m0, s88, {(u % 3)*8192}")
        e("s_add_u32 s90, s90, s91")
    def oissue(u):
        for j in range(4):
            vm.issue(f"buffer_load_dwordx4 v{OV+j}, s[36:39], s90 offen offset:{j*1024}{cfg.o_ld} lds", ("o", u))
    def odma(u):
        oaddr(u); oissue(u)
    if 1:
        oaddr(0)
        e("s_barrier")
        if not cfg.hst: stamp(10)
        oissue(0)
        oaddr(1)
        wq = [(u, t) for u in range(nw, 16) for t in range(4)]
        R, done = len(wq), 0
        for i in range(16):
            if i + 1 < 16:
                oissue(i + 1)
            if cfg.fine:
                tgt = 0 if i < cfg.wfirst else -(-((i + 1 - cfg.wfirst) * R) // (14 - cfg.wfirst))
                tgt = max(tgt, sum(1 for (u, t) in wq if u <= i + 1))
                tgt = min(tgt, sum(1 for (u, t) in wq if u <= max(6, i + 5)))
            else:
                tgt = sum(1 for (u, t) in wq if u <= i + cfg.wla)
            grp = wq[done:tgt]; done = max(done, tgt)
            for u in sorted(set(g[0] for g in grp)):
                wdma(u, [t for (uu, t) in grp if uu == u])
            if i + 2 < 16:
                oaddr(i + 2)
            vm.need(("o", i), ("w", i))
            e("s_barrier")
            if cfg.hst == 2:
                if i >= 2: stamp(i - 1)
                continue
            if i == 0: stamp(12)
            if i == 4: stamp(13)
            if i == 15: stamp(14)
    e("s_branch L_FIN")
    lab("L_H_NOP2")
    e("s_waitcnt vmcnt(0) lgkmcnt(0)")
    e("s_barrier")
    e("s_barrier")
    if not cfg.sflag:
        e("s_barrier")
    e("s_branch L_FIN")

def compute():
    lab("L_COMPUTE")
    lg = Counter(A, "lgkmcnt", 15)
    ACC = 0
    AB = 96
    BB = [128, 152]
    AA = 176
    BA = 184
    KA = 186
    OA = 190
    KB = [192, 208, 96]
    T0 = 224
    acc = lambda T, j: ACC + (T*3+j)*4
    if cfg.prio:
        e(f"s_setprio {cfg.prio}")
    e(f"v_lshrrev_b32 v{T0}, 4, v0")
    e(f"v_and_b32 v{T0+1}, 15, v0")
    e(f"v_bfe_u32 v{T0+2}, v0, 2, 2")
    e(f"v_and_b32 v{T0+3}, 3, v0")
    ids()
    e("s_add_u32 s29, s99, s97")
    e("s_lshl_b32 s101, s29, 2")
    branch_off(38, 8*2*8192)
    e(f"s_mul_i32 s29, s98, {8*G}")
    e("s_add_u32 s38, s38, s29")
    e(f"s_mul_i32 s29, s97, {2*G}")
    e("s_add_u32 s43, s38, s29")
    e("s_lshr_b32 s29, s94, 3")
    e(f"s_mul_i32 s29, s29, {G}")
    e("s_lshl_b32 s39, s27, 10")
    e("s_add_u32 s39, s39, s29")
    e("s_add_u32 s100, s43, s39")
    e("s_add_u32 s92, s38, s39")
    e(f"v_mov_b32 v{T0+8}, 0")
    e(f"v_mov_b32 v{T0+9}, 1")
    e(f"v_lshlrev_b32 v{T0+10}, 7, v0")
    e(f"s_add_u32 s31, s43, {G}")
    e("s_lshl_b32 s93, s7, 4")
    e("s_add_u32 s93, s93, s94")
    e("s_waitcnt lgkmcnt(0)")
    srd(44, 24, 25, FLAG_OFF, 262144)
    srd(48, 22, 23, 0, 256)
    e("s_cmp_lg_u32 s93, 15")
    e("s_cbranch_scc1 L_NOCLR")
    e("s_mov_b32 exec_lo, 0x1f1f1f1f")
    e("s_mov_b32 exec_hi, 0x1f1f1f1f")
    e(f"buffer_store_dword v{T0+8}, v{T0+10}, s[44:47], s43 offen sc1")
    e(f"buffer_store_dword v{T0+8}, v{T0+10}, s[44:47], s31 offen sc1")
    e("s_mov_b64 exec, -1")
    lab("L_NOCLR")
    if cfg.cpf:
        cmt("pull the rest of the code into this die's L2: workgroup r reads lines 8r..8r+7 (values unused)")
        e("s_cmp_lg_u32 s7, 1")
        e("s_cbranch_scc1 L_NOCPF")
        e("s_getpc_b64 s[90:91]")
        lab("L_PC")
        e(f"s_sub_u32 s90, s90, L_PC-{NAME}_kernel")
        e("s_subb_u32 s91, s91, 0")
        e("s_lshl_b32 s18, s6, 3")
        e(f"v_add_u32 v{T0+11}, s18, v0")
        e(f"v_lshlrev_b32 v{T0+11}, 7, v{T0+11}")
        e(f"v_min_u32 v{T0+11}, L_END-{NAME}_kernel, v{T0+11}")
        e("s_mov_b64 exec, 0xff")
        e(f"global_load_dword v{T0+11}, v{T0+11}, s[90:91]")
        e("s_mov_b64 exec, -1")
        lab("L_NOCPF")
    e(f"v_lshl_add_u32 v{T0+4}, v{T0}, 3, v{T0+2}")
    e(f"v_lshlrev_b32 v{T0+4}, 8, v{T0+4}")
    e(f"v_lshl_add_u32 v{T0+4}, v{T0+3}, 3, v{T0+4}")
    e(f"v_add_u32 v{T0+4}, {XB}, v{T0+4}")
    e(f"v_and_b32 v{T0+5}, 1, v{T0}")
    e(f"v_lshl_add_u32 v{T0+5}, v{T0+5}, 2, v{T0+2}")
    for T in range(8):
        e(f"v_xor_b32 v{T0+6}, {T}, v{T0+5}")
        e(f"v_lshl_add_u32 v{AA+T}, v{T0+6}, 5, v{T0+4}")
    e(f"v_and_b32 v{T0+6}, 6, v{T0+1}")
    e(f"v_xor_b32 v{T0+6}, v{T0+6}, v{T0}")
    e(f"v_lshlrev_b32 v{T0+6}, 4, v{T0+6}")
    e(f"v_lshl_add_u32 v{T0+6}, v{T0+1}, 7, v{T0+6}")
    e(f"s_mul_i32 s29, s7, {48*128}")
    e(f"v_add_u32 v{BA}, s29, v{T0+6}")
    e(f"v_xor_b32 v{BA+1}, 64, v{BA}")
    e("s_lshr_b32 s19, s7, 1")
    e("s_lshl_b32 s29, s19, 12")
    e(f"s_add_u32 s29, s29, {K0B}")
    e(f"v_lshrrev_b32 v{T0+6}, 1, v{T0}")
    e(f"v_xor_b32 v{T0+6}, v{T0+6}, v{T0+1}")
    e(f"v_lshlrev_b32 v{T0+6}, 4, v{T0+6}")
    e(f"v_lshl_add_u32 v{T0+6}, v{T0+1}, 8, v{T0+6}")
    e(f"v_and_b32 v{T0+7}, 1, v{T0}")
    e(f"v_lshl_add_u32 v{T0+6}, v{T0+7}, 3, v{T0+6}")
    e(f"v_add_u32 v{KA}, s29, v{T0+6}")
    VA0 = 191
    e(f"v_lshrrev_b32 v{T0+6}, 2, v0")
    e(f"v_and_b32 v{T0+7}, 7, v{T0+6}")
    e(f"v_lshlrev_b32 v{T0+6}, 8, v{T0+6}")
    e(f"v_lshl_add_u32 v{T0+6}, v{T0+7}, 5, v{T0+6}")
    e(f"v_lshl_add_u32 v{T0+6}, v{T0+3}, 3, v{T0+6}")
    e("s_cmp_eq_u32 s19, 0")
    e(f"s_mov_b32 s29, {V1B}")
    e(f"s_cselect_b32 s29, {V0B}, s29")
    e(f"v_add_u32 v{VA0}, s29, v{T0+6}")
    e(f"v_lshlrev_b32 v{OA}, 4, v0")
    for i in range(96):
        e(f"v_mov_b32 v{ACC+i}, 0")
    branch_off(29, 8*O_H4)
    e("s_lshr_b32 s30, s26, 2")
    e(f"s_mul_i32 s30, s30, {O_H4}")
    e("s_add_u32 s29, s29, s30")
    e("s_and_b32 s30, s26, 3")
    e(f"s_mul_i32 s30, s30, {O_H1}")
    e("s_add_u32 s29, s29, s30")
    e(f"s_add_u32 s29, s29, {O_OFF}")
    srd(32, 24, 25, "s29", O_H1)
    e("s_mul_i32 s29, s28, 12")
    e("s_mul_i32 s30, s7, 3")
    e("s_add_u32 s29, s29, s30")
    for j in range(3):
        e(f"s_add_u32 s30, s29, {j}")
        e("s_lshr_b32 s31, s30, 3")
        e(f"s_mul_i32 s31, s31, {4*G}")
        e("s_and_b32 s30, s30, 7")
        e("s_lshl_b32 s30, s30, 10")
        e(f"s_add_u32 s{40+j}, s30, s31")
    e("s_cmp_lg_u32 s93, 15")
    e("s_cbranch_scc1 L_NOCLR2")
    e("s_waitcnt vmcnt(0)")
    e("s_mov_b64 exec, 1")
    e(f"buffer_store_dword v{T0+9}, v{T0+8}, s[48:51], s101 offen sc1")
    e("s_mov_b64 exec, -1")
    lab("L_NOCLR2")

    def a_rd(T, par):
        r = []
        for s in range(2):
            for h in range(2):
                d = AB + (T & 3)*8 + s*4 + h*2
                r.append((f"ds_read_b64_tr_b16 {vr(d,2)}, v{AA+T} offset:{s*8192 + h*1024}", ("A", T & 3, s)))
        return r
    def b_rd(j, s, par):
        return (f"ds_read_b128 {vr(BB[par]+(j*2+s)*4,4)}, v{BA+s} offset:{j*2048}", ("B", par, j, s))
    def head_reads(par):
        a0 = a_rd(0, par)
        return [a0[0], a0[1], b_rd(0,0,par), a0[2], a0[3], b_rd(0,1,par), b_rd(1,0,par), b_rd(1,1,par),
                b_rd(2,0,par), b_rd(2,1,par)] + a_rd(1, par)
    def k_rd(kt):
        return [(f"ds_read_b64 {vr(KB[kt%3]+4*s+2*h,2)}, v{AA+2*s+h} offset:{kpos(kt) - K0B}", ("K", kt % 3, s))
                for s in range(4) for h in range(2)]
    def cvtq(s):
        r = []
        for j in range(3):
            a0, a1 = acc(2*s, j), acc(2*s+1, j)
            r += [f"v_cvt_pk_bf16_f32 v{a0}, v{a0}, v{a0+1}", f"v_cvt_pk_bf16_f32 v{a0+1}, v{a0+2}, v{a0+3}",
                  f"v_cvt_pk_bf16_f32 v{a0+2}, v{a1}, v{a1+1}", f"v_cvt_pk_bf16_f32 v{a0+3}, v{a1+2}, v{a1+3}"]
        return r
    def emit(x):
        if isinstance(x, tuple):
            lg.issue(x[0], x[1])
        else:
            e(x)
    def qstage(par, last=False, exit_label=None):
        att = {n: [] for n in range(48)}
        for T, n0 in ((2,0),(3,4),(4,8),(5,12),(6,18),(7,24)):
            for k, r in enumerate(a_rd(T, par)):
                att[n0+k].append(r)
        if not last:
            adv = [f"v_add_u32 v{AA+T}, s30, v{AA+T}" for T in range(8)] + [f"v_add_u32 v{BA+s}, s30, v{BA+s}" for s in range(2)]
            for k, x in enumerate(adv):
                att[28 + k//2].append(x)
            att[16] += ["s_mov_b32 s30, s88", "s_mov_b32 s88, s89"]
            att[17] += ["s_mov_b32 s89, s90", "s_mov_b32 s90, s30"]
            if par == 0:
                att[22].append("s_add_u32 s29, s29, 1")
                att[23].append("s_cmp_eq_u32 s29, 5")
            for k, r in enumerate(head_reads(par ^ 1)):
                att[34+k].append(r)
        else:
            for k in range(8):
                att[(16, 17, 22, 23, 22, 23, 28, 29)[k]].append(f"v_xor_b32 v{AA+k}, {32*k}, v{KA}")
            for k, r in enumerate(k_rd(0) + k_rd(1)[:4]):
                att[min(47, cfg.kbar + 1 + k//2)].append(r)
            for s, n0 in ((0,16),(1,28),(2,40)):
                for k, x in enumerate(cvtq(s)):
                    att[min(47, n0 + ((k*2)//3 if s != 1 else k//2))].append(x)
        for n in range(48):
            T, j, s = n//6, (n % 6)//2, n % 2
            if n % 6 == 0:
                lg.need(("A", T & 3, 0), ("A", T & 3, 1), *([("B", par, 0, 0), ("B", par, 0, 1)] if T == 0 else []))
            if T == 0 and n == 2:
                lg.need(*[("B", par, jj, ss) for jj in (1, 2) for ss in (0, 1)])
            e(mfma(acc(T, j), AB + (T & 3)*8 + s*4, BB[par] + (j*2+s)*4))
            for x in att[n]:
                emit(x)
            if cfg.qn and (n * cfg.qn) // 48 != ((n + 1) * cfg.qn) // 48:
                e("s_nop 5")
            if n == (cfg.kbar if last else 33):
                lg.drain()
                e("s_barrier")
        if exit_label:
            e(f"s_cbranch_scc1 {exit_label}")

    e("s_mov_b32 s29, 0")
    e(f"s_mov_b32 s88, {2*SLOT}")
    e(f"s_mov_b32 s89, {(-SLOT) & 0xffffffff}")
    e("s_mov_b32 s90, s89")
    e("s_barrier")
    stamp(1)
    for r in head_reads(0):
        emit(r)
    lab("L_QLOOP")
    qstage(0, exit_label="L_QDONE")
    saved = [set(t) for t in lg.pend]
    qstage(1)
    e("s_branch L_QLOOP")
    lab("L_QDONE")
    lg.pend = saved
    qstage(1, last=True)
    stamp(2)
    QB = lambda s, j: acc(2*s, j)
    sregs = [acc(T, j) for T in (1, 3, 5) for j in range(3)] + [BB[0] + 4*k for k in range(6)] + [acc(7, j) for j in range(3)]
    SS = lambda kt, j: sregs[kt*3 + j]
    M = T0
    vaddr = [f"v_xor_b32 v{AA+T}, {32*T}, v{VA0}" for T in range(8)]
    c = math.log2(math.e) / math.sqrt(128.0)
    cbits = struct.unpack("<I", struct.pack("<f", c))[0]
    ONES = T0 + 12
    for kt in range(6):
        lg.need(*[("K", kt % 3, s) for s in range(4)])
        if kt == 1 and cfg.ksplit:
            e("s_barrier")
        order = [(j, s) for j in range(3) for s in range(4)] if kt else \
                [(j, s) for j in range(3) for s in range(3)] + [(j, 3) for j in range(3)]
        att = {n: [] for n in range(12)}
        rd = k_rd(kt + 2) if kt + 2 < 6 else []
        if kt == 0:
            for k, x in enumerate(k_rd(1)[4:]):
                att[k//2].append(x)
            for k, x in enumerate(cvtq(3)):
                att[2 + k//2].append(x)
            for k, x in enumerate(rd):
                att[8 + k//2].append(x)
        else:
            for k, x in enumerate(rd):
                att[k//2 if not cfg.ksp else k].append(x)
        if kt == 4:
            for k, x in enumerate(vaddr):
                att[(0, 0, 1, 1, 2, 2, 10, 10)[k]].append(x)
        if kt == 5:
            att[0] += [f"s_mov_b32 s30, {cbits:#x}", f"s_mov_b32 s31, {cbits:#x}"]
            for r in range(4):
                att[1 + r//2].append(f"v_mov_b32 v{ONES+r}, 0x3f803f80")
        if kt >= 1:
            for j in range(3):
                b = SS(kt-1, j)
                if kt == 1:
                    att[5 + 2*j] += [f"v_max3_f32 v{M+j}, v{b}, v{b+1}, v{b+2}"]
                    att[6 + 2*j] += [f"v_max_f32 v{M+j}, v{M+j}, v{b+3}"]
                else:
                    o = 6 if (cfg.ksp and kt < 4) else 4
                    att[o + 2*j] += [f"v_max3_f32 v{M+j}, v{M+j}, v{b}, v{b+1}"]
                    att[o + 1 + 2*j] += [f"v_max3_f32 v{M+j}, v{M+j}, v{b+2}, v{b+3}"]
        if kt == 5:
            b = SS(5, 0)
            att[10] += [f"v_max3_f32 v{M}, v{M}, v{b}, v{b+1}"]
            att[11] += [f"v_max3_f32 v{M}, v{M}, v{b+2}, v{b+3}"]
        for n, (j, s) in enumerate(order):
            e(mfma(SS(kt, j), KB[kt % 3] + 4*s, QB(s, j), "0" if s == 0 else None))
            for x in att[n]:
                emit(x)
    b = SS(5, 1)
    e(f"v_mov_b32 v{M+4}, v{M}")
    e(f"v_max3_f32 v{M+1}, v{M+1}, v{b}, v{b+1}")
    e(f"v_max3_f32 v{M+1}, v{M+1}, v{b+2}, v{b+3}")
    e(f"v_permlane32_swap_b32 v{M}, v{M+4}")
    e(f"v_mov_b32 v{M+5}, v{M+1}")
    e(f"v_max_f32 v{M}, v{M}, v{M+4}")
    e(f"v_mov_b32 v{M+4}, v{M}")
    b = SS(5, 2)
    e(f"v_permlane32_swap_b32 v{M+1}, v{M+5}")
    e(f"v_max3_f32 v{M+2}, v{M+2}, v{b}, v{b+1}")
    e(f"v_max3_f32 v{M+2}, v{M+2}, v{b+2}, v{b+3}")
    e(f"v_permlane16_swap_b32 v{M}, v{M+4}")
    e(f"v_mov_b32 v{M+6}, v{M+2}")
    e(f"v_max_f32 v{M+1}, v{M+1}, v{M+5}")
    e(f"v_mov_b32 v{M+5}, v{M+1}")
    e(f"v_permlane32_swap_b32 v{M+2}, v{M+6}")
    e(f"v_max_f32 v{M}, v{M}, v{M+4}")
    e(f"v_permlane16_swap_b32 v{M+1}, v{M+5}")
    e(f"v_max_f32 v{M+2}, v{M+2}, v{M+6}")
    e(f"v_mov_b32 v{M+6}, v{M+2}")
    e(f"v_max_f32 v{M+1}, v{M+1}, v{M+5}")
    e("s_nop 0")
    e(f"v_permlane16_swap_b32 v{M+2}, v{M+6}")
    e(f"v_max_f32 v{M+2}, v{M+2}, v{M+6}")
    NM = T0 + 4
    for j in range(3):
        e(f"v_mul_f32 v{NM+2*j}, s30, v{M+j}")
    stamp(3)
    pregs = [BB[1] + 4*k for k in range(6)] + [AB + 4*k for k in range(3)]
    PB = lambda s, j: pregs[s*3 + j]
    LS = T0 + 16
    pend_m = []
    for s in range(3):
        for j in range(3):
            for kt in (2*s, 2*s+1):
                b = SS(kt, j)
                if cfg.pk:
                    for h in range(2):
                        e(f"v_pk_fma_f32 {vr(b+2*h,2)}, {vr(b+2*h,2)}, s[30:31], {vr(NM+2*j,2)} op_sel_hi:[1,1,0] neg_lo:[0,0,1] neg_hi:[0,0,1]")
                else:
                    for r in range(4):
                        e(f"v_fma_f32 v{b+r}, v{b+r}, s30, -v{NM+2*j}")
            if pend_m:
                e(pend_m.pop())
            for kt in (2*s, 2*s+1):
                b = SS(kt, j)
                for r in range(4):
                    e(f"v_exp_f32 v{b+r}, v{b+r}")
            a0, a1, d = SS(2*s, j), SS(2*s+1, j), PB(s, j)
            e(f"v_cvt_pk_bf16_f32 v{d}, v{a0}, v{a0+1}")
            e(f"v_cvt_pk_bf16_f32 v{d+1}, v{a0+2}, v{a0+3}")
            e(f"v_cvt_pk_bf16_f32 v{d+2}, v{a1}, v{a1+1}")
            e(f"v_cvt_pk_bf16_f32 v{d+3}, v{a1+2}, v{a1+3}")
            pend_m.append(mfma(LS+4*j, ONES, d, "0" if s == 0 else None))
    stamp(4)
    e("s_barrier")
    stamp(5)
    VB = [KB[0], KB[0]+12, AB+12]
    def v_rd(T):
        return [(f"ds_read_b64_tr_b16 {vr(VB[T%3]+4*s+2*h,2)}, v{AA+T} offset:{(32*s+16*h)*256}", ("V", T % 3))
                for s in range(3) for h in range(2)]
    for r in v_rd(0) + v_rd(1):
        emit(r)
    e(pend_m.pop())
    RC = T0 + 4
    OB = lambda s, j: acc(2*s, j)
    def epi(s, pk=False):
        r = []
        for j in range(3):
            a0, a1 = acc(2*s, j), acc(2*s+1, j)
            for a in (a0, a1):
                if cfg.pk2 or pk:
                    for h in range(2):
                        r.append(f"v_pk_mul_f32 {vr(a+2*h,2)}, {vr(a+2*h,2)}, {vr(RC+2*j,2)} op_sel_hi:[1,0]")
                else:
                    r += [f"v_mul_f32 v{a+k}, v{a+k}, v{RC+2*j}" for k in range(4)]
            r += [f"v_cvt_pk_bf16_f32 v{a0}, v{a0}, v{a0+1}", f"v_cvt_pk_bf16_f32 v{a0+1}, v{a0+2}, v{a0+3}",
                  f"v_cvt_pk_bf16_f32 v{a0+2}, v{a1}, v{a1+1}", f"v_cvt_pk_bf16_f32 v{a0+3}, v{a1+2}, v{a1+3}"]
            r.append(f"buffer_store_dwordx4 {vr(a0,4)}, v{OA}, s[32:35], s{40+j} offen{cfg.o_st}")
        if s < 3:
            r.append(f"v_add_u32 v{OA}, {G}, v{OA}")
        return r
    backlog = []
    for T in range(8):
        lg.need(("V", T % 3))
        rd = v_rd(T+2) if T + 2 < 8 else []
        if T == 1:
            backlog += [f"v_rcp_f32 v{RC+2*j}, v{LS+4*j}" for j in range(3)]
        n = 0
        for j in range(3):
            for s in range(3):
                e(mfma(acc(T, j), VB[T % 3] + 4*s, PB(s, j), "0" if s == 0 else None))
                k = 0
                if rd:
                    emit(rd.pop(0)); k += 1
                if T >= 2 and T % 2 == 0 and n == 1:
                    backlog += epi(T//2 - 1)
                while backlog and k < 2:
                    e(backlog.pop(0)); k += 1
                n += 1
    for x in backlog:
        e(x)
    stamp(6)
    e("s_nop 1")
    for x in epi(3, True):
        e(x)
    stamp(7)
    CW = V1B + 16384
    if cfg.sflag:
        e(f"v_mov_b32 v252, {CW}")
        e("ds_read_b32 v253, v252")
        e("s_add_u32 s88, s24, s100")
        e("s_addc_u32 s89, s25, 0")
        e("s_waitcnt lgkmcnt(0)")
    e("s_barrier")
    PA = [64, 96]; PBb = [128, 160]
    QA, QB2 = 192, 204
    T1 = 208
    e(f"v_and_b32 v{T1}, 63, v255")
    e(f"v_lshrrev_b32 v{T1+1}, 2, v{T1}")
    e(f"v_and_b32 v{T1+2}, 7, v{T1+1}")
    e("s_and_b32 s29, s7, 1")
    e("s_lshl_b32 s30, s29, 2")
    e(f"v_xor_b32 v{T1+2}, s30, v{T1+2}")
    e(f"v_lshlrev_b32 v{T1+1}, 8, v{T1+1}")
    e(f"v_lshl_add_u32 v{T1+1}, v{T1+2}, 5, v{T1+1}")
    e(f"v_and_b32 v{T1+2}, 3, v{T1}")
    e(f"v_lshl_add_u32 v{T1+1}, v{T1+2}, 3, v{T1+1}")
    for T in range(4):
        e(f"v_xor_b32 v{QA+T}, {32*T}, v{T1+1}")
        e(f"v_add_u32 v{QA+4+T}, {WSL[3]}, v{QA+T}")
        e(f"v_add_u32 v{QA+8+T}, {WSL[4]}, v{QA+T}")
    e(f"v_lshlrev_b32 v{T1+3}, 4, v{T1}")
    e("s_lshr_b32 s31, s7, 1")
    e("s_lshl_b32 s30, s31, 12")
    e(f"v_add_u32 v{QB2}, s30, v{T1+3}")
    if V1B:
        e(f"v_add_u32 v{QB2}, {V1B}, v{QB2}")
    e(f"v_add_u32 v{QB2+1}, {V0B - V1B}, v{QB2}")
    e(f"v_mov_b32 v{T1+4}, 1")
    e("s_lshl_b32 s30, s7, 7")
    e(f"v_mov_b32 v{T1+5}, s30")
    e("s_waitcnt vmcnt(0)")
    stamp(8)
    if cfg.sflag:
        e("s_mov_b64 exec, 1")
        e(f"ds_add_rtn_u32 v254, v252, v{T1+4}")
        e("s_mov_b32 s10, 1")
        e("s_waitcnt lgkmcnt(0)")
        e("v_sub_u32 v254, v254, v253")
        e("s_mov_b64 exec, -1")
        e("v_readfirstlane_b32 s6, v254")
        e("s_cmp_lg_u32 s6, 3")
        e("s_cbranch_scc1 L_NOFLAG")
        e(f"s_atomic_or s10, s[88:89], {FLAG_OFF}")
    else:
        e("s_barrier")
        e("s_cmp_lg_u32 s7, 0")
        e("s_cbranch_scc1 L_NOFLAG")
        e("s_mov_b64 exec, 1")
        e(f"buffer_store_dword v{T1+4}, v{T1+5}, s[44:47], s100 offen{cfg.fl_st}")
        e("s_mov_b64 exec, -1")
    lab("L_NOFLAG")
    e("s_cmp_eq_u32 s94, 15")
    e("s_cbranch_scc1 L_FIN")
    e("s_mov_b32 s14, s43")
    e("s_lshl_b32 s19, s7, 11")
    e("s_add_u32 s18, s43, s19")
    e("s_add_u32 s48, s24, s18")
    e("s_addc_u32 s49, s25, 0")
    e("s_add_u32 s18, s92, s30")
    e("s_add_u32 s18, s18, 128")
    e("s_add_u32 s8, s24, s18")
    e("s_addc_u32 s9, s25, 0")
    e("s_mul_i32 s18, s98, 15")
    e("s_add_u32 s18, s18, s94")
    e("s_lshr_b32 s19, s18, 3")
    e("s_and_b32 s18, s18, 7")
    e(f"s_mul_i32 s18, s18, {P_T1}")
    e(f"s_mul_i32 s19, s19, {P_T8}")
    e("s_add_u32 s18, s18, s19")
    branch_off(19, 4*P_T8)
    e("s_add_u32 s18, s18, s19")
    e(f"s_mul_i32 s19, s7, {P_W}")
    e("s_add_u32 s18, s18, s19")
    e(f"s_add_u32 s18, s18, {PART_OFF}")
    srd(32, 24, 25, "s18", P_T1)
    for d in range(4):
        e(f"s_add_u32 s18, s97, {d}")
        e("s_and_b32 s18, s18, 3")
        e(f"s_mul_i32 s18, s18, {4*P_W}")
        e(f"s_add_u32 s{36+d}, s18, {max(d-1,0)*2048}")
        if d:
            e(f"s_sub_u32 s18, s97, {d}")
            e("s_and_b32 s18, s18, 3")
            e(f"s_mul_i32 s{10+d}, s18, {2*G}")
    e("s_mul_i32 s18, s98, 3")
    e("s_add_u32 s18, s18, s95")
    e("s_lshl_b32 s18, s18, 3")
    e("s_lshl_b32 s19, s31, 2")
    e("s_add_u32 s18, s18, s19")
    e("s_add_u32 s18, s18, s97")
    e(f"s_mul_i32 s18, s18, {16*2560}")
    e("s_mul_i32 s19, s4, 1280")
    e("s_add_u32 s18, s18, s19")
    e("s_lshl_b32 s19, s96, 8")
    e("s_add_u32 s18, s18, s19")
    e("s_lshl_b32 s19, s29, 7")
    e("s_add_u32 s18, s18, s19")
    e(f"s_sub_u32 s19, {768*2560}, s18")
    srd(40, 20, 21, "s18", "s19")
    e(f"v_and_b32 v{T1+6}, 15, v{T1}")
    e(f"v_mul_u32_u24 v{T1+6}, 2560, v{T1+6}")
    e(f"v_and_b32 v{T1+7}, 48, v{T1}")
    e(f"v_add_u32 v{T1+6}, v{T1+6}, v{T1+7}")
    if 1:
        e("s_cmp_eq_u32 s95, 2")
        e(f"s_cselect_b32 s50, {G}, 0")
        e("s_cmp_eq_u32 s95, 0")
        e(f"s_cselect_b32 s51, 0, {G}")
        e(f"s_mov_b32 s31, {cfg.spin}")
        if cfg.poll == 0:
            lab("L_POLL")
            if cfg.slp:
                e(f"s_sleep {cfg.slp}")
            e("s_load_dword s18, s[48:49], s50 glc")
            e("s_load_dword s19, s[48:49], s50 offset:1024 glc")
            e("s_load_dword s90, s[48:49], s51 glc")
            e("s_load_dword s91, s[48:49], s51 offset:1024 glc")
            e("s_sub_u32 s31, s31, 1")
            e("s_cbranch_scc1 L_GO")
            e("s_waitcnt lgkmcnt(0)")
            e("s_and_b32 s18, s18, s19")
            e("s_and_b32 s90, s90, s91")
            e("s_and_b32 s18, s18, s90")
            e("s_cbranch_scc0 L_POLL")
        elif cfg.poll == 1:
            regs = [(18, 50, 0), (19, 50, 1024), (90, 51, 0), (91, 51, 1024)]
            e("s_mov_b32 s18, 0")
            e("s_mov_b32 s19, 0")
            e("s_cmp_lg_u32 s95, 1")
            e("s_cselect_b32 s90, 1, 0")
            e("s_mov_b32 s91, s90")
            lab("L_POLL")
            for k, (r, o, imm) in enumerate(regs):
                e(f"s_cmp_lg_u32 s{r}, 0")
                e(f"s_cbranch_scc1 L_PS{k}")
                e(f"s_load_dword s{r}, s[48:49], s{o} offset:{imm} glc")
                lab(f"L_PS{k}")
            e("s_sub_u32 s31, s31, 1")
            e("s_cbranch_scc1 L_GO")
            e("s_waitcnt lgkmcnt(0)")
            e("s_and_b32 s5, s18, s19")
            e("s_and_b32 s6, s90, s91")
            e("s_and_b32 s5, s5, s6")
            e("s_cbranch_scc0 L_POLL")
        else:
            e("s_cmp_lg_u32 s7, 1")
            e("s_cbranch_scc1 L_GO")
            e(f"v_and_b32 v{T1+8}, 7, v{T1}")
            e(f"v_lshlrev_b32 v{T1+8}, 10, v{T1+8}")
            e(f"v_bfe_u32 v{T1+9}, v{T1}, 3, 1")
            e(f"v_mul_u32_u24 v{T1+9}, {G}, v{T1+9}")
            e(f"v_add_u32 v{T1+8}, v{T1+8}, v{T1+9}")
            e("s_movk_i32 s90, 0xff")
            e("s_mov_b32 s91, 0")
            e("s_cmp_eq_u32 s95, 1")
            e("s_cselect_b32 s90, 0xffff, s90")
            e("s_cmp_eq_u32 s95, 2")
            e("s_cselect_b32 s90, 0xff00, s90")
            e("s_mov_b64 exec, s[90:91]")
            lab("L_POLL")
            e(f"buffer_load_dword v{T1+9}, v{T1+8}, s[44:47], s14 offen{cfg.fl_ld}")
            e("s_waitcnt vmcnt(0)")
            e(f"v_cmp_ne_u32 vcc, 1, v{T1+9}")
            e("s_sub_u32 s31, s31, 1")
            e("s_cbranch_scc1 L_GO0")
            e("s_and_b64 exec, exec, vcc")
            e("s_cbranch_scc1 L_POLL")
            lab("L_GO0")
            e("s_mov_b64 exec, -1")
        lab("L_GO")
        e("s_barrier")
    pacc = lambda T, j: (T*4+j)*4
    def p_reads(u):
        b = u & 1
        k = u % 7
        areg = QA + 4*(0 if k < 3 else 1 if k == 3 else 2)
        aoff = WSL[k] - (0 if k < 3 else WSL[3] if k == 3 else WSL[4])
        def a(T):
            return [(f"ds_read_b64_tr_b16 {vr(PA[b]+T*8+s*4+h*2,2)}, v{areg+T} offset:{aoff + (32*s+16*h)*256}", ("PA", b, T))
                    for s in range(2) for h in range(2)]
        def bb(j):
            return [(f"ds_read_b128 {vr(PBb[b]+(j*2+s)*4,4)}, v{QB2+s} offset:{(u%3)*8192 + j*1024}", ("PB", b, j)) for s in range(2)]
        return a(0) + bb(0) + bb(1) + bb(2) + bb(3) + a(1) + a(2) + a(3)
    lg.pend = []
    e("s_barrier")
    stamp(9)
    for r in p_reads(0):
        emit(r)
    def pm(u, T, j, s):
        return mfma(pacc(T, j), PA[u & 1]+T*8+s*4, PBb[u & 1]+(j*2+s)*4, "0" if (u == 0 and s == 0) else None)
    def send(d):
        r = []
        for Tp in range(2):
            a0, a1 = pacc(2*Tp, d), pacc(2*Tp+1, d)
            r += [f"v_cvt_pk_bf16_f32 v{a0}, v{a0}, v{a0+1}", f"v_cvt_pk_bf16_f32 v{a0+1}, v{a0+2}, v{a0+3}",
                  f"v_cvt_pk_bf16_f32 v{a0+2}, v{a1}, v{a1+1}", f"v_cvt_pk_bf16_f32 v{a0+3}, v{a1+2}, v{a1+3}",
                  f"buffer_store_dwordx4 {vr(a0,4)}, v{T1+3}, s[32:35], s{36+d} offen offset:{Tp*1024}{cfg.p_st}"]
        return r
    for u in range(16 if not cfg.late0 else 15):
        b = u & 1
        rd = p_reads(u+1) if u < 15 else []
        js = (1, 2, 3) if (cfg.late0 and u == 14) else (0, 1, 2, 3)
        seq = [(T, j, s) for T in range(4) for j in js for s in range(2)]
        for n, (T, j, s) in enumerate(seq):
            if u == 0:
                lg.need(("PA", b, T), ("PB", b, j))
            elif n == 0:
                lg.need(("PA", b, 0), *[("PB", b, jj) for jj in range(4)])
            e(pm(u, T, j, s))
            if n == 5:
                lg.drain()
                if u < 15:
                    e("s_barrier")
            if n >= 6 and rd:
                emit(rd.pop(0))
                if len(js) == 3 and n < 14:
                    emit(rd.pop(0))
            if cfg.pn and (n * cfg.pn) // 32 != ((n + 1) * cfg.pn) // 32:
                e("s_nop 5")
    if cfg.late0:
        seq = [(15, T, j, s) for j in (1, 2, 3) for T in range(4) for s in range(2)] + \
              [(uu, T, 0, s) for T in range(4) for uu in (14, 15) for s in range(2)]
        fill = []
        for n, (uu, T, j, s) in enumerate(seq):
            lg.need(("PA", 1, T), ("PB", 1, j))
            e(pm(uu, T, j, s))
            if n in (9, 17, 25):
                fill += send(n // 8)
            for _ in range(2):
                if fill:
                    e(fill.pop(0))
        assert not fill
        stamp(10)
    else:
        stamp(10)
        e("s_nop 1")
        for d in (1, 2, 3):
            for x in send(d):
                e(x)
    e(f"s_add_u32 s37, s36, 4096")
    e("s_waitcnt vmcnt(0)")
    stamp(11)
    e("s_mov_b64 exec, 1")
    e(f"buffer_store_dword v{T1+4}, v{T1+5}, s[44:47], s100 offen offset:128{cfg.fl_st}")
    e("s_mov_b64 exec, -1")
    RB = 64
    for d in (1, 2, 3):
        e(f"s_load_dword s{14+d}, s[8:9], s{10+d} glc")
    e("s_waitcnt lgkmcnt(0)")
    for d in (1, 2, 3):
        e(f"s_mov_b32 s31, {cfg.spin}")
        lab(f"L_P3W{d}")
        e(f"s_cmp_lg_u32 s{14+d}, 0")
        e(f"s_cbranch_scc1 L_P3G{d}")
        for dd in range(d, 4):
            e(f"s_load_dword s{14+dd}, s[8:9], s{10+dd} glc")
        e("s_sub_u32 s31, s31, 1")
        e("s_waitcnt lgkmcnt(0)")
        e(f"s_cbranch_scc0 L_P3W{d}")
        lab(f"L_P3G{d}")
        for f in (2*d - 2, 2*d - 1):
            e(f"buffer_load_dwordx4 {vr(RB+4*f,4)}, v{T1+3}, s[32:35], s{36 + f//4} offen offset:{(f%4)*1024}{cfg.p_ld}")
    stamp(12)
    e("s_mov_b32 s30, 0xffff0000")
    for f in range(6):
        e(f"s_waitcnt vmcnt({5-f})")
        Tp = f & 1
        for k in range(4):
            a = pacc(2*Tp + k//2, 0) + 2*(k & 1)
            x = RB + 4*f + k
            e(f"v_lshlrev_b32 v{T1+8}, 16, v{x}")
            e(f"v_and_b32 v{x}, s30, v{x}")
            e(f"v_add_f32 v{a}, v{a}, v{T1+8}")
            e(f"v_add_f32 v{a+1}, v{a+1}, v{x}")
    stamp(13)
    for Tp in range(2):
        a0, a1 = pacc(2*Tp, 0), pacc(2*Tp+1, 0)
        e(f"v_cvt_pk_bf16_f32 v{a0}, v{a0}, v{a0+1}")
        e(f"v_cvt_pk_bf16_f32 v{a0+1}, v{a0+2}, v{a0+3}")
        e(f"v_cvt_pk_bf16_f32 v{a0+2}, v{a1}, v{a1+1}")
        e(f"v_cvt_pk_bf16_f32 v{a0+3}, v{a1+2}, v{a1+3}")
    for op in ("v_permlane32_swap_b32", "v_permlane16_swap_b32"):
        e("s_nop 0")
        for Tp in range(2):
            a0 = pacc(2*Tp, 0)
            e(f"{op} v{a0}, v{a0+2}")
            e(f"{op} v{a0+1}, v{a0+3}")
    for Tp in range(2):
        e(f"buffer_store_dwordx4 {vr(pacc(2*Tp,0),4)}, v{T1+6}, s[40:43], 0 offen offset:{Tp*64}{cfg.out_st}")
    stamp(14)
    lab("L_FIN")
    if cfg.stamps:
        e("s_waitcnt vmcnt(0)")
        stamp(15)
        stamp_flush()
    lab("L_END")
    e("s_endpgm")

def kd(name):
    return f""".amdhsa_kernel {name}
  .amdhsa_next_free_vgpr 256
  .amdhsa_next_free_sgpr 102
  .amdhsa_accum_offset 256
  .amdhsa_group_segment_fixed_size 0
  .amdhsa_kernarg_size 104
  .amdhsa_user_sgpr_count 2
  .amdhsa_user_sgpr_kernarg_segment_ptr 1
  .amdhsa_system_sgpr_workgroup_id_x 1
.end_amdhsa_kernel
"""

prologue(); helper(); compute()
probs = check_hazards(A.L)
for p in probs:
    print("HAZARD:", p, file=sys.stderr)
K = NAME + "_kernel"
if cfg.diag:
    from diag import gen_diag
    hdr = (f"; diagnostic build\n; @launch kernel={K} grid=(256,1,1) block=(512,1,1) lds=163840\n"
           "; @launch kernel=d_kernel grid=(1,1,1) block=(256,1,1) lds=256\n")
else:
    hdr = ("; fused: Q projection + attention + output projection, both branches, one launch\n"
           "; @launch grid=(256,1,1) block=(512,1,1) lds=163840\n")
out = hdr + '.amdgcn_target "amdgcn-amd-amdhsa--gfx950"\n.text\n'
out += f".globl {K}\n.p2align 8\n.type {K},@function\n" + A.text()
if cfg.diag:
    out += ".globl d_kernel\n.p2align 8\n.type d_kernel,@function\n" + "\n".join(gen_diag(cfg.diag.strip(), STAMP_OFF)) + "\n"
out += '.section .rodata,"a"\n.p2align 6\n' + kd(K)
if cfg.diag:
    out += ".p2align 6\n" + kd("d_kernel")
open(sys.argv[1], "w").write(out)
sys.exit(1 if probs else 0)
```

```python
import sys, os, math, struct
sys.path.insert(0, os.path.dirname(os.path.abspath(__file__)))
from asmlib import *

NAME = "concat_heads__gqa_block_cached__mha_block_cached__near_ridge"

class Cfg:
    nt_x = ""; nt_wq = ""; nt_k = ""; nt_v = ""; nt_wo = ""
    o_st = " sc1"; o_ld = " sc1"; out_st = " sc1"
    rot = 3
    sched = " S0 S1/S2/S3/S4/S5/S6/S7/S8/S9/K012/K345 V0//V1"
    sched2 = " S0 S1/S2/K01234 Va S3/S4/S5/S6/S7/S8/S9/K5/V1//W0"
    selbit = 1
    wpre = 2
    wmid = 2
    wpoll = 7
    wla = 2
    prog = 0
    rtt = 16
    rnt = 0
    fine = 1
    wfirst = 2
    ntsh = 0
    split = 2
    p_st = " sc1"; p_ld = " sc1"
    slp = 0
    swap = 1
    common = 0
    w0late = 1
    pbar = 5
    ptest = -1
    burn = 0
    bduty = 0
    scheds = ""
    smap = ""
    alt = 1
    poll = 1
    wp = " 2,2/2,2"
    rtab = " 0,2,5,8,10,13"
    sflag = 0
    numa = 0
    p3s = 1
    late0 = 1
    kbar = 33
    ksplit = 0
    qn = 0
    pn = 0
    ksp = 1
    cpf = 2
    hst = 0
    touch = 0
    slp3 = 0
    fl_ld = " sc1"; fl_st = " sc1"
    prio = 1
    pk = 1
    pk2 = 0
    stamps = 0
    spin = 1000000
    diag = ""
cfg = Cfg()
for a in sys.argv[2:]:
    k, v = a.split("=")
    old = getattr(cfg, k)
    setattr(cfg, k, int(v) if isinstance(old, int) else ((" " + v.replace("+", " ")) if v else ""))

A = Asm()
e, lab, cmt = A.e, A.lab, A.cmt

STAMP_OFF = 64 << 20
G = 16384 if cfg.numa else 8192
FLAG_OFF = 0
O_OFF = 4 << 20
PART_OFF = 40 << 20
if cfg.numa:
    O_H1, O_H4 = 512 << 10, 4 << 20
    P_W, P_T1, P_T8 = 16384, 256 << 10, 4 << 20
else:
    O_H1, O_H4 = 196608, 4*196608
    P_W, P_T1, P_T8 = 6144, 16*6144, 8*16*6144
def branch_off(dst, plain):
    if cfg.numa:
        e(f"s_xor_b32 s{dst}, s4, {cfg.numa - 1}")
        e(f"s_lshl_b32 s{dst}, s{dst}, 13")
    else:
        e(f"s_mul_i32 s{dst}, s4, {plain}")
SLOT = 40960
XB = 24576
PHYS = [0, 2*SLOT, SLOT]
V1B, V0B, K0B = 49152, 90112, 114688
WSL = [0, 16384, 32768, 73728, 114688, 131072, 147456]
kpos = lambda kt: K0B + ((kt + 1) % 6) * 8192

def stamp(i):
    if cfg.ptest == 99 and 1 <= i <= 5: return
    if cfg.stamps == 3:
        sub = [0, 1, 2, 4, 7, 9, 10, 15]
        if i in sub:
            k = sub.index(i)
            e(f"s_memrealtime s[{52+4*k}:{53+4*k}]")
            e(f"s_memtime s[{54+4*k}:{55+4*k}]")
    elif cfg.stamps:
        e(f"{'s_memtime' if cfg.stamps == 2 else 's_memrealtime'} s[{52+2*i}:{53+2*i}]")
def stamp_flush():
    if not cfg.stamps:
        return
    e(f"s_add_u32 s84, s24, {STAMP_OFF}")
    e("s_addc_u32 s85, s25, 0")
    e("s_mov_b32 s86, 0x100000")
    e("s_mov_b32 s87, 0x20000")
    e("s_lshl_b32 s92, s2, 3")
    e("s_add_u32 s92, s92, s7")
    e("s_lshl_b32 s92, s92, 6")
    e("s_waitcnt lgkmcnt(0)")
    e("v_mbcnt_lo_u32_b32 v251, -1, 0")
    e("v_lshlrev_b32 v251, 2, v251")
    for i in range(16):
        e(f"v_writelane_b32 v250, s{52+2*i}, {i}")
    e("s_mov_b64 exec, 0xffff")
    e(f"buffer_store_dword v250, v251, s[84:87], s92 offen sc1")

def srd(d, lo, hi, off, size):
    e(f"s_add_u32 s{d}, s{lo}, {off}")
    e(f"s_addc_u32 s{d+1}, s{hi}, 0")
    e(f"s_mov_b32 s{d+2}, {size}")
    e(f"s_mov_b32 s{d+3}, 0x20000")

def prologue():
    lab(NAME + "_kernel")
    e("s_cmp_ge_u32 s2, 256")
    e("s_cbranch_scc1 L_END")
    e("s_and_b32 s3, s2, 7")
    e("s_lshr_b32 s4, s3, 2")
    e("s_mul_i32 s5, s4, 40")
    e("s_load_dwordx8 s[8:15], s[0:1], s5")
    e("s_load_dwordx2 s[16:17], s[0:1], s5 offset:32")
    e("s_load_dwordx4 s[20:23], s[0:1], 80")
    e("s_load_dwordx2 s[24:25], s[0:1], 96")
    if cfg.stamps:
        for i in range(1, 16):
            e(f"s_mov_b32 s{52+2*i}, 0")
    stamp(0)
    if cfg.cpf >= 2:
        cmt("pull the code into this die's L2: workgroup r reads lines 8r..8r+7 (values unused)")
        e("s_getpc_b64 s[90:91]")
        lab("L_PC")
        e("s_and_b32 s18, s2, 0xf8")
        e(f"v_xor_b32 v1, {256 if cfg.cpf == 2 else 0}, v0")
        e("v_add_u32 v235, s18, v1")
        e("v_lshlrev_b32 v235, 7, v235")
        e("v_min_u32 v235, L_END-L_PC, v235")
        e("v_cmp_gt_u32 vcc, 8, v1")
        e("s_and_saveexec_b64 s[18:19], vcc")
        e("s_cbranch_execz L_NOCPF")
        e("global_load_dword v235, v235, s[90:91]")
        lab("L_NOCPF")
        e("s_mov_b64 exec, -1")
    e("v_lshrrev_b32 v1, 6, v0")
    if cfg.swap:
        e("v_xor_b32 v1, 4, v1")
    e("s_lshr_b32 s6, s2, 3")
    e("v_readfirstlane_b32 s7, v1")
    e("v_mov_b32 v255, v0")
    e("v_and_b32 v0, 63, v0")
    if cfg.alt:
        e("s_bfe_u32 s26, s6, 0x10002")
        e("s_lshr_b32 s27, s6, 3")
        e("s_and_b32 s6, s6, 3")
        e("s_lshl_b32 s27, s27, 2")
        e("s_lshl_b32 s26, s26, 4")
        e("s_or_b32 s6, s6, s27")
        e("s_or_b32 s6, s6, s26")
        if cfg.stamps:
            e("s_lshl_b32 s2, s6, 3")
            e("s_or_b32 s2, s2, s3")
    e("s_and_b32 s26, s3, 3")
    e("s_lshl_b32 s26, s26, 3")
    e("s_and_b32 s27, s6, 7")
    e("s_add_u32 s26, s26, s27")
    e("s_lshr_b32 s28, s6, 3")
    e("s_cmp_lt_u32 s7, 4")
    e("s_cbranch_scc1 L_COMPUTE")

def helper():
    cmt("---------------- helper waves 4..7: stream x / wq, then K, V")
    vm = Counter(A, "vmcnt", 63)
    if cfg.hst == 3: stamp(1)
    e("s_sub_u32 s19, s7, 4")
    if cfg.rot == 0:
        e("s_mov_b32 s30, 0")
    elif cfg.rot == 1:
        e("s_add_u32 s30, s27, s28"); e("s_and_b32 s30, s30, 1"); e("s_mul_i32 s30, s30, 5")
    elif cfg.rot == 2:
        e("s_lshl_b32 s30, s28, 1"); e("s_add_u32 s30, s30, s27"); e("s_and_b32 s30, s30, 7")
        e("s_mul_i32 s30, s30, 5"); e("s_lshr_b32 s30, s30, 2")
    elif cfg.rot == 3:
        e("s_add_u32 s30, s27, s28"); e("s_and_b32 s30, s30, 3"); e("s_mul_i32 s30, s30, 5"); e("s_lshr_b32 s30, s30, 1")
    elif cfg.rot in (4, 5, 6):
        base = {4: (0, 5, 3, 8), 5: (0, 5, 2, 7), 6: (0, 5, 3, 8)}[cfg.rot]
        e(f"s_lshl_b32 s29, s28, 2")
        e(f"s_lshr_b32 s30, {sum(b << (4*i) for i, b in enumerate(base)):#x}, s29")
        e("s_and_b32 s30, s30, 15")
        e("s_lshl_b32 s29, s27, 2")
        offs = [2*(h % 5) for h in range(8)] if cfg.rot != 6 else [0, 1, 2, 4, 5, 6, 7, 9]
        e(f"s_lshr_b32 s29, {sum(b << (4*i) for i, b in enumerate(offs)):#x}, s29")
        e("s_and_b32 s29, s29, 15")
        e("s_add_u32 s30, s30, s29")
        e("s_cmp_ge_u32 s30, 10")
        e("s_cselect_b32 s29, 10, 0")
        e("s_sub_u32 s30, s30, s29")
    XV, WV = 10, 14
    e("v_lshrrev_b32 v1, 4, v0")
    e("v_and_b32 v2, 15, v0")
    e("v_lshlrev_b32 v3, 1, v1")
    e("v_xor_b32 v4, v2, v3")
    e("v_lshlrev_b32 v4, 4, v4")
    e("s_lshl_b32 s29, s19, 4")
    e("v_add_u32 v5, s29, v1")
    e(f"v_lshl_add_u32 v{WV}, v5, 13, v4")
    e(f"v_add_u32 v{WV+1}, {32768-1024}, v{WV}")
    e(f"v_xor_b32 v5, 128, v{WV}")
    e(f"v_add_u32 v{WV+2}, {2*(32768-1024)}, v5")
    e(f"v_add_u32 v{WV+3}, {3*(32768-1024)}, v5")
    e("s_lshl_b32 s89, s19, 12")
    e("s_lshl_b32 s31, s26, 8")
    e(f"s_sub_u32 s38, {640*8192}, s31")
    e("s_mov_b32 s39, 0x20000")
    def x_setup():
        e("v_lshrrev_b32 v5, 3, v0")
        e("v_and_b32 v6, 7, v0")
        e("v_and_b32 v7, 6, v5")
        e("v_xor_b32 v6, v6, v7")
        e("s_mul_i32 s29, s19, 48")
        e("v_add_u32 v5, s29, v5")
        e("v_mul_u32_u24 v5, 1280, v5")
        e(f"v_lshl_add_u32 v{XV}, v6, 4, v5")
        e(f"s_mul_i32 s29, s28, {192*1280}")
        for t in range(1, 4):
            e(f"v_add_u32 v{XV+t}, {t*(10240-1024)}, v{XV}")
        e(f"s_mul_i32 s88, s19, {48*128}")
        srd(32, 8, 9, "s29", 192*1280)
    def wq_srd():
        if cfg.hst == 3: stamp(2)
        e("s_waitcnt lgkmcnt(0)")
        if cfg.hst == 3: stamp(3)
        e("s_add_u32 s36, s14, s31")
        e("s_addc_u32 s37, s15, 0")
    if not cfg.common:
        wq_srd(); x_setup()

    def stage(i):
        slot = PHYS[i % 3]
        e(f"s_add_u32 m0, s89, {slot + XB}")
        e("s_lshl_b32 s90, s30, 19")
        if i == 0 and cfg.common:
            wq_srd()
        for t in range(4):
            vm.issue(f"buffer_load_dwordx4 v{WV+t}, s[36:39], s90 offen offset:{t*1024}{cfg.nt_wq} lds", ("st", i))
        if i == 0 and cfg.common:
            x_setup()
        e(f"s_add_u32 m0, s88, {slot}")
        e("s_lshl_b32 s91, s30, 7")
        for t in range(4):
            vm.issue(f"buffer_load_dwordx4 v{XV+t}, s[32:35], s91 offen offset:{t*1024}{cfg.nt_x} lds", ("st", i))
        e("s_add_u32 m0, m0, 4096")
        e("s_add_u32 s91, s91, 40960")
        for t in range(2):
            vm.issue(f"buffer_load_dwordx4 v{XV+t}, s[32:35], s91 offen offset:{t*1024}{cfg.nt_x} lds", ("st", i))
        if cfg.hst == 3 and i < 2: stamp(4 + i)
        if i < 9:
            e("s_add_u32 s30, s30, 1")
            e("s_cmp_eq_u32 s30, 10")
            e("s_cselect_b32 s30, 0, s30")

    def kv_setup():
        e("s_lshl_b32 s29, s28, 6")
        e("s_add_u32 s29, s29, s26")
        e("s_mul_i32 s29, s29, 24576")
        srd(44, 12, 13, "s29", 33*24576)
        srd(40, 10, 11, "s29", 33*24576)
        e("v_lshlrev_b32 v18, 4, v0")
        e("s_and_b32 s31, s19, 1")
        e("s_lshl_b32 s31, s31, 7")
        e("v_xor_b32 v19, s31, v4")
        e("v_lshl_add_u32 v19, v1, 8, v19")
        e("s_lshl_b32 s93, s19, 10")
        e("v_add_u32 v19, s93, v19")
        e("s_lshl_b32 s31, s19, 2")
        e("v_add_u32 v5, s31, v1")
        e("v_xor_b32 v6, v2, v5")
        e("v_lshlrev_b32 v6, 4, v6")
        e("v_lshl_add_u32 v20, v5, 8, v6")
    def kload(kts):
        for kt in kts:
            for b in range(2):
                e(f"s_add_u32 m0, s93, {kpos(kt) + b*4096}")
                e(f"s_mov_b32 s90, {b*32*24576 + kt*4096}")
                vm.issue(f"buffer_load_dwordx4 v20, s[40:43], s90 offen{cfg.nt_k} lds", "k", "ka" if kt < 3 else "kb")
    def vload(b):
        for n in range(6):
            e(f"s_add_u32 m0, s93, {(V1B if b else V0B) + n*4096}")
            e(f"s_mov_b32 s90, {b*32*24576 + n*4096}")
            vm.issue(f"buffer_load_dwordx4 v19, s[44:47], s90 offen{cfg.nt_v} lds", "v")

    VR = 80
    def vreg(b):
        for n in range(6):
            e(f"s_mov_b32 s90, {b*32*24576 + n*4096}")
            vm.issue(f"buffer_load_dwordx4 {vr(VR+24*b+4*n,4)}, v19, s[44:47], s90 offen{cfg.nt_v}", ("vr", b))
    def vwrite(b):
        vm.need(("vr", b))
        e(f"s_add_u32 s90, s93, {V1B if b else V0B}")
        e("v_add_u32 v22, s90, v18")
        for n in range(6):
            e(f"ds_write_b128 v22, {vr(VR+24*b+4*n,4)} offset:{n*4096}")
    if cfg.scheds:
        scs = cfg.scheds.strip().split("|"); smap = cfg.smap.strip()
        smap = smap * (32 // len(smap)) if len(smap) < 32 and len(smap) != 4 else smap
        if len(smap) == 4: smap = "".join(c * 8 for c in smap)
    else:
        scs = [cfg.sched, cfg.sched2]; smap = "0"*16 + "1"*16
    env = locals()
    pre = []
    while len(pre) < cfg.common and all(len(sc.strip().split("/")[0].split()) > len(pre) for sc in scs) and \
            len(set(sc.strip().split("/")[0].split()[len(pre)] for sc in scs)) == 1 and scs[0].split()[len(pre)][0] == "S":
        pre.append(scs[0].strip().split("/")[0].split()[len(pre)])
    for tk in pre:
        stage(int(tk[1:]))
    assert len(pre) == cfg.common
    if len(pre) > 1:
        kv_setup()
    e("s_mov_b32 s100, 0")
    global VW
    VW = vwrite
    env["npre"] = len(pre)
    pend0 = [set(t) for t in vm.pend]
    for k, sc in enumerate(scs):
        if k + 1 < len(scs):
            mask = sum(1 << r for r in range(32) if int(smap[r]) == k)
            e(f"s_bitcmp1_b32 {mask:#x}, s6")
            e(f"s_cbranch_scc0 L_H{k+1}")
        vm.pend = [set(t) for t in pend0]
        run_sched(sc, env)
        if k + 1 < len(scs):
            e("s_branch L_HX")
            lab(f"L_H{k+1}")
    lab("L_HX")
    helper_tail()

PT = [0]
def probe_setup():
    e("s_lshl_b32 s86, s7, 8")
    e("s_lshr_b32 s87, s6, 4")
    e("s_lshl_b32 s87, s87, 11")
    e("s_add_u32 s86, s86, s87")
    e("s_lshl_b32 s87, s3, 16")
    e("s_add_u32 s86, s86, s87")
    e(f"s_add_u32 s86, s86, {60 << 20}")
    e("s_add_u32 s84, s24, s86")
    e("s_addc_u32 s85, s25, 0")
def probe_warm():
    e("s_load_dword s83, s[84:85], 0 glc")
    e("s_load_dword s83, s[84:85], 8192 glc")
def probe(n):
    PT[0] += 1
    if n == 0:
        probe_setup()
    e("s_and_b32 s87, s6, 15")
    e("s_cmp_lg_u32 s87, 15")
    e(f"s_cbranch_scc1 L_PT{PT[0]}")
    if n == 0:
        probe_warm()
    else:
        e("s_waitcnt lgkmcnt(0)")
        e("s_memtime s[54:55]")
        for k in range(n):
            e("s_waitcnt lgkmcnt(0)")
            e(f"s_load_dword s83, s[84:85], {(k & 1)*8192} glc")
            e("s_waitcnt lgkmcnt(0)")
            e(f"s_memtime s[{56+2*k}:{57+2*k}]")
    lab(f"L_PT{PT[0]}")

def run_sched(sched, env):
    vm, kv_setup, stage, kload, vload, vreg, vwrite = (env[k] for k in ("vm", "kv_setup", "stage", "kload", "vload", "vreg", "vwrite"))
    iv = [x.split() for x in sched.strip().split("/")]
    assert len(iv) == 13
    setup_done = env["npre"] > 1
    iv[0] = iv[0][env["npre"]:]
    for i, toks in enumerate(iv):
        for tk in toks:
            if tk[0] != "S" and not setup_done:
                kv_setup(); setup_done = True
            if tk[0] == "S":
                n = int(tk[1:])
                assert n <= max(2, i + 1)
                stage(n)
            elif tk[0] == "K":
                assert i <= (11 if (cfg.ksplit and int(tk[1]) >= 3) else 10) and ("5" not in tk or i >= 9)
                kload([int(c) for c in tk[1:]])
            elif tk == "V0":
                assert i >= 9; vload(0)
            elif tk == "V1":
                assert i >= 10; vload(1)
            elif tk == "Va": vreg(0)
            elif tk == "Vb": vreg(1)
            elif tk == "W0":
                assert i >= 9
                if cfg.w0late and i == 12:
                    vm.need(("vr", 0))
                    e("s_mov_b32 s100, 1")
                else:
                    vwrite(0)
            elif tk == "W1":
                assert i >= 10; vwrite(1)
            else:
                assert False, tk
        if i == 0 and not setup_done:
            kv_setup(); setup_done = True
        if i == cfg.ptest - 1: probe(0)
        if i == cfg.ptest: probe(4)
        if i < 10:
            vm.need(("st", i))
        if i == 10:
            vm.need("ka" if cfg.ksplit else "k")
        if i == 11 and cfg.ksplit:
            vm.need("kb")
        if i < 11 or (i == 11 and cfg.ksplit):
            e("s_barrier")
        if cfg.hst == 3 and i < 3: stamp(6 + i)
        if cfg.hst >= 2 or cfg.ptest >= 0: continue
        if i < (10 if cfg.hst else 8): stamp(1 + i)
        if i == 10: stamp(11)

def ids():
    cmt("s94 = m (15: no tile), s95 = tt, s96 = nt, s97 = hg, s98 = set, s99 = (branch*2+set)*4")
    e("s_and_b32 s94, s28, 1")
    e("s_lshl_b32 s94, s94, 3")
    e("s_add_u32 s94, s94, s27")
    e("s_mul_i32 s95, s94, 52")
    e("s_lshr_b32 s95, s95, 8")
    e("s_mul_i32 s96, s95, 5")
    e("s_sub_u32 s96, s94, s96")
    e("s_and_b32 s97, s3, 3")
    e("s_lshr_b32 s98, s28, 1")
    if cfg.ntsh:
        e(f"s_mul_i32 s99, s98, {cfg.ntsh}")
        e("s_add_u32 s96, s96, s99")
        e("s_cmp_ge_u32 s96, 5")
        e("s_cselect_b32 s99, 5, 0")
        e("s_sub_u32 s96, s96, s99")
    e("s_lshl_b32 s99, s4, 1")
    e("s_add_u32 s99, s99, s98")
    e("s_lshl_b32 s99, s99, 2")

def wslot(u):
    return WSL[u % 7]

def late_vw(k):
    if cfg.w0late:
        e("s_cmp_eq_u32 s100, 0")
        e(f"s_cbranch_scc1 L_NOVW{k}")
        VW(0)
        lab(f"L_NOVW{k}")

def helper_tail():
    vm = Counter(A, "vmcnt", 63)
    ids()
    srd(48, 22, 23, 0, 256)
    e("s_lshl_b32 s101, s99, 2")
    e("v_mov_b32 v9, 0")
    e("s_cmp_eq_u32 s94, 15")
    e("s_cbranch_scc1 L_H_NOP2")
    e("buffer_load_dwordx4 v[32:35], v9, s[48:51], s101 offen sc1")
    WV, OV = 24, 28
    e("s_mul_i32 s29, s98, 3")
    e("s_add_u32 s29, s29, s95")
    e("s_lshl_b32 s31, s29, 2")
    e(f"s_lshr_b32 s30, {sum(int(b) << (4*i) for i, b in enumerate(cfg.rtab.split(','))):#x}, s31")
    e(f"s_mul_i32 s18, s97, {1024*1280}")
    e("s_lshl_b32 s31, s96, 8")
    e("s_add_u32 s18, s18, s31")
    e(f"s_sub_u32 s31, {4096*1280}, s18")
    srd(32, 16, 17, "s18", "s31")
    branch_off(18, 8*O_H4)
    e(f"s_mul_i32 s31, s97, {2*O_H4}")
    e("s_add_u32 s18, s18, s31")
    e(f"s_mul_i32 s31, s29, {4*G}")
    e("s_add_u32 s18, s18, s31")
    e(f"s_add_u32 s18, s18, {O_OFF - 4096}")
    srd(36, 24, 25, "s18", 2*O_H4)
    e("s_lshl_b32 s31, s19, 4")
    e("v_add_u32 v5, s31, v1")
    e("v_mul_u32_u24 v5, 1280, v5")
    e(f"v_add_u32 v{WV}, v5, v4")
    e("v_xor_b32 v6, 128, v4")
    e("v_add_u32 v6, v5, v6")
    e(f"v_add_u32 v{WV+1}, {4*1280-1024}, v6")
    e(f"v_add_u32 v{WV+2}, {2*(4*1280-1024)}, v{WV}")
    e(f"v_add_u32 v{WV+3}, {3*(4*1280-1024)}, v6")
    def wdma(u, ts=range(4)):
        e(f"s_add_u32 s90, s30, {u}")
        e("s_and_b32 s90, s90, 15")
        e(f"s_add_u32 m0, s89, {wslot(u)}")
        e("s_mul_i32 s90, s90, 81920")
        for t in ts:
            vm.issue(f"buffer_load_dwordx4 v{WV+t}, s[32:35], s90 offen offset:{t*1024}{cfg.nt_wo} lds", ("w", u))
    e("s_lshr_b32 s18, s19, 1")
    e(f"s_mul_i32 s18, s18, {G - 8192}")
    e("s_add_u32 s18, s18, s89")
    for j in range(4):
        e(f"s_add_u32 s31, s97, {j}")
        e("s_and_b32 s31, s31, 3")
        e(f"s_add_u32 s31, s31, {4-j}")
        e("s_lshl_b32 s31, s31, 10")
        e("s_add_u32 s31, s31, s18")
        e(f"v_add_u32 v{OV+j}, s31, v18")
    e("s_and_b32 s88, s19, 1")
    e("s_lshl_b32 s88, s88, 12")
    e("s_cmp_ge_u32 s19, 2")
    e(f"s_mov_b32 s31, {V1B}")
    e(f"s_cselect_b32 s31, {V0B}, s31")
    e("s_add_u32 s88, s88, s31")
    def cleared(k):
        cmt("the flag lines of all four head groups must have been cleared in this launch")
        lab(f"L_CNT{k}")
        e("v_and_b32 v32, v32, v33")
        e("v_and_b32 v34, v34, v35")
        e("v_and_b32 v32, v32, v34")
        e("s_sub_u32 s31, s31, 1")
        e("v_readfirstlane_b32 s29, v32")
        e(f"s_cbranch_scc1 L_CNTOK{k}")
        e("s_cmp_eq_u32 s29, 1")
        e(f"s_cbranch_scc1 L_CNTOK{k}")
        e("buffer_load_dwordx4 v[32:35], v9, s[48:51], s101 offen sc1")
        e("s_waitcnt vmcnt(0)")
        e(f"s_branch L_CNT{k}")
        lab(f"L_CNTOK{k}")
    e(f"s_mov_b32 s31, {cfg.spin}")
    plans = [tuple(int(x) for x in p.split(",")) for p in cfg.wp.strip().split("/")]
    if plans[0] == plans[1]:
        plans = plans[:1]
    else:
        e("s_cmp_lg_u32 s98, 0")
        e("s_cbranch_scc1 L_WP1")
    for k, (a, b) in enumerate(plans):
        assert a <= 4 and a <= b <= cfg.wpoll
        vm.pend = []
        if k:
            lab("L_WP1")
        for u in range(a):
            wdma(u)
        late_vw(k)
        e(f"s_waitcnt vmcnt({4*a}) lgkmcnt(0)")
        cleared(k)
        e("s_barrier")
        for u in range(a, b):
            wdma(u)
        e("s_barrier")
        if not cfg.sflag:
            e("s_barrier")
        for u in range(b, cfg.wpoll):
            wdma(u)
        if k + 1 < len(plans):
            e("s_branch L_WP2")
    lab("L_WP2")
    nw = cfg.wpoll
    if not cfg.hst: stamp(9)
    def oaddr(u):
        e(f"s_add_u32 s90, s30, {u}")
        if cfg.numa:
            e("s_bfe_u32 s91, s90, 0x10003")
            e("s_bfe_u32 s18, s90, 0x20001")
            e(f"s_mul_i32 s91, s91, {O_H4}")
            e(f"s_mul_i32 s18, s18, {O_H1}")
            e("s_add_u32 s91, s91, s18")
        else:
            e("s_bfe_u32 s91, s90, 0x30001")
            e(f"s_mul_i32 s91, s91, {O_H1}")
        e("s_and_b32 s90, s90, 1")
        e(f"s_mul_i32 s90, s90, {2*G}")
        e(f"s_add_u32 m0, s88, {(u % 3)*8192}")
        e("s_add_u32 s90, s90, s91")
    def oissue(u):
        for j in range(4):
            vm.issue(f"buffer_load_dwordx4 v{OV+j}, s[36:39], s90 offen offset:{j*1024}{cfg.o_ld} lds", ("o", u))
    def odma(u):
        oaddr(u); oissue(u)
    if 1:
        oaddr(0)
        e("s_barrier")
        if not cfg.hst: stamp(10)
        oissue(0)
        oaddr(1)
        wq = [(u, t) for u in range(nw, 16) for t in range(4)]
        R, done = len(wq), 0
        for i in range(16):
            if i + 1 < 16:
                oissue(i + 1)
            if cfg.fine:
                tgt = 0 if i < cfg.wfirst else -(-((i + 1 - cfg.wfirst) * R) // (14 - cfg.wfirst))
                tgt = max(tgt, sum(1 for (u, t) in wq if u <= i + 1))
                tgt = min(tgt, sum(1 for (u, t) in wq if u <= max(6, i + 5)))
            else:
                tgt = sum(1 for (u, t) in wq if u <= i + cfg.wla)
            grp = wq[done:tgt]; done = max(done, tgt)
            for u in sorted(set(g[0] for g in grp)):
                wdma(u, [t for (uu, t) in grp if uu == u])
            if i + 2 < 16:
                oaddr(i + 2)
            vm.need(("o", i), ("w", i))
            e("s_barrier")
            if cfg.hst == 2:
                if i >= 2: stamp(i - 1)
                continue
            if i == 0: stamp(12)
            if i == 4: stamp(13)
            if i == 15: stamp(14)
    e("s_branch L_FIN")
    lab("L_H_NOP2")
    late_vw(9)
    e("s_waitcnt vmcnt(0) lgkmcnt(0)")
    e("s_barrier")
    e("s_barrier")
    if not cfg.sflag:
        e("s_barrier")
    e("s_branch L_FIN")

def compute():
    lab("L_COMPUTE")
    lg = Counter(A, "lgkmcnt", 15)
    ACC = 0
    AB = 96
    BB = [128, 152]
    AA = 176
    BA = 184
    KA = 186
    OA = 190
    KB = [192, 208, 96]
    T0 = 224
    acc = lambda T, j: ACC + (T*3+j)*4
    if cfg.cpf == 1:
        cmt("pull the code into this die's L2: wave w of workgroup r reads lines 8r+2w, 8r+2w+1 (values unused)")
        e("s_getpc_b64 s[90:91]")
        lab("L_PC")
        e(f"s_sub_u32 s90, s90, L_PC-{NAME}_kernel")
        e("s_subb_u32 s91, s91, 0")
        e("s_lshl2_add_u32 s18, s6, s7")
        e("s_lshl_b32 s18, s18, 8")
        e("v_lshl_add_u32 v235, v0, 7, s18")
        e(f"v_min_u32 v235, L_END-{NAME}_kernel, v235")
        e("s_mov_b64 exec, 3")
        e("global_load_dword v235, v235, s[90:91]")
        e("s_mov_b64 exec, -1")
    if cfg.prio:
        e(f"s_setprio {cfg.prio}")
    e(f"v_lshrrev_b32 v{T0}, 4, v0")
    e(f"v_and_b32 v{T0+1}, 15, v0")
    e(f"v_bfe_u32 v{T0+2}, v0, 2, 2")
    e(f"v_and_b32 v{T0+3}, 3, v0")
    ids()
    e("s_add_u32 s29, s99, s97")
    e("s_lshl_b32 s101, s29, 2")
    branch_off(38, 8*2*8192)
    e(f"s_mul_i32 s29, s98, {8*G}")
    e("s_add_u32 s38, s38, s29")
    e(f"s_mul_i32 s29, s97, {2*G}")
    e("s_add_u32 s43, s38, s29")
    e("s_lshr_b32 s29, s94, 3")
    e(f"s_mul_i32 s29, s29, {G}")
    e("s_lshl_b32 s39, s27, 10")
    e("s_add_u32 s39, s39, s29")
    e("s_add_u32 s100, s43, s39")
    e("s_add_u32 s92, s38, s39")
    e(f"v_mov_b32 v{T0+8}, 0")
    e(f"v_mov_b32 v{T0+9}, 1")
    e(f"v_lshlrev_b32 v{T0+10}, 7, v0")
    e(f"s_add_u32 s31, s43, {G}")
    e("s_lshl_b32 s93, s7, 4")
    e("s_add_u32 s93, s93, s94")
    e("s_waitcnt lgkmcnt(0)")
    srd(44, 24, 25, FLAG_OFF, 262144)
    srd(48, 22, 23, 0, 256)
    e("s_cmp_lg_u32 s93, 15")
    e("s_cbranch_scc1 L_NOCLR")
    e("s_mov_b32 exec_lo, 0x1f1f1f1f")
    e("s_mov_b32 exec_hi, 0x1f1f1f1f")
    e(f"buffer_store_dword v{T0+8}, v{T0+10}, s[44:47], s43 offen sc1")
    e(f"buffer_store_dword v{T0+8}, v{T0+10}, s[44:47], s31 offen sc1")
    e("s_mov_b64 exec, -1")
    lab("L_NOCLR")
    if cfg.ptest == 99:
        probe(0); probe(4)
    e(f"v_lshl_add_u32 v{T0+4}, v{T0}, 3, v{T0+2}")
    e(f"v_lshlrev_b32 v{T0+4}, 8, v{T0+4}")
    e(f"v_lshl_add_u32 v{T0+4}, v{T0+3}, 3, v{T0+4}")
    e(f"v_add_u32 v{T0+4}, {XB}, v{T0+4}")
    e(f"v_and_b32 v{T0+5}, 1, v{T0}")
    e(f"v_lshl_add_u32 v{T0+5}, v{T0+5}, 2, v{T0+2}")
    for T in range(8):
        e(f"v_xor_b32 v{T0+6}, {T}, v{T0+5}")
        e(f"v_lshl_add_u32 v{AA+T}, v{T0+6}, 5, v{T0+4}")
    e(f"v_and_b32 v{T0+6}, 6, v{T0+1}")
    e(f"v_xor_b32 v{T0+6}, v{T0+6}, v{T0}")
    e(f"v_lshlrev_b32 v{T0+6}, 4, v{T0+6}")
    e(f"v_lshl_add_u32 v{T0+6}, v{T0+1}, 7, v{T0+6}")
    e(f"s_mul_i32 s29, s7, {48*128}")
    e(f"v_add_u32 v{BA}, s29, v{T0+6}")
    e(f"v_xor_b32 v{BA+1}, 64, v{BA}")
    e("s_lshr_b32 s19, s7, 1")
    e("s_lshl_b32 s29, s19, 12")
    e(f"s_add_u32 s29, s29, {K0B}")
    e(f"v_lshrrev_b32 v{T0+6}, 1, v{T0}")
    e(f"v_xor_b32 v{T0+6}, v{T0+6}, v{T0+1}")
    e(f"v_lshlrev_b32 v{T0+6}, 4, v{T0+6}")
    e(f"v_lshl_add_u32 v{T0+6}, v{T0+1}, 8, v{T0+6}")
    e(f"v_and_b32 v{T0+7}, 1, v{T0}")
    e(f"v_lshl_add_u32 v{T0+6}, v{T0+7}, 3, v{T0+6}")
    e(f"v_add_u32 v{KA}, s29, v{T0+6}")
    VA0 = 191
    e(f"v_lshrrev_b32 v{T0+6}, 2, v0")
    e(f"v_and_b32 v{T0+7}, 7, v{T0+6}")
    e(f"v_lshlrev_b32 v{T0+6}, 8, v{T0+6}")
    e(f"v_lshl_add_u32 v{T0+6}, v{T0+7}, 5, v{T0+6}")
    e(f"v_lshl_add_u32 v{T0+6}, v{T0+3}, 3, v{T0+6}")
    e("s_cmp_eq_u32 s19, 0")
    e(f"s_mov_b32 s29, {V1B}")
    e(f"s_cselect_b32 s29, {V0B}, s29")
    e(f"v_add_u32 v{VA0}, s29, v{T0+6}")
    e(f"v_lshlrev_b32 v{OA}, 4, v0")
    for i in range(96):
        e(f"v_mov_b32 v{ACC+i}, 0")
    branch_off(29, 8*O_H4)
    e("s_lshr_b32 s30, s26, 2")
    e(f"s_mul_i32 s30, s30, {O_H4}")
    e("s_add_u32 s29, s29, s30")
    e("s_and_b32 s30, s26, 3")
    e(f"s_mul_i32 s30, s30, {O_H1}")
    e("s_add_u32 s29, s29, s30")
    e(f"s_add_u32 s29, s29, {O_OFF}")
    srd(32, 24, 25, "s29", O_H1)
    e("s_mul_i32 s29, s28, 12")
    e("s_mul_i32 s30, s7, 3")
    e("s_add_u32 s29, s29, s30")
    for j in range(3):
        e(f"s_add_u32 s30, s29, {j}")
        e("s_lshr_b32 s31, s30, 3")
        e(f"s_mul_i32 s31, s31, {4*G}")
        e("s_and_b32 s30, s30, 7")
        e("s_lshl_b32 s30, s30, 10")
        e(f"s_add_u32 s{40+j}, s30, s31")
    e("s_cmp_lg_u32 s93, 15")
    e("s_cbranch_scc1 L_NOCLR2")
    e("s_waitcnt vmcnt(0)")
    e("s_mov_b64 exec, 1")
    e(f"buffer_store_dword v{T0+9}, v{T0+8}, s[48:51], s101 offen sc1")
    e("s_mov_b64 exec, -1")
    lab("L_NOCLR2")

    def a_rd(T, par):
        r = []
        for s in range(2):
            for h in range(2):
                d = AB + (T & 3)*8 + s*4 + h*2
                r.append((f"ds_read_b64_tr_b16 {vr(d,2)}, v{AA+T} offset:{s*8192 + h*1024}", ("A", T & 3, s)))
        return r
    def b_rd(j, s, par):
        return (f"ds_read_b128 {vr(BB[par]+(j*2+s)*4,4)}, v{BA+s} offset:{j*2048}", ("B", par, j, s))
    def head_reads(par):
        a0 = a_rd(0, par)
        return [a0[0], a0[1], b_rd(0,0,par), a0[2], a0[3], b_rd(0,1,par), b_rd(1,0,par), b_rd(1,1,par),
                b_rd(2,0,par), b_rd(2,1,par)] + a_rd(1, par)
    def k_rd(kt):
        return [(f"ds_read_b64 {vr(KB[kt%3]+4*s+2*h,2)}, v{AA+2*s+h} offset:{kpos(kt) - K0B}", ("K", kt % 3, s))
                for s in range(4) for h in range(2)]
    def cvtq(s):
        r = []
        for j in range(3):
            a0, a1 = acc(2*s, j), acc(2*s+1, j)
            r += [f"v_cvt_pk_bf16_f32 v{a0}, v{a0}, v{a0+1}", f"v_cvt_pk_bf16_f32 v{a0+1}, v{a0+2}, v{a0+3}",
                  f"v_cvt_pk_bf16_f32 v{a0+2}, v{a1}, v{a1+1}", f"v_cvt_pk_bf16_f32 v{a0+3}, v{a1+2}, v{a1+3}"]
        return r
    def emit(x):
        if isinstance(x, tuple):
            lg.issue(x[0], x[1])
        else:
            e(x)
    def qstage(par, last=False, exit_label=None):
        att = {n: [] for n in range(48)}
        for T, n0 in ((2,0),(3,4),(4,8),(5,12),(6,18),(7,24)):
            for k, r in enumerate(a_rd(T, par)):
                att[n0+k].append(r)
        if not last:
            adv = [f"v_add_u32 v{AA+T}, s30, v{AA+T}" for T in range(8)] + [f"v_add_u32 v{BA+s}, s30, v{BA+s}" for s in range(2)]
            for k, x in enumerate(adv):
                att[28 + k//2].append(x)
            att[16] += ["s_mov_b32 s30, s88", "s_mov_b32 s88, s89"]
            att[17] += ["s_mov_b32 s89, s90", "s_mov_b32 s90, s30"]
            if par == 0:
                att[22].append("s_add_u32 s29, s29, 1")
                att[23].append("s_cmp_eq_u32 s29, 5")
            for k, r in enumerate(head_reads(par ^ 1)):
                att[34+k].append(r)
        else:
            for k in range(8):
                att[(16, 17, 22, 23, 22, 23, 28, 29)[k]].append(f"v_xor_b32 v{AA+k}, {32*k}, v{KA}")
            for k, r in enumerate(k_rd(0) + k_rd(1)[:4]):
                att[min(47, cfg.kbar + 1 + k//2)].append(r)
            for s, n0 in ((0,16),(1,28),(2,40)):
                for k, x in enumerate(cvtq(s)):
                    att[min(47, n0 + ((k*2)//3 if s != 1 else k//2))].append(x)
        for n in range(48):
            T, j, s = n//6, (n % 6)//2, n % 2
            if n % 6 == 0:
                lg.need(("A", T & 3, 0), ("A", T & 3, 1), *([("B", par, 0, 0), ("B", par, 0, 1)] if T == 0 else []))
            if T == 0 and n == 2:
                lg.need(*[("B", par, jj, ss) for jj in (1, 2) for ss in (0, 1)])
            e(mfma(acc(T, j), AB + (T & 3)*8 + s*4, BB[par] + (j*2+s)*4))
            for x in att[n]:
                emit(x)
            if cfg.qn and (n * cfg.qn) // 48 != ((n + 1) * cfg.qn) // 48:
                e("s_nop 5")
            if n == (cfg.kbar if last else 33):
                lg.drain()
                e("s_barrier")
        if exit_label:
            e(f"s_cbranch_scc1 {exit_label}")

    if cfg.burn:
        e("s_mov_b32 s18, 0x9e3779b1")
        e("v_mul_lo_u32 v96, s18, v255")
        for k in range(1, 32):
            e(f"v_mul_lo_u32 v{96+k}, s18, v{95+k}")
        for k in range(32):
            e(f"v_and_b32 v{96+k}, 0xbfffbfff, v{96+k}")
        e(f"s_mov_b32 s29, {cfg.burn}")
        lab("L_BURN")
        for k in range(8):
            e(mfma(192 + 4*k, 96 + 4*k, 96 + 4*((k+3) % 8), "0"))
            if cfg.bduty: e(f"s_nop {cfg.bduty}")
        e("s_sub_u32 s29, s29, 1")
        e("s_cmp_lg_u32 s29, 0")
        e("s_cbranch_scc1 L_BURN")
    e("s_mov_b32 s29, 0")
    e(f"s_mov_b32 s88, {2*SLOT}")
    e(f"s_mov_b32 s89, {(-SLOT) & 0xffffffff}")
    e("s_mov_b32 s90, s89")
    e("s_barrier")
    stamp(1)
    for r in head_reads(0):
        emit(r)
    lab("L_QLOOP")
    qstage(0, exit_label="L_QDONE")
    saved = [set(t) for t in lg.pend]
    qstage(1)
    e("s_branch L_QLOOP")
    lab("L_QDONE")
    lg.pend = saved
    qstage(1, last=True)
    stamp(2)
    QB = lambda s, j: acc(2*s, j)
    sregs = [acc(T, j) for T in (1, 3, 5) for j in range(3)] + [BB[0] + 4*k for k in range(6)] + [acc(7, j) for j in range(3)]
    SS = lambda kt, j: sregs[kt*3 + j]
    M = T0
    vaddr = [f"v_xor_b32 v{AA+T}, {32*T}, v{VA0}" for T in range(8)]
    c = math.log2(math.e) / math.sqrt(128.0)
    cbits = struct.unpack("<I", struct.pack("<f", c))[0]
    ONES = T0 + 12
    for kt in range(6):
        lg.need(*[("K", kt % 3, s) for s in range(4)])
        if kt == 1 and cfg.ksplit:
            e("s_barrier")
        order = [(j, s) for j in range(3) for s in range(4)] if kt else \
                [(j, s) for j in range(3) for s in range(3)] + [(j, 3) for j in range(3)]
        att = {n: [] for n in range(12)}
        rd = k_rd(kt + 2) if kt + 2 < 6 else []
        if kt == 0:
            for k, x in enumerate(k_rd(1)[4:]):
                att[k//2].append(x)
            for k, x in enumerate(cvtq(3)):
                att[2 + k//2].append(x)
            for k, x in enumerate(rd):
                att[8 + k//2].append(x)
        else:
            for k, x in enumerate(rd):
                att[k//2 if not cfg.ksp else k].append(x)
        if kt == 4:
            for k, x in enumerate(vaddr):
                att[(0, 0, 1, 1, 2, 2, 10, 10)[k]].append(x)
        if kt == 5:
            att[0] += [f"s_mov_b32 s30, {cbits:#x}", f"s_mov_b32 s31, {cbits:#x}"]
            for r in range(4):
                att[1 + r//2].append(f"v_mov_b32 v{ONES+r}, 0x3f803f80")
        if kt >= 1:
            for j in range(3):
                b = SS(kt-1, j)
                if kt == 1:
                    att[5 + 2*j] += [f"v_max3_f32 v{M+j}, v{b}, v{b+1}, v{b+2}"]
                    att[6 + 2*j] += [f"v_max_f32 v{M+j}, v{M+j}, v{b+3}"]
                else:
                    o = 6 if (cfg.ksp and kt < 4) else 4
                    att[o + 2*j] += [f"v_max3_f32 v{M+j}, v{M+j}, v{b}, v{b+1}"]
                    att[o + 1 + 2*j] += [f"v_max3_f32 v{M+j}, v{M+j}, v{b+2}, v{b+3}"]
        if kt == 5:
            b = SS(5, 0)
            att[10] += [f"v_max3_f32 v{M}, v{M}, v{b}, v{b+1}"]
            att[11] += [f"v_max3_f32 v{M}, v{M}, v{b+2}, v{b+3}"]
        for n, (j, s) in enumerate(order):
            e(mfma(SS(kt, j), KB[kt % 3] + 4*s, QB(s, j), "0" if s == 0 else None))
            for x in att[n]:
                emit(x)
    b = SS(5, 1)
    e(f"v_mov_b32 v{M+4}, v{M}")
    e(f"v_max3_f32 v{M+1}, v{M+1}, v{b}, v{b+1}")
    e(f"v_max3_f32 v{M+1}, v{M+1}, v{b+2}, v{b+3}")
    e(f"v_permlane32_swap_b32 v{M}, v{M+4}")
    e(f"v_mov_b32 v{M+5}, v{M+1}")
    e(f"v_max_f32 v{M}, v{M}, v{M+4}")
    e(f"v_mov_b32 v{M+4}, v{M}")
    b = SS(5, 2)
    e(f"v_permlane32_swap_b32 v{M+1}, v{M+5}")
    e(f"v_max3_f32 v{M+2}, v{M+2}, v{b}, v{b+1}")
    e(f"v_max3_f32 v{M+2}, v{M+2}, v{b+2}, v{b+3}")
    e(f"v_permlane16_swap_b32 v{M}, v{M+4}")
    e(f"v_mov_b32 v{M+6}, v{M+2}")
    e(f"v_max_f32 v{M+1}, v{M+1}, v{M+5}")
    e(f"v_mov_b32 v{M+5}, v{M+1}")
    e(f"v_permlane32_swap_b32 v{M+2}, v{M+6}")
    e(f"v_max_f32 v{M}, v{M}, v{M+4}")
    e(f"v_permlane16_swap_b32 v{M+1}, v{M+5}")
    e(f"v_max_f32 v{M+2}, v{M+2}, v{M+6}")
    e(f"v_mov_b32 v{M+6}, v{M+2}")
    e(f"v_max_f32 v{M+1}, v{M+1}, v{M+5}")
    e("s_nop 0")
    e(f"v_permlane16_swap_b32 v{M+2}, v{M+6}")
    e(f"v_max_f32 v{M+2}, v{M+2}, v{M+6}")
    NM = T0 + 4
    for j in range(3):
        e(f"v_mul_f32 v{NM+2*j}, s30, v{M+j}")
    stamp(3)
    pregs = [BB[1] + 4*k for k in range(6)] + [AB + 4*k for k in range(3)]
    PB = lambda s, j: pregs[s*3 + j]
    LS = T0 + 16
    pend_m = []
    for s in range(3):
        for j in range(3):
            for kt in (2*s, 2*s+1):
                b = SS(kt, j)
                if cfg.pk:
                    for h in range(2):
                        e(f"v_pk_fma_f32 {vr(b+2*h,2)}, {vr(b+2*h,2)}, s[30:31], {vr(NM+2*j,2)} op_sel_hi:[1,1,0] neg_lo:[0,0,1] neg_hi:[0,0,1]")
                else:
                    for r in range(4):
                        e(f"v_fma_f32 v{b+r}, v{b+r}, s30, -v{NM+2*j}")
            if pend_m:
                e(pend_m.pop())
            for kt in (2*s, 2*s+1):
                b = SS(kt, j)
                for r in range(4):
                    e(f"v_exp_f32 v{b+r}, v{b+r}")
            a0, a1, d = SS(2*s, j), SS(2*s+1, j), PB(s, j)
            e(f"v_cvt_pk_bf16_f32 v{d}, v{a0}, v{a0+1}")
            e(f"v_cvt_pk_bf16_f32 v{d+1}, v{a0+2}, v{a0+3}")
            e(f"v_cvt_pk_bf16_f32 v{d+2}, v{a1}, v{a1+1}")
            e(f"v_cvt_pk_bf16_f32 v{d+3}, v{a1+2}, v{a1+3}")
            pend_m.append(mfma(LS+4*j, ONES, d, "0" if s == 0 else None))
    stamp(4)
    e("s_barrier")
    stamp(5)
    VB = [KB[0], KB[0]+12, AB+12]
    def v_rd(T):
        return [(f"ds_read_b64_tr_b16 {vr(VB[T%3]+4*s+2*h,2)}, v{AA+T} offset:{(32*s+16*h)*256}", ("V", T % 3))
                for s in range(3) for h in range(2)]
    for r in v_rd(0) + v_rd(1):
        emit(r)
    e(pend_m.pop())
    RC = T0 + 4
    OB = lambda s, j: acc(2*s, j)
    def epi(s, pk=False):
        r = []
        for j in range(3):
            a0, a1 = acc(2*s, j), acc(2*s+1, j)
            for a in (a0, a1):
                if cfg.pk2 or pk:
                    for h in range(2):
                        r.append(f"v_pk_mul_f32 {vr(a+2*h,2)}, {vr(a+2*h,2)}, {vr(RC+2*j,2)} op_sel_hi:[1,0]")
                else:
                    r += [f"v_mul_f32 v{a+k}, v{a+k}, v{RC+2*j}" for k in range(4)]
            r += [f"v_cvt_pk_bf16_f32 v{a0}, v{a0}, v{a0+1}", f"v_cvt_pk_bf16_f32 v{a0+1}, v{a0+2}, v{a0+3}",
                  f"v_cvt_pk_bf16_f32 v{a0+2}, v{a1}, v{a1+1}", f"v_cvt_pk_bf16_f32 v{a0+3}, v{a1+2}, v{a1+3}"]
            r.append(f"buffer_store_dwordx4 {vr(a0,4)}, v{OA}, s[32:35], s{40+j} offen{cfg.o_st}")
        if s < 3:
            r.append(f"v_add_u32 v{OA}, {G}, v{OA}")
        return r
    backlog = []
    for T in range(8):
        lg.need(("V", T % 3))
        rd = v_rd(T+2) if T + 2 < 8 else []
        if T == 1:
            backlog += [f"v_rcp_f32 v{RC+2*j}, v{LS+4*j}" for j in range(3)]
        n = 0
        for j in range(3):
            for s in range(3):
                e(mfma(acc(T, j), VB[T % 3] + 4*s, PB(s, j), "0" if s == 0 else None))
                k = 0
                if rd:
                    emit(rd.pop(0)); k += 1
                if T >= 2 and T % 2 == 0 and n == 1:
                    backlog += epi(T//2 - 1)
                while backlog and k < 2:
                    e(backlog.pop(0)); k += 1
                n += 1
    for x in backlog:
        e(x)
    stamp(6)
    e("s_nop 1")
    for x in epi(3, True):
        e(x)
    stamp(7)
    CW = V1B + 16384
    if cfg.sflag:
        e(f"v_mov_b32 v252, {CW}")
        e("ds_read_b32 v253, v252")
        e("s_add_u32 s88, s24, s100")
        e("s_addc_u32 s89, s25, 0")
        e("s_waitcnt lgkmcnt(0)")
    e("s_barrier")
    PA = [64, 96]; PBb = [128, 160]
    QA, QB2 = 192, 204
    T1 = 208
    e(f"v_and_b32 v{T1}, 63, v255")
    e(f"v_lshrrev_b32 v{T1+1}, 2, v{T1}")
    e(f"v_and_b32 v{T1+2}, 7, v{T1+1}")
    e("s_and_b32 s29, s7, 1")
    e("s_lshl_b32 s30, s29, 2")
    e(f"v_xor_b32 v{T1+2}, s30, v{T1+2}")
    e(f"v_lshlrev_b32 v{T1+1}, 8, v{T1+1}")
    e(f"v_lshl_add_u32 v{T1+1}, v{T1+2}, 5, v{T1+1}")
    e(f"v_and_b32 v{T1+2}, 3, v{T1}")
    e(f"v_lshl_add_u32 v{T1+1}, v{T1+2}, 3, v{T1+1}")
    for T in range(4):
        e(f"v_xor_b32 v{QA+T}, {32*T}, v{T1+1}")
        e(f"v_add_u32 v{QA+4+T}, {WSL[3]}, v{QA+T}")
        e(f"v_add_u32 v{QA+8+T}, {WSL[4]}, v{QA+T}")
    e(f"v_lshlrev_b32 v{T1+3}, 4, v{T1}")
    e("s_lshr_b32 s31, s7, 1")
    e("s_lshl_b32 s30, s31, 12")
    e(f"v_add_u32 v{QB2}, s30, v{T1+3}")
    if V1B:
        e(f"v_add_u32 v{QB2}, {V1B}, v{QB2}")
    e(f"v_add_u32 v{QB2+1}, {V0B - V1B}, v{QB2}")
    e(f"v_mov_b32 v{T1+4}, 1")
    e("s_lshl_b32 s30, s7, 7")
    e(f"v_mov_b32 v{T1+5}, s30")
    if cfg.sflag:
        e("s_waitcnt vmcnt(0)")
        stamp(8)
        e("s_mov_b64 exec, 1")
        e(f"ds_add_rtn_u32 v254, v252, v{T1+4}")
        e("s_mov_b32 s10, 1")
        e("s_waitcnt lgkmcnt(0)")
        e("v_sub_u32 v254, v254, v253")
        e("s_mov_b64 exec, -1")
        e("v_readfirstlane_b32 s6, v254")
        e("s_cmp_lg_u32 s6, 3")
        e("s_cbranch_scc1 L_NOFLAG")
        e(f"s_atomic_or s10, s[88:89], {FLAG_OFF}")
    else:
        e("s_cmp_eq_u32 s7, 0")
        e("s_cbranch_scc1 L_FLAG")
        e("s_waitcnt vmcnt(0)")
        stamp(8)
        e("s_barrier")
        e("s_branch L_NOFLAG")
        lab("L_FLAG")
        e("s_mov_b64 exec, 1")
        e("s_waitcnt vmcnt(0)")
        stamp(8)
        e("s_barrier")
        e(f"buffer_store_dword v{T1+4}, v{T1+5}, s[44:47], s100 offen{cfg.fl_st}")
        e("s_mov_b64 exec, -1")
    lab("L_NOFLAG")
    e("s_cmp_eq_u32 s94, 15")
    e("s_cbranch_scc1 L_FIN")
    e("s_mov_b32 s14, s43")
    e("s_lshl_b32 s19, s7, 11")
    e("s_add_u32 s18, s43, s19")
    e("s_add_u32 s48, s24, s18")
    e("s_addc_u32 s49, s25, 0")
    e("s_add_u32 s18, s92, s30")
    e("s_add_u32 s18, s18, 128")
    e("s_add_u32 s8, s24, s18")
    e("s_addc_u32 s9, s25, 0")
    e("s_mul_i32 s18, s98, 15")
    e("s_add_u32 s18, s18, s94")
    e("s_lshr_b32 s19, s18, 3")
    e("s_and_b32 s18, s18, 7")
    e(f"s_mul_i32 s18, s18, {P_T1}")
    e(f"s_mul_i32 s19, s19, {P_T8}")
    e("s_add_u32 s18, s18, s19")
    branch_off(19, 4*P_T8)
    e("s_add_u32 s18, s18, s19")
    e(f"s_mul_i32 s19, s7, {P_W}")
    e("s_add_u32 s18, s18, s19")
    e(f"s_add_u32 s18, s18, {PART_OFF}")
    srd(32, 24, 25, "s18", P_T1)
    for d in range(4):
        e(f"s_add_u32 s18, s97, {d}")
        e("s_and_b32 s18, s18, 3")
        e(f"s_mul_i32 s18, s18, {4*P_W}")
        e(f"s_add_u32 s{36+d}, s18, {max(d-1,0)*2048}")
        if d:
            e(f"s_sub_u32 s18, s97, {d}")
            e("s_and_b32 s18, s18, 3")
            e(f"s_mul_i32 s{10+d}, s18, {2*G}")
    e("s_mul_i32 s18, s98, 3")
    e("s_add_u32 s18, s18, s95")
    e("s_lshl_b32 s18, s18, 3")
    e("s_lshl_b32 s19, s31, 2")
    e("s_add_u32 s18, s18, s19")
    e("s_add_u32 s18, s18, s97")
    e(f"s_mul_i32 s18, s18, {16*2560}")
    e("s_mul_i32 s19, s4, 1280")
    e("s_add_u32 s18, s18, s19")
    e("s_lshl_b32 s19, s96, 8")
    e("s_add_u32 s18, s18, s19")
    e("s_lshl_b32 s19, s29, 7")
    e("s_add_u32 s18, s18, s19")
    e(f"s_sub_u32 s19, {768*2560}, s18")
    srd(40, 20, 21, "s18", "s19")
    e(f"v_and_b32 v{T1+6}, 15, v{T1}")
    e(f"v_mul_u32_u24 v{T1+6}, 2560, v{T1+6}")
    e(f"v_and_b32 v{T1+7}, 48, v{T1}")
    e(f"v_add_u32 v{T1+6}, v{T1+6}, v{T1+7}")
    if 1:
        e("s_cmp_eq_u32 s95, 2")
        e(f"s_cselect_b32 s50, {G}, 0")
        e("s_cmp_eq_u32 s95, 0")
        e(f"s_cselect_b32 s51, 0, {G}")
        e(f"s_mov_b32 s31, {cfg.spin}")
        if cfg.poll == 0:
            lab("L_POLL")
            if cfg.slp:
                e(f"s_sleep {cfg.slp}")
            e("s_load_dword s18, s[48:49], s50 glc")
            e("s_load_dword s19, s[48:49], s50 offset:1024 glc")
            e("s_load_dword s90, s[48:49], s51 glc")
            e("s_load_dword s91, s[48:49], s51 offset:1024 glc")
            e("s_sub_u32 s31, s31, 1")
            e("s_cbranch_scc1 L_GO")
            e("s_waitcnt lgkmcnt(0)")
            e("s_and_b32 s18, s18, s19")
            e("s_and_b32 s90, s90, s91")
            e("s_and_b32 s18, s18, s90")
            e("s_cbranch_scc0 L_POLL")
        elif cfg.poll == 1:
            regs = [(18, 50, 0), (19, 50, 1024), (90, 51, 0), (91, 51, 1024)]
            e("s_mov_b32 s18, 0")
            e("s_mov_b32 s19, 0")
            e("s_cmp_lg_u32 s95, 1")
            e("s_cselect_b32 s90, 1, 0")
            e("s_mov_b32 s91, s90")
            lab("L_POLL")
            for k, (r, o, imm) in enumerate(regs):
                e(f"s_cmp_lg_u32 s{r}, 0")
                e(f"s_cbranch_scc1 L_PS{k}")
                e(f"s_load_dword s{r}, s[48:49], s{o} offset:{imm} glc")
                lab(f"L_PS{k}")
            e("s_sub_u32 s31, s31, 1")
            e("s_cbranch_scc1 L_GO")
            e("s_waitcnt lgkmcnt(0)")
            e("s_and_b32 s5, s18, s19")
            e("s_and_b32 s6, s90, s91")
            e("s_and_b32 s5, s5, s6")
            e("s_cbranch_scc0 L_POLL")
        else:
            e("s_cmp_lg_u32 s7, 1")
            e("s_cbranch_scc1 L_GO")
            e(f"v_and_b32 v{T1+8}, 7, v{T1}")
            e(f"v_lshlrev_b32 v{T1+8}, 10, v{T1+8}")
            e(f"v_bfe_u32 v{T1+9}, v{T1}, 3, 1")
            e(f"v_mul_u32_u24 v{T1+9}, {G}, v{T1+9}")
            e(f"v_add_u32 v{T1+8}, v{T1+8}, v{T1+9}")
            e("s_movk_i32 s90, 0xff")
            e("s_mov_b32 s91, 0")
            e("s_cmp_eq_u32 s95, 1")
            e("s_cselect_b32 s90, 0xffff, s90")
            e("s_cmp_eq_u32 s95, 2")
            e("s_cselect_b32 s90, 0xff00, s90")
            e("s_mov_b64 exec, s[90:91]")
            lab("L_POLL")
            e(f"buffer_load_dword v{T1+9}, v{T1+8}, s[44:47], s14 offen{cfg.fl_ld}")
            e("s_waitcnt vmcnt(0)")
            e(f"v_cmp_ne_u32 vcc, 1, v{T1+9}")
            e("s_sub_u32 s31, s31, 1")
            e("s_cbranch_scc1 L_GO0")
            e("s_and_b64 exec, exec, vcc")
            e("s_cbranch_scc1 L_POLL")
            lab("L_GO0")
            e("s_mov_b64 exec, -1")
        lab("L_GO")
        e("s_barrier")
    pacc = lambda T, j: (T*4+j)*4
    def p_reads(u):
        b = u & 1
        k = u % 7
        areg = QA + 4*(0 if k < 3 else 1 if k == 3 else 2)
        aoff = WSL[k] - (0 if k < 3 else WSL[3] if k == 3 else WSL[4])
        def a(T):
            return [(f"ds_read_b64_tr_b16 {vr(PA[b]+T*8+s*4+h*2,2)}, v{areg+T} offset:{aoff + (32*s+16*h)*256}", ("PA", b, T))
                    for s in range(2) for h in range(2)]
        def bb(j):
            return [(f"ds_read_b128 {vr(PBb[b]+(j*2+s)*4,4)}, v{QB2+s} offset:{(u%3)*8192 + j*1024}", ("PB", b, j)) for s in range(2)]
        return a(0) + bb(0) + bb(1) + bb(2) + bb(3) + a(1) + a(2) + a(3)
    lg.pend = []
    e("s_barrier")
    stamp(9)
    for r in p_reads(0):
        emit(r)
    def pm(u, T, j, s):
        return mfma(pacc(T, j), PA[u & 1]+T*8+s*4, PBb[u & 1]+(j*2+s)*4, "0" if (u == 0 and s == 0) else None)
    def send(d):
        r = []
        for Tp in range(2):
            a0, a1 = pacc(2*Tp, d), pacc(2*Tp+1, d)
            r += [f"v_cvt_pk_bf16_f32 v{a0}, v{a0}, v{a0+1}", f"v_cvt_pk_bf16_f32 v{a0+1}, v{a0+2}, v{a0+3}",
                  f"v_cvt_pk_bf16_f32 v{a0+2}, v{a1}, v{a1+1}", f"v_cvt_pk_bf16_f32 v{a0+3}, v{a1+2}, v{a1+3}",
                  f"buffer_store_dwordx4 {vr(a0,4)}, v{T1+3}, s[32:35], s{36+d} offen offset:{Tp*1024}{cfg.p_st}"]
        return r
    for u in range(16 if not cfg.late0 else 15):
        b = u & 1
        rd = p_reads(u+1) if u < 15 else []
        js = (1, 2, 3) if (cfg.late0 and u == 14) else (0, 1, 2, 3)
        seq = [(T, j, s) for T in range(4) for j in js for s in range(2)]
        for n, (T, j, s) in enumerate(seq):
            if u == 0:
                lg.need(("PA", b, T), ("PB", b, j))
            elif n == 0:
                lg.need(("PA", b, 0), *[("PB", b, jj) for jj in range(4)])
            e(pm(u, T, j, s))
            pb = min(cfg.pbar, 5) if len(js) == 3 else cfg.pbar
            if n == pb:
                lg.drain()
                if u < 15:
                    e("s_barrier")
            if n > pb and rd:
                emit(rd.pop(0))
                if len(js) == 3 and n < 14:
                    emit(rd.pop(0))
            if cfg.pn and (n * cfg.pn) // 32 != ((n + 1) * cfg.pn) // 32:
                e("s_nop 5")
    if cfg.late0:
        seq = [(15, T, j, s) for j in (1, 2, 3) for T in range(4) for s in range(2)] + \
              [(uu, T, 0, s) for T in range(4) for uu in (14, 15) for s in range(2)]
        fill = []
        for n, (uu, T, j, s) in enumerate(seq):
            lg.need(("PA", 1, T), ("PB", 1, j))
            e(pm(uu, T, j, s))
            if n in (9, 17, 25):
                fill += send(n // 8)
            for _ in range(2):
                if fill:
                    e(fill.pop(0))
        assert not fill
        stamp(10)
    else:
        stamp(10)
        e("s_nop 1")
        for d in (1, 2, 3):
            for x in send(d):
                e(x)
    e(f"s_add_u32 s37, s36, 4096")
    e("s_waitcnt vmcnt(0)")
    stamp(11)
    e("s_mov_b64 exec, 1")
    e(f"buffer_store_dword v{T1+4}, v{T1+5}, s[44:47], s100 offen offset:128{cfg.fl_st}")
    e("s_mov_b64 exec, -1")
    RB = 64
    for d in (1, 2, 3):
        e(f"s_load_dword s{14+d}, s[8:9], s{10+d} glc")
    e("s_waitcnt lgkmcnt(0)")
    for d in (1, 2, 3):
        e(f"s_mov_b32 s31, {cfg.spin}")
        lab(f"L_P3W{d}")
        e(f"s_cmp_lg_u32 s{14+d}, 0")
        e(f"s_cbranch_scc1 L_P3G{d}")
        for dd in range(d, 4):
            e(f"s_load_dword s{14+dd}, s[8:9], s{10+dd} glc")
        e("s_sub_u32 s31, s31, 1")
        e("s_waitcnt lgkmcnt(0)")
        e(f"s_cbranch_scc0 L_P3W{d}")
        lab(f"L_P3G{d}")
        for f in (2*d - 2, 2*d - 1):
            e(f"buffer_load_dwordx4 {vr(RB+4*f,4)}, v{T1+3}, s[32:35], s{36 + f//4} offen offset:{(f%4)*1024}{cfg.p_ld}")
    stamp(12)
    e("s_mov_b32 s30, 0xffff0000")
    for f in range(6):
        e(f"s_waitcnt vmcnt({5-f})")
        Tp = f & 1
        for k in range(4):
            a = pacc(2*Tp + k//2, 0) + 2*(k & 1)
            x = RB + 4*f + k
            e(f"v_lshlrev_b32 v{T1+8}, 16, v{x}")
            e(f"v_and_b32 v{x}, s30, v{x}")
            e(f"v_add_f32 v{a}, v{a}, v{T1+8}")
            e(f"v_add_f32 v{a+1}, v{a+1}, v{x}")
    stamp(13)
    for Tp in range(2):
        a0, a1 = pacc(2*Tp, 0), pacc(2*Tp+1, 0)
        e(f"v_cvt_pk_bf16_f32 v{a0}, v{a0}, v{a0+1}")
        e(f"v_cvt_pk_bf16_f32 v{a0+1}, v{a0+2}, v{a0+3}")
        e(f"v_cvt_pk_bf16_f32 v{a0+2}, v{a1}, v{a1+1}")
        e(f"v_cvt_pk_bf16_f32 v{a0+3}, v{a1+2}, v{a1+3}")
    for op in ("v_permlane32_swap_b32", "v_permlane16_swap_b32"):
        e("s_nop 0")
        for Tp in range(2):
            a0 = pacc(2*Tp, 0)
            e(f"{op} v{a0}, v{a0+2}")
            e(f"{op} v{a0+1}, v{a0+3}")
    for Tp in range(2):
        e(f"buffer_store_dwordx4 {vr(pacc(2*Tp,0),4)}, v{T1+6}, s[40:43], 0 offen offset:{Tp*64}{cfg.out_st}")
    stamp(14)
    lab("L_FIN")
    if cfg.stamps:
        e("s_waitcnt vmcnt(0)")
        stamp(15)
        stamp_flush()
    lab("L_END")
    e("s_endpgm")

def kd(name):
    return f""".amdhsa_kernel {name}
  .amdhsa_next_free_vgpr 256
  .amdhsa_next_free_sgpr 102
  .amdhsa_accum_offset 256
  .amdhsa_group_segment_fixed_size 0
  .amdhsa_kernarg_size 104
  .amdhsa_user_sgpr_count 2
  .amdhsa_user_sgpr_kernarg_segment_ptr 1
  .amdhsa_system_sgpr_workgroup_id_x 1
.end_amdhsa_kernel
"""

prologue(); helper(); compute()
probs = check_hazards(A.L)
for p in probs:
    print("HAZARD:", p, file=sys.stderr)
K = NAME + "_kernel"
if cfg.diag:
    from diag import gen_diag
    hdr = (f"; diagnostic build\n; @launch kernel={K} grid=(256,1,1) block=(512,1,1) lds=163840\n"
           "; @launch kernel=d_kernel grid=(1,1,1) block=(256,1,1) lds=256\n")
else:
    hdr = ("; fused: Q projection + attention + output projection, both branches, one launch\n"
           "; @launch grid=(256,1,1) block=(512,1,1) lds=163840\n")
out = hdr + '.amdgcn_target "amdgcn-amd-amdhsa--gfx950"\n.text\n'
out += f".globl {K}\n.p2align 8\n.type {K},@function\n" + A.text()
if cfg.diag:
    out += ".globl d_kernel\n.p2align 8\n.type d_kernel,@function\n" + "\n".join(gen_diag(cfg.diag.strip(), STAMP_OFF)) + "\n"
out += '.section .rodata,"a"\n.p2align 6\n' + kd(K)
if cfg.diag:
    out += ".p2align 6\n" + kd("d_kernel")
open(sys.argv[1], "w").write(out)
sys.exit(1 if probs else 0)
```

```python
import sys, os, math, struct
sys.path.insert(0, os.path.dirname(os.path.abspath(__file__)))
from asmlib import *

NAME = "concat_heads__gqa_block_cached__mha_block_cached__near_ridge"

class Cfg:
    nt_x = ""; nt_wq = ""; nt_k = " nt"; nt_v = " nt"; nt_wo = ""
    o_st = " sc1"; o_ld = " sc1"; out_st = " sc1"; p_st = " sc1"; p_ld = " sc1"
    rot = 10477
    scheds = " S0 S1/S2/S3/S4/S5/S6/S7/S8/S9/K012/K345 V0/V1|S0 S1/S2/K01234 Va S3/S4/S5/S6/S7/S8/S9/K5/V1/W0"
    smap = " 0011"
    wp = " 2,2/2,2"
    wpoll = 7
    wfirst = 2
    wtail = 100
    rtab = " 0,2,5,8,10,13"
    rnt = 0
    vwm = 2
    prea = 2
    vbar = 0
    ndef = 2
    pbar = 5
    kbar = 33
    dup = 0
    cpf = 1
    prio = 1
    stamps = 0
    hst = 0
    spin = 1000000
    diag = ""
    qn = 0
cfg = Cfg()
for a in sys.argv[2:]:
    k, v = a.split("=")
    old = getattr(cfg, k)
    setattr(cfg, k, int(v) if isinstance(old, int) else ((" " + v.replace("+", " ")) if v else ""))

A = Asm()
e, lab, cmt = A.e, A.lab, A.cmt

STAMP_OFF = 64 << 20
FG = 16384 if cfg.dup else 8192
FLAG_SZ = 32 * FG
O_OFF = 1 << 20
O_HEAD = 196608
PART_OFF = 16 << 20
P_W = 6144
SLOT = 40960
XB = 24576
PHYS = [0, 2*SLOT, SLOT]
V1B, V0B, K0B = 49152, 90112, 114688
WSL = [0, 16384, 32768, 73728, 114688, 131072, 147456]
kpos = lambda kt: K0B + ((kt + 1) % 6) * 8192

def stamp(i):
    if cfg.stamps:
        e(f"{'s_memtime' if cfg.stamps == 2 else 's_memrealtime'} s[{52+2*i}:{53+2*i}]")
def stamp_flush():
    e(f"s_add_u32 s84, s24, {STAMP_OFF}")
    e("s_addc_u32 s85, s25, 0")
    e("s_mov_b32 s86, 0x100000")
    e("s_mov_b32 s87, 0x20000")
    e("s_lshl_b32 s92, s2, 3")
    e("s_add_u32 s92, s92, s7")
    e("s_lshl_b32 s92, s92, 6")
    e("s_waitcnt lgkmcnt(0)")
    e("v_mbcnt_lo_u32_b32 v251, -1, 0")
    e("v_lshlrev_b32 v251, 2, v251")
    for i in range(16):
        e(f"v_writelane_b32 v250, s{52+2*i}, {i}")
    e("s_mov_b64 exec, 0xffff")
    e("buffer_store_dword v250, v251, s[84:87], s92 offen sc1")

def srd(d, lo, off, size):
    e(f"s_add_u32 s{d}, s{lo}, {off}")
    e(f"s_addc_u32 s{d+1}, s{lo+1}, 0")
    e(f"s_mov_b32 s{d+2}, {size}")
    e(f"s_mov_b32 s{d+3}, 0x20000")

def cvt4(d, a0, a1):
    return [f"v_cvt_pk_bf16_f32 v{d}, v{a0}, v{a0+1}", f"v_cvt_pk_bf16_f32 v{d+1}, v{a0+2}, v{a0+3}",
            f"v_cvt_pk_bf16_f32 v{d+2}, v{a1}, v{a1+1}", f"v_cvt_pk_bf16_f32 v{d+3}, v{a1+2}, v{a1+3}"]

def prologue():
    lab(NAME + "_kernel")
    e("s_cmp_ge_u32 s2, 256")
    e("s_cbranch_scc1 L_END")
    e("s_and_b32 s3, s2, 7")
    e("s_lshr_b32 s4, s3, 2")
    e("s_mul_i32 s5, s4, 40")
    e("s_load_dwordx8 s[8:15], s[0:1], s5")
    e("s_load_dwordx2 s[16:17], s[0:1], s5 offset:32")
    e("s_load_dwordx4 s[20:23], s[0:1], 80")
    e("s_load_dwordx2 s[24:25], s[0:1], 96")
    if cfg.stamps:
        for i in range(1, 16):
            e(f"s_mov_b32 s{52+2*i}, 0")
    stamp(0)
    if cfg.cpf:
        cmt("instruction prefetch into L2: workgroup r reads code lines 8r..8r+7 (values unused)")
        e("s_getpc_b64 s[90:91]")
        lab("L_PC")
        e("s_and_b32 s18, s2, 0xf8")
        e("v_xor_b32 v1, 256, v0")
        e("v_add_u32 v235, s18, v1")
        e("v_lshlrev_b32 v235, 7, v235")
        e("v_min_u32 v235, L_END-L_PC, v235")
        e("v_cmp_gt_u32 vcc, 8, v1")
        e("s_and_saveexec_b64 s[18:19], vcc")
        e("s_cbranch_execz L_NOCPF")
        e("global_load_dword v235, v235, s[90:91]")
        lab("L_NOCPF")
        e("s_mov_b64 exec, -1")
    e("v_lshrrev_b32 v1, 6, v0")
    e("v_xor_b32 v1, 4, v1")
    e("s_lshr_b32 s6, s2, 3")
    e("v_readfirstlane_b32 s7, v1")
    e("v_and_b32 v0, 63, v0")
    e("s_bfe_u32 s26, s6, 0x10002")
    e("s_lshr_b32 s27, s6, 3")
    e("s_and_b32 s6, s6, 3")
    e("s_lshl_b32 s27, s27, 2")
    e("s_lshl_b32 s26, s26, 4")
    e("s_or_b32 s6, s6, s27")
    e("s_or_b32 s6, s6, s26")
    if cfg.stamps:
        e("s_lshl_b32 s2, s6, 3")
        e("s_or_b32 s2, s2, s3")
    e("s_and_b32 s97, s3, 3")
    e("s_and_b32 s27, s6, 7")
    e("s_lshl3_add_u32 s26, s97, s27")
    e("s_lshr_b32 s28, s6, 3")
    e("s_cmp_lt_u32 s7, 4")
    e("s_cbranch_scc1 L_COMPUTE")

def ids():
    cmt("s94 = m (15: no output tile), s95 = tt, s96 = nt, s97 = head group, s98 = set, s99 = (branch*2+set)*4")
    e("s_and_b32 s94, s6, 15")
    e("s_mul_i32 s95, s94, 52")
    e("s_lshr_b32 s95, s95, 8")
    e("s_mul_i32 s96, s95, 5")
    e("s_sub_u32 s96, s94, s96")
    e("s_lshr_b32 s98, s6, 4")
    e("s_lshl1_add_u32 s99, s4, s98")
    e("s_lshl_b32 s99, s99, 2")

def helper():
    cmt("================ loader waves: x / wq ring, K, V, then wo / O rings (all LDS-DMA)")
    vm = Counter(A, "vmcnt", 63)
    e("s_sub_u32 s19, s7, 4")
    if cfg.rot == 3:
        e("s_add_u32 s30, s27, s28"); e("s_and_b32 s30, s30, 3"); e("s_mul_i32 s30, s30, 5"); e("s_lshr_b32 s30, s30, 1")
    elif cfg.rot == 2:
        e("s_lshl1_add_u32 s30, s28, s27"); e("s_and_b32 s30, s30, 7"); e("s_mul_i32 s30, s30, 5"); e("s_lshr_b32 s30, s30, 2")
    elif cfg.rot == 1:
        e("s_add_u32 s30, s27, s28"); e("s_and_b32 s30, s30, 1"); e("s_mul_i32 s30, s30, 5")
    elif cfg.rot >= 10:
        tab = [int(c) for c in str(cfg.rot)[1:]]
        e("s_add_u32 s30, s27, s28"); e("s_and_b32 s30, s30, 3"); e("s_lshl_b32 s30, s30, 2")
        e(f"s_lshr_b32 s30, {sum(b << (4*i) for i, b in enumerate(tab)):#x}, s30"); e("s_and_b32 s30, s30, 15")
    XV, WV = 10, 14
    e("v_lshrrev_b32 v1, 4, v0")
    e("v_and_b32 v2, 15, v0")
    e("v_lshlrev_b32 v3, 1, v1")
    e("v_xor_b32 v4, v2, v3")
    e("v_lshlrev_b32 v4, 4, v4")
    e("s_lshl_b32 s29, s19, 4")
    e("v_add_u32 v5, s29, v1")
    e(f"v_lshl_add_u32 v{WV}, v5, 13, v4")
    e(f"v_add_u32 v{WV+1}, {32768-1024}, v{WV}")
    e(f"v_xor_b32 v5, 128, v{WV}")
    e(f"v_add_u32 v{WV+2}, {2*(32768-1024)}, v5")
    e(f"v_add_u32 v{WV+3}, {3*(32768-1024)}, v5")
    e("v_lshrrev_b32 v5, 3, v0")
    e("v_and_b32 v6, 7, v0")
    e("v_and_b32 v7, 6, v5")
    e("v_xor_b32 v6, v6, v7")
    e("s_mul_i32 s29, s19, 48")
    e("v_add_u32 v5, s29, v5")
    e("v_mul_u32_u24 v5, 1280, v5")
    e(f"v_lshl_add_u32 v{XV}, v6, 4, v5")
    for t in range(1, 4):
        e(f"v_add_u32 v{XV+t}, {t*(10240-1024)}, v{XV}")
    e(f"s_mul_i32 s88, s19, {48*128}")
    e("s_lshl_b32 s89, s19, 12")
    e(f"s_mul_i32 s29, s28, {192*1280}")
    e("s_lshl_b32 s31, s26, 8")
    e(f"s_sub_u32 s38, {640*8192}, s31")
    e("s_mov_b32 s39, 0x20000")
    e(f"s_mov_b32 s34, {192*1280}")
    e("s_mov_b32 s35, 0x20000")
    e("s_mov_b32 s100, 0")
    e("s_waitcnt lgkmcnt(0)")
    e("s_add_u32 s36, s14, s31")
    e("s_addc_u32 s37, s15, 0")
    e("s_add_u32 s32, s8, s29")
    e("s_addc_u32 s33, s9, 0")

    def stage(i):
        slot = PHYS[i % 3]
        e(f"s_add_u32 m0, s89, {slot + XB}")
        e("s_lshl_b32 s90, s30, 19")
        for t in range(4):
            vm.issue(f"buffer_load_dwordx4 v{WV+t}, s[36:39], s90 offen offset:{t*1024}{cfg.nt_wq} lds", ("st", i))
        e(f"s_add_u32 m0, s88, {slot}")
        e("s_lshl_b32 s91, s30, 7")
        for t in range(4):
            vm.issue(f"buffer_load_dwordx4 v{XV+t}, s[32:35], s91 offen offset:{t*1024}{cfg.nt_x} lds", ("st", i))
        e("s_add_u32 m0, m0, 4096")
        e("s_add_u32 s91, s91, 40960")
        for t in range(2):
            vm.issue(f"buffer_load_dwordx4 v{XV+t}, s[32:35], s91 offen offset:{t*1024}{cfg.nt_x} lds", ("st", i))
        if i < 9:
            e("s_add_u32 s30, s30, 1")
            e("s_cmp_eq_u32 s30, 10")
            e("s_cselect_b32 s30, 0, s30")
    def kv_setup():
        e("s_lshl_b32 s29, s28, 6")
        e("s_add_u32 s29, s29, s26")
        e("s_mul_i32 s29, s29, 24576")
        srd(44, 12, "s29", 33*24576)
        srd(40, 10, "s29", 33*24576)
        e("v_lshlrev_b32 v18, 4, v0")
        e("s_and_b32 s31, s19, 1")
        e("s_lshl_b32 s31, s31, 7")
        e("v_xor_b32 v19, s31, v4")
        e("v_lshl_add_u32 v19, v1, 8, v19")
        e("s_lshl_b32 s93, s19, 10")
        e("v_add_u32 v19, s93, v19")
        e("s_lshl_b32 s31, s19, 2")
        e("v_add_u32 v5, s31, v1")
        e("v_xor_b32 v6, v2, v5")
        e("v_lshlrev_b32 v6, 4, v6")
        e("v_lshl_add_u32 v20, v5, 8, v6")
    def kload(kts):
        for kt in kts:
            for b in range(2):
                e(f"s_add_u32 m0, s93, {kpos(kt) + b*4096}")
                e(f"s_mov_b32 s90, {b*32*24576 + kt*4096}")
                vm.issue(f"buffer_load_dwordx4 v20, s[40:43], s90 offen{cfg.nt_k} lds", "k")
    def vload(b):
        for n in range(6):
            e(f"s_add_u32 m0, s93, {(V1B if b else V0B) + n*4096}")
            e(f"s_mov_b32 s90, {b*32*24576 + n*4096}")
            vm.issue(f"buffer_load_dwordx4 v19, s[44:47], s90 offen{cfg.nt_v} lds", "v")
    VR = 80
    def vreg():
        for n in range(6):
            e(f"s_mov_b32 s90, {n*4096}")
            vm.issue(f"buffer_load_dwordx4 {vr(VR+4*n,4)}, v19, s[44:47], s90 offen{cfg.nt_v}", "vr")
    def late_vw(k):
        cmt("V tile that was staged in registers (s100 = 1) goes to LDS now")
        e("s_cmp_eq_u32 s100, 0")
        e(f"s_cbranch_scc1 L_NOVW{k}")
        e(f"s_add_u32 s90, s93, {V0B}")
        e("v_add_u32 v22, s90, v18")
        for n in range(6):
            e(f"ds_write_b128 v22, {vr(VR+4*n,4)} offset:{n*4096}")
        lab(f"L_NOVW{k}")

    def run_sched(sched):
        iv = [x.split() for x in sched.strip().split("/")]
        assert len(iv) == 12
        setup_done = False
        for i, toks in enumerate(iv):
            for tk in toks:
                if tk[0] != "S" and not setup_done:
                    kv_setup(); setup_done = True
                if tk[0] == "S":
                    n = int(tk[1:])
                    assert n <= max(2, i + 1)
                    stage(n)
                elif tk[0] == "K":
                    assert i <= 10 and ("5" not in tk or i >= 9)
                    kload([int(c) for c in tk[1:]])
                elif tk == "V0":
                    assert i >= 9; vload(0)
                elif tk == "V1":
                    assert i >= 10; vload(1)
                elif tk == "Va":
                    vreg()
                elif tk == "W0":
                    assert i == 11
                    vm.need("vr")
                    e("s_mov_b32 s100, 1")
                else:
                    assert False, tk
            if i == 0 and not setup_done:
                kv_setup(); setup_done = True
            if i < 10:
                vm.need(("st", i))
            if i == 10:
                vm.need("k")
            if i < 11:
                e(f"s_barrier                               ; B_{i}")
            if cfg.hst == 2: continue
            if i < (10 if cfg.hst else 8): stamp(1 + i)
            if i == 10: stamp(11)

    scs = cfg.scheds.strip().split("|"); smap = cfg.smap.strip()
    smap = "".join(c * 8 for c in smap) if len(smap) == 4 else smap * (32 // len(smap))
    for k, sc in enumerate(scs):
        if k + 1 < len(scs):
            mask = sum(1 << r for r in range(32) if int(smap[r]) == k)
            e(f"s_bitcmp1_b32 {mask:#x}, s6")
            e(f"s_cbranch_scc0 L_H{k+1}")
        vm.pend = []
        run_sched(sc)
        if k + 1 < len(scs):
            e("s_branch L_HX")
            lab(f"L_H{k+1}")
    lab("L_HX")

    vm.pend = []
    ids()
    srd(48, 22, 0, 256)
    e("s_lshl_b32 s101, s99, 2")
    e("v_mov_b32 v9, 0")
    e("s_cmp_eq_u32 s94, 15")
    e("s_cbranch_scc1 L_H_NOP2")
    e("buffer_load_dwordx4 v[32:35], v9, s[48:51], s101 offen sc1")
    WO, OV = 24, 28
    e("s_mul_i32 s29, s98, 3")
    e("s_add_u32 s29, s29, s95")
    e("s_lshl_b32 s31, s29, 2")
    e(f"s_lshr_b32 s30, {sum(int(b) << (4*i) for i, b in enumerate(cfg.rtab.split(','))):#x}, s31")
    if cfg.rnt:
        e(f"s_mul_i32 s31, s96, {cfg.rnt}")
        e("s_add_u32 s30, s30, s31")
    e(f"s_mul_i32 s18, s97, {1024*1280}")
    e("s_lshl_b32 s31, s96, 8")
    e("s_add_u32 s18, s18, s31")
    e(f"s_sub_u32 s31, {4096*1280}, s18")
    srd(32, 16, "s18", "s31")
    e(f"s_mul_i32 s18, s3, {8*O_HEAD}")
    e("s_lshl_b32 s31, s29, 15")
    e("s_add_u32 s18, s18, s31")
    e(f"s_add_u32 s18, s18, {O_OFF - 4096}")
    srd(36, 24, "s18", 8*O_HEAD)
    e("s_lshl_b32 s31, s19, 4")
    e("v_add_u32 v5, s31, v1")
    e("v_mul_u32_u24 v5, 1280, v5")
    e(f"v_add_u32 v{WO}, v5, v4")
    e("v_xor_b32 v6, 128, v4")
    e("v_add_u32 v6, v5, v6")
    e(f"v_add_u32 v{WO+1}, {4*1280-1024}, v6")
    e(f"v_add_u32 v{WO+2}, {2*(4*1280-1024)}, v{WO}")
    e(f"v_add_u32 v{WO+3}, {3*(4*1280-1024)}, v6")
    def wdma(u, ts=range(4)):
        e(f"s_add_u32 s90, s30, {u}")
        e("s_and_b32 s90, s90, 15")
        e(f"s_add_u32 m0, s89, {WSL[u % 7]}")
        e("s_mul_i32 s90, s90, 81920")
        for t in ts:
            vm.issue(f"buffer_load_dwordx4 v{WO+t}, s[32:35], s90 offen offset:{t*1024}{cfg.nt_wo} lds", ("w", u))
    def o_setup():
        for j in range(4):
            e(f"s_add_u32 s31, s97, {j}")
            e("s_and_b32 s31, s31, 3")
            e(f"s_add_u32 s31, s31, {4-j}")
            e("s_lshl_b32 s31, s31, 10")
            e("s_add_u32 s31, s31, s89")
            e(f"v_add_u32 v{OV+j}, s31, v18")
        e("s_and_b32 s88, s19, 1")
        e("s_lshl_b32 s88, s88, 12")
        e("s_cmp_ge_u32 s19, 2")
        e(f"s_mov_b32 s31, {V1B}")
        e(f"s_cselect_b32 s31, {V0B}, s31")
        e("s_add_u32 s88, s88, s31")
    def cleared(k):
        cmt("the flag lines of all four head groups must have been cleared in this launch")
        e(f"s_mov_b32 s31, {cfg.spin}")
        lab(f"L_CNT{k}")
        e("v_and_b32 v32, v32, v33")
        e("v_and_b32 v34, v34, v35")
        e("v_and_b32 v32, v32, v34")
        e("s_sub_u32 s31, s31, 1")
        e("v_readfirstlane_b32 s29, v32")
        e(f"s_cbranch_scc1 L_CNTOK{k}")
        e("s_cmp_eq_u32 s29, 1")
        e(f"s_cbranch_scc1 L_CNTOK{k}")
        e("buffer_load_dwordx4 v[32:35], v9, s[48:51], s101 offen sc1")
        e("s_waitcnt vmcnt(0)")
        e(f"s_branch L_CNT{k}")
        lab(f"L_CNTOK{k}")
    plans = [tuple(int(x) for x in p.split(",")) for p in cfg.wp.strip().split("/")]
    if plans[0] == plans[1]:
        plans = plans[:1]
    else:
        e("s_cmp_lg_u32 s98, 0")
        e("s_cbranch_scc1 L_WP1")
    for k, (a, b) in enumerate(plans):
        assert a <= 4 and a <= b <= cfg.wpoll
        vm.pend = []
        if k:
            lab("L_WP1")
        for u in range(a):
            wdma(u)
        if cfg.vwm:
            o_setup()
        if cfg.vwm == 2:
            e(f"s_waitcnt vmcnt({4*a})")
        late_vw(k)
        e(f"s_waitcnt vmcnt({4*a}) lgkmcnt(0)")
        cleared(k)
        e("s_barrier")
        for u in range(a, b):
            wdma(u)
        if not cfg.vwm:
            o_setup()
        e("s_barrier")
        for u in range(b, cfg.wpoll):
            wdma(u)
        if k + 1 < len(plans):
            e("s_branch L_WP2")
    lab("L_WP2")
    if not cfg.hst: stamp(9)
    def oaddr(u):
        e(f"s_add_u32 s90, s30, {u}")
        e("s_bfe_u32 s91, s90, 0x30001")
        e("s_and_b32 s90, s90, 1")
        e(f"s_mul_i32 s91, s91, {O_HEAD}")
        e("s_lshl_b32 s90, s90, 14")
        e(f"s_add_u32 m0, s88, {(u % 3)*8192}")
        e("s_add_u32 s90, s90, s91")
    def oissue(u):
        for j in range(4):
            vm.issue(f"buffer_load_dwordx4 v{OV+j}, s[36:39], s90 offen offset:{j*1024}{cfg.o_ld} lds", ("o", u))
    oaddr(0)
    vm.need(*[("w", u) for u in range(cfg.prea)])
    e("s_barrier")
    if not cfg.hst: stamp(10)
    oissue(0)
    oaddr(1)
    wq = [(u, t) for u in range(cfg.wpoll, 16) for t in range(4)]
    wts = [0 if (i < cfg.wfirst or i > 13) else (100 if i <= 16 - cfg.ndef else cfg.wtail) for i in range(16)]
    R, done = len(wq), 0
    for i in range(16):
        if i + 1 < 16:
            oissue(i + 1)
        tgt = -(-(sum(wts[:i+1]) * R) // sum(wts))
        tgt = max(tgt, sum(1 for (u, t) in wq if u <= i + 1))
        tgt = min(tgt, sum(1 for (u, t) in wq if u <= max(6, i + 5)))
        grp = wq[done:tgt]; done = max(done, tgt)
        for u in sorted(set(g[0] for g in grp)):
            wdma(u, [t for (uu, t) in grp if uu == u])
        if i + 2 < 16:
            oaddr(i + 2)
        vm.need(("o", i), ("w", i))
        e(f"s_barrier                               ; C_{i}")
        if cfg.hst == 2:
            if i >= 2: stamp(i - 1)
            continue
        if i == 0: stamp(12)
        if i == 4: stamp(13)
        if i == 15: stamp(14)
    assert done == R
    e("s_branch L_FIN")
    lab("L_H_NOP2")
    late_vw(9)
    e("s_waitcnt vmcnt(0) lgkmcnt(0)")
    e("s_barrier                               ; B_11")
    e("s_barrier                               ; E")
    e("s_branch L_FIN")

def compute():
    lab("L_COMPUTE")
    lg = Counter(A, "lgkmcnt", 15)
    AB = 96
    BB = [128, 152]
    AA = 176
    BA = 184
    KA, FONE, FOFF, LANE, OA, VA0 = 186, 252, 253, 254, 190, 191
    KB = [192, 208, 96]
    T0 = 224
    acc = lambda T, j: (T*3+j)*4
    if cfg.prio:
        e(f"s_setprio {cfg.prio}")
    e(f"v_mov_b32 v{LANE}, v0")
    e(f"v_lshrrev_b32 v{T0}, 4, v0")
    e(f"v_and_b32 v{T0+1}, 15, v0")
    e(f"v_bfe_u32 v{T0+2}, v0, 2, 2")
    e(f"v_and_b32 v{T0+3}, 3, v0")
    ids()
    e("s_add_u32 s29, s99, s97")
    e("s_lshl_b32 s101, s29, 2")
    e(f"s_mul_i32 s43, s29, {2*FG}")
    e("s_lshr_b32 s29, s94, 3")
    e(f"s_mul_i32 s29, s29, {FG}")
    e("s_lshl_b32 s39, s27, 10")
    e("s_add_u32 s39, s39, s29")
    e("s_add_u32 s100, s43, s39")
    e(f"v_mov_b32 v{T0+8}, 0")
    e(f"v_mov_b32 v{FONE}, 1")
    e(f"v_lshlrev_b32 v{T0+10}, 7, v0")
    e("s_lshl4_add_u32 s93, s7, s94")
    e("s_waitcnt lgkmcnt(0)")
    srd(44, 24, 0, FLAG_SZ)
    srd(48, 22, 0, 256)
    e("s_cmp_lg_u32 s93, 15")
    e("s_cbranch_scc1 L_NOCLR")
    e("s_mov_b32 exec_lo, 0x1f1f1f1f")
    e("s_mov_b32 exec_hi, 0x1f1f1f1f")
    for k in range(2*FG // 8192):
        e(f"s_add_u32 s31, s43, {k*8192}")
        e(f"buffer_store_dword v{T0+8}, v{T0+10}, s[44:47], s31 offen sc1")
    e("s_mov_b64 exec, -1")
    lab("L_NOCLR")
    e(f"v_lshl_add_u32 v{T0+4}, v{T0}, 3, v{T0+2}")
    e(f"v_lshlrev_b32 v{T0+4}, 8, v{T0+4}")
    e(f"v_lshl_add_u32 v{T0+4}, v{T0+3}, 3, v{T0+4}")
    e(f"v_add_u32 v{T0+4}, {XB}, v{T0+4}")
    e(f"v_and_b32 v{T0+5}, 1, v{T0}")
    e(f"v_lshl_add_u32 v{T0+5}, v{T0+5}, 2, v{T0+2}")
    for T in range(8):
        e(f"v_xor_b32 v{T0+6}, {T}, v{T0+5}")
        e(f"v_lshl_add_u32 v{AA+T}, v{T0+6}, 5, v{T0+4}")
    e(f"v_and_b32 v{T0+6}, 6, v{T0+1}")
    e(f"v_xor_b32 v{T0+6}, v{T0+6}, v{T0}")
    e(f"v_lshlrev_b32 v{T0+6}, 4, v{T0+6}")
    e(f"v_lshl_add_u32 v{T0+6}, v{T0+1}, 7, v{T0+6}")
    e(f"s_mul_i32 s29, s7, {48*128}")
    e(f"v_add_u32 v{BA}, s29, v{T0+6}")
    e(f"v_xor_b32 v{BA+1}, 64, v{BA}")
    e("s_lshr_b32 s19, s7, 1")
    e("s_lshl_b32 s29, s19, 12")
    e(f"s_add_u32 s29, s29, {K0B}")
    e(f"v_lshrrev_b32 v{T0+6}, 1, v{T0}")
    e(f"v_xor_b32 v{T0+6}, v{T0+6}, v{T0+1}")
    e(f"v_lshlrev_b32 v{T0+6}, 4, v{T0+6}")
    e(f"v_lshl_add_u32 v{T0+6}, v{T0+1}, 8, v{T0+6}")
    e(f"v_and_b32 v{T0+7}, 1, v{T0}")
    e(f"v_lshl_add_u32 v{T0+6}, v{T0+7}, 3, v{T0+6}")
    e(f"v_add_u32 v{KA}, s29, v{T0+6}")
    e(f"v_lshrrev_b32 v{T0+6}, 2, v0")
    e(f"v_and_b32 v{T0+7}, 7, v{T0+6}")
    e(f"v_lshlrev_b32 v{T0+6}, 8, v{T0+6}")
    e(f"v_lshl_add_u32 v{T0+6}, v{T0+7}, 5, v{T0+6}")
    e(f"v_lshl_add_u32 v{T0+6}, v{T0+3}, 3, v{T0+6}")
    e("s_cmp_eq_u32 s19, 0")
    e(f"s_mov_b32 s29, {V1B}")
    e(f"s_cselect_b32 s29, {V0B}, s29")
    e(f"v_add_u32 v{VA0}, s29, v{T0+6}")
    e(f"v_lshlrev_b32 v{OA}, 4, v0")
    e("s_lshl_b32 s30, s7, 7")
    e(f"v_lshl_add_u32 v{FOFF}, v0, 13, s30")
    for i in range(96):
        e(f"v_mov_b32 v{i}, 0")
    e("s_lshl_b32 s29, s4, 5")
    e("s_add_u32 s29, s29, s26")
    e(f"s_mul_i32 s29, s29, {O_HEAD}")
    e(f"s_add_u32 s29, s29, {O_OFF}")
    srd(32, 24, "s29", O_HEAD)
    e("s_mul_i32 s29, s28, 12")
    e("s_mul_i32 s31, s7, 3")
    e("s_add_u32 s29, s29, s31")
    for j in range(3):
        e(f"s_add_u32 s31, s29, {j}")
        e("s_lshr_b32 s18, s31, 3")
        e("s_lshl_b32 s18, s18, 15")
        e("s_and_b32 s31, s31, 7")
        e("s_lshl_b32 s31, s31, 10")
        e(f"s_add_u32 s{40+j}, s31, s18")
    e(f"s_mul_i32 s18, s99, {2*FG}")
    e("s_add_u32 s18, s18, s39")
    e("s_add_u32 s18, s18, s30")
    e("s_add_u32 s18, s18, 128")
    e("s_add_u32 s8, s24, s18")
    e("s_addc_u32 s9, s25, 0")
    e("s_lshl_b32 s18, s7, 11")
    e("s_add_u32 s18, s18, s43")
    e("s_add_u32 s10, s24, s18")
    e("s_addc_u32 s11, s25, 0")
    e("s_cmp_eq_u32 s95, 2")
    e(f"s_cselect_b32 s12, {FG}, 0")
    e("s_cmp_lg_u32 s93, 15")
    e("s_cbranch_scc1 L_NOCLR2")
    e("s_waitcnt vmcnt(0)")
    e("s_mov_b64 exec, 1")
    e(f"buffer_store_dword v{FONE}, v{T0+8}, s[48:51], s101 offen sc1")
    e("s_mov_b64 exec, -1")
    lab("L_NOCLR2")

    def a_rd(T):
        return [(f"ds_read_b64_tr_b16 {vr(AB + (T & 3)*8 + s*4 + h*2, 2)}, v{AA+T} offset:{s*8192 + h*1024}", ("A", T & 3, s))
                for s in range(2) for h in range(2)]
    def b_rd(j, s, par):
        return (f"ds_read_b128 {vr(BB[par]+(j*2+s)*4,4)}, v{BA+s} offset:{j*2048}", ("B", par, j, s))
    def head_reads(par):
        a0 = a_rd(0)
        return [a0[0], a0[1], b_rd(0,0,par), a0[2], a0[3], b_rd(0,1,par), b_rd(1,0,par), b_rd(1,1,par),
                b_rd(2,0,par), b_rd(2,1,par)] + a_rd(1)
    def k_rd(kt):
        return [(f"ds_read_b64 {vr(KB[kt%3]+4*s+2*h,2)}, v{AA+2*s+h} offset:{kpos(kt) - K0B}", ("K", kt % 3, s))
                for s in range(4) for h in range(2)]
    def cvtq(s):
        return [x for j in range(3) for x in cvt4(acc(2*s, j), acc(2*s, j), acc(2*s+1, j))]
    def emit(x):
        if isinstance(x, tuple):
            lg.issue(x[0], x[1])
        else:
            e(x)
    def qstage(par, last=False, exit_label=None):
        att = {n: [] for n in range(48)}
        for T, n0 in ((2,0),(3,4),(4,8),(5,12),(6,18),(7,24)):
            for k, r in enumerate(a_rd(T)):
                att[n0+k].append(r)
        if not last:
            adv = [f"v_add_u32 v{AA+T}, s30, v{AA+T}" for T in range(8)] + [f"v_add_u32 v{BA+s}, s30, v{BA+s}" for s in range(2)]
            for k, x in enumerate(adv):
                att[28 + k//2].append(x)
            att[16] += ["s_mov_b32 s30, s88", "s_mov_b32 s88, s89"]
            att[17] += ["s_mov_b32 s89, s90", "s_mov_b32 s90, s30"]
            if par == 0:
                att[22].append("s_add_u32 s29, s29, 1")
                att[23].append("s_cmp_eq_u32 s29, 5")
            for k, r in enumerate(head_reads(par ^ 1)):
                att[34+k].append(r)
        else:
            for k in range(8):
                att[(4, 5, 8, 9, 12, 16, 22, 28)[k]].append(f"v_xor_b32 v{AA+k}, {32*k}, v{KA}")
            for k, r in enumerate(k_rd(0) + k_rd(1)[:4]):
                att[min(47, cfg.kbar + 1 + k//2)].append(r)
            for k, x in enumerate(cvtq(0)):
                att[(16, 17, 17, 18, 19, 20, 21, 22, 23, 23, 24, 25)[k]].append(x)
            for k, x in enumerate(cvtq(1)):
                att[(26, 27, 28, 29, 29, 30, 30, 31, 31, 32, 32, 33)[k]].append(x)
            for k, x in enumerate(cvtq(2)):
                att[40 + (k*2)//3].append(x)
        for n in range(48):
            T, j, s = n//6, (n % 6)//2, n % 2
            if n % 6 == 0:
                lg.need(("A", T & 3, 0), ("A", T & 3, 1), *([("B", par, 0, 0), ("B", par, 0, 1)] if T == 0 else []))
            if T == 0 and n == 2:
                lg.need(*[("B", par, jj, ss) for jj in (1, 2) for ss in (0, 1)])
            e(mfma(acc(T, j), AB + (T & 3)*8 + s*4, BB[par] + (j*2+s)*4))
            for x in att[n]:
                emit(x)
            if cfg.qn and (n * cfg.qn) // 48 != ((n + 1) * cfg.qn) // 48:
                e("s_nop 5")
            if n == (cfg.kbar if last else 33):
                lg.drain()
                e("s_barrier                               ; B_{i+1}: this stage read, next one (or K) landed")
        if exit_label:
            e(f"s_cbranch_scc1 {exit_label}")

    e("s_mov_b32 s29, 0")
    e(f"s_mov_b32 s88, {2*SLOT}")
    e(f"s_mov_b32 s89, {(-SLOT) & 0xffffffff}")
    e("s_mov_b32 s90, s89")
    e("s_barrier                               ; B_0")
    stamp(1)
    for r in head_reads(0):
        emit(r)
    lab("L_QLOOP")
    qstage(0, exit_label="L_QDONE")
    saved = [set(t) for t in lg.pend]
    qstage(1)
    e("s_branch L_QLOOP")
    lab("L_QDONE")
    lg.pend = saved
    qstage(1, last=True)
    stamp(2)
    QB = lambda s, j: acc(2*s, j)
    sregs = [acc(T, j) for T in (1, 3, 5) for j in range(3)] + [BB[0] + 4*k for k in range(6)] + [acc(7, j) for j in range(3)]
    SS = lambda kt, j: sregs[kt*3 + j]
    M = T0
    vaddr = [f"v_xor_b32 v{AA+T}, {32*T}, v{VA0}" for T in range(8)]
    c = math.log2(math.e) / math.sqrt(128.0)
    cbits = struct.unpack("<I", struct.pack("<f", c))[0]
    ONES = T0 + 12
    for kt in range(6):
        lg.need(*[("K", kt % 3, s) for s in range(4)])
        order = [(j, s) for j in range(3) for s in range(4)] if kt else \
                [(j, s) for j in range(3) for s in range(3)] + [(j, 3) for j in range(3)]
        att = {n: [] for n in range(12)}
        rd = k_rd(kt + 2) if kt + 2 < 6 else []
        if kt == 0:
            for k, x in enumerate(k_rd(1)[4:]):
                att[k//2].append(x)
            for k, x in enumerate(cvtq(3)):
                att[2 + k//2].append(x)
            for k, x in enumerate(rd):
                att[8 + k//2].append(x)
        else:
            for k, x in enumerate(rd):
                att[k].append(x)
        if kt == 4:
            for k, x in enumerate(vaddr):
                att[(0, 0, 1, 1, 2, 2, 10, 10)[k]].append(x)
        if kt == 5:
            att[0] += [f"s_mov_b32 s30, {cbits:#x}", f"s_mov_b32 s31, {cbits:#x}"]
            for r in range(4):
                att[1 + r//2].append(f"v_mov_b32 v{ONES+r}, 0x3f803f80")
        if kt >= 1:
            for j in range(3):
                b = SS(kt-1, j)
                if kt == 1:
                    att[5 + 2*j] += [f"v_max3_f32 v{M+j}, v{b}, v{b+1}, v{b+2}"]
                    att[6 + 2*j] += [f"v_max_f32 v{M+j}, v{M+j}, v{b+3}"]
                else:
                    o = 6 if kt < 4 else 4
                    att[o + 2*j] += [f"v_max3_f32 v{M+j}, v{M+j}, v{b}, v{b+1}"]
                    att[o + 1 + 2*j] += [f"v_max3_f32 v{M+j}, v{M+j}, v{b+2}, v{b+3}"]
        if kt == 5:
            b = SS(5, 0)
            att[10] += [f"v_max3_f32 v{M}, v{M}, v{b}, v{b+1}"]
            att[11] += [f"v_max3_f32 v{M}, v{M}, v{b+2}, v{b+3}"]
        for n, (j, s) in enumerate(order):
            e(mfma(SS(kt, j), KB[kt % 3] + 4*s, QB(s, j), "0" if s == 0 else None))
            for x in att[n]:
                emit(x)
    b = SS(5, 1)
    e(f"v_mov_b32 v{M+4}, v{M}")
    e(f"v_max3_f32 v{M+1}, v{M+1}, v{b}, v{b+1}")
    e(f"v_max3_f32 v{M+1}, v{M+1}, v{b+2}, v{b+3}")
    e(f"v_permlane32_swap_b32 v{M}, v{M+4}")
    e(f"v_mov_b32 v{M+5}, v{M+1}")
    e(f"v_max_f32 v{M}, v{M}, v{M+4}")
    e(f"v_mov_b32 v{M+4}, v{M}")
    b = SS(5, 2)
    e(f"v_permlane32_swap_b32 v{M+1}, v{M+5}")
    e(f"v_max3_f32 v{M+2}, v{M+2}, v{b}, v{b+1}")
    e(f"v_max3_f32 v{M+2}, v{M+2}, v{b+2}, v{b+3}")
    e(f"v_permlane16_swap_b32 v{M}, v{M+4}")
    e(f"v_mov_b32 v{M+6}, v{M+2}")
    e(f"v_max_f32 v{M+1}, v{M+1}, v{M+5}")
    e(f"v_mov_b32 v{M+5}, v{M+1}")
    e(f"v_permlane32_swap_b32 v{M+2}, v{M+6}")
    e(f"v_max_f32 v{M}, v{M}, v{M+4}")
    e(f"v_permlane16_swap_b32 v{M+1}, v{M+5}")
    e(f"v_max_f32 v{M+2}, v{M+2}, v{M+6}")
    e(f"v_mov_b32 v{M+6}, v{M+2}")
    e(f"v_max_f32 v{M+1}, v{M+1}, v{M+5}")
    e("s_nop 0")
    e(f"v_permlane16_swap_b32 v{M+2}, v{M+6}")
    e(f"v_max_f32 v{M+2}, v{M+2}, v{M+6}")
    NM = T0 + 4
    for j in range(3):
        e(f"v_mul_f32 v{NM+2*j}, s30, v{M+j}")
    stamp(3)
    pregs = [BB[1] + 4*k for k in range(6)] + [AB + 4*k for k in range(3)]
    PB = lambda s, j: pregs[s*3 + j]
    LS = T0 + 16
    VB = [KB[0], KB[0]+12, AB+12]
    def v_rd(T):
        return [(f"ds_read_b64_tr_b16 {vr(VB[T%3]+4*s+2*h,2)}, v{AA+T} offset:{(32*s+16*h)*256}", ("V", T % 3))
                for s in range(3) for h in range(2)]
    def v_start():
        stamp(4)
        e("s_barrier                               ; B_11: V visible")
        stamp(5)
        for r in v_rd(0) + v_rd(1):
            emit(r)
    pend_m = []
    for s in range(3):
        for j in range(3):
            if cfg.vbar and s*3 + j == 9 - cfg.vbar:
                v_start()
            for kt in (2*s, 2*s+1):
                b = SS(kt, j)
                for h in range(2):
                    e(f"v_pk_fma_f32 {vr(b+2*h,2)}, {vr(b+2*h,2)}, s[30:31], {vr(NM+2*j,2)} op_sel_hi:[1,1,0] neg_lo:[0,0,1] neg_hi:[0,0,1]")
            if pend_m:
                e(pend_m.pop())
            for kt in (2*s, 2*s+1):
                b = SS(kt, j)
                for r in range(4):
                    e(f"v_exp_f32 v{b+r}, v{b+r}")
            for x in cvt4(PB(s, j), SS(2*s, j), SS(2*s+1, j)):
                e(x)
            pend_m.append(mfma(LS+4*j, ONES, PB(s, j), "0" if s == 0 else None))
    if not cfg.vbar:
        v_start()
        e(pend_m.pop())
    RC = T0 + 4
    def epi(s, pk=False):
        r = []
        for j in range(3):
            a0, a1 = acc(2*s, j), acc(2*s+1, j)
            for a in (a0, a1):
                if pk:
                    r += [f"v_pk_mul_f32 {vr(a+2*h,2)}, {vr(a+2*h,2)}, {vr(RC+2*j,2)} op_sel_hi:[1,0]" for h in range(2)]
                else:
                    r += [f"v_mul_f32 v{a+k}, v{a+k}, v{RC+2*j}" for k in range(4)]
            r += cvt4(a0, a0, a1)
            r.append(f"buffer_store_dwordx4 {vr(a0,4)}, v{OA}, s[32:35], s{40+j} offen{cfg.o_st}")
        if s < 3:
            r.append(f"v_add_u32 v{OA}, 8192, v{OA}")
        return r
    backlog = []
    for T in range(8):
        lg.need(("V", T % 3))
        rd = v_rd(T+2) if T + 2 < 8 else []
        if T == 1:
            backlog += [f"v_rcp_f32 v{RC+2*j}, v{LS+4*j}" for j in range(3)]
        n = 0
        for j in range(3):
            for s in range(3):
                e(mfma(acc(T, j), VB[T % 3] + 4*s, PB(s, j), "0" if s == 0 else None))
                if pend_m and n == 1:
                    e(pend_m.pop())
                k = 0
                if rd:
                    emit(rd.pop(0)); k += 1
                if T >= 2 and T % 2 == 0 and n == 1:
                    backlog += epi(T//2 - 1)
                while backlog and k < 2:
                    e(backlog.pop(0)); k += 1
                n += 1
    for x in backlog:
        e(x)
    stamp(6)
    for x in epi(3, True):
        e(x)
    stamp(7)
    PA = [64, 96]; PBb = [128, 160]
    QA, QB2 = 192, 204
    T1 = 206
    HOLD = 212
    e(f"v_lshrrev_b32 v{T1+2}, 2, v{LANE}")
    e(f"v_and_b32 v{T1+3}, 7, v{T1+2}")
    e("s_and_b32 s29, s7, 1")
    e("s_lshl_b32 s30, s29, 2")
    e(f"v_xor_b32 v{T1+3}, s30, v{T1+3}")
    e(f"v_lshlrev_b32 v{T1+2}, 8, v{T1+2}")
    e(f"v_lshl_add_u32 v{T1+2}, v{T1+3}, 5, v{T1+2}")
    e(f"v_and_b32 v{T1+3}, 3, v{LANE}")
    e(f"v_lshl_add_u32 v{T1+2}, v{T1+3}, 3, v{T1+2}")
    for T in range(4):
        e(f"v_xor_b32 v{QA+T}, {32*T}, v{T1+2}")
        e(f"v_add_u32 v{QA+4+T}, {WSL[3]}, v{QA+T}")
        e(f"v_add_u32 v{QA+8+T}, {WSL[4]}, v{QA+T}")
    e(f"v_lshlrev_b32 v{T1}, 4, v{LANE}")
    e("s_lshl_b32 s30, s19, 12")
    e(f"s_add_u32 s30, s30, {V1B}")
    e(f"v_add_u32 v{QB2}, s30, v{T1}")
    e(f"v_add_u32 v{QB2+1}, {V0B - V1B}, v{QB2}")
    nd = 2 if cfg.dup else 1
    fl = [[13, 14, 15, 16], [17, 18, 88, 89]]
    e("s_cmp_lg_u32 s95, 1")
    e("s_cselect_b32 s15, 1, 0")
    e("s_mov_b32 s16, s15")
    e("s_mov_b32 s13, 0")
    e("s_mov_b32 s14, 0")
    if cfg.dup:
        for r in fl[1]:
            e(f"s_mov_b32 s{r}, 0")
    e(f"s_mov_b32 s31, {cfg.spin}")
    e("s_cmp_eq_u32 s7, 0")
    e("s_cbranch_scc1 L_FLAG")
    e("s_waitcnt vmcnt(0)")
    stamp(8)
    e("s_barrier                               ; E")
    e("s_branch L_NOFLAG")
    lab("L_FLAG")
    e(f"s_mov_b64 exec, {3 if cfg.dup else 1}")
    e("s_waitcnt vmcnt(0)")
    stamp(8)
    e("s_barrier")
    e(f"buffer_store_dword v{FONE}, v{FOFF}, s[44:47], s100 offen sc1")
    e("s_mov_b64 exec, -1")
    lab("L_NOFLAG")
    e("s_cmp_eq_u32 s94, 15")
    e("s_cbranch_scc1 L_FIN")
    lab("L_POLL")
    for k in range(4):
        e(f"s_cmp_lg_u32 s{fl[0][k]}, 0")
        e(f"s_cbranch_scc1 L_PS{k}")
        for d in range(nd):
            if k < 2:
                e(f"s_load_dword s{fl[d][k]}, s[10:11], s12 offset:{k*1024 + d*8192} glc")
            else:
                e(f"s_load_dword s{fl[d][k]}, s[10:11], {FG + (k-2)*1024 + d*8192} glc")
        lab(f"L_PS{k}")
    e("s_sub_u32 s31, s31, 1")
    e("s_cbranch_scc1 L_GO")
    e("s_waitcnt lgkmcnt(0)")
    if cfg.dup:
        for k in range(4):
            e(f"s_or_b32 s{fl[0][k]}, s{fl[0][k]}, s{fl[1][k]}")
    e("s_and_b32 s5, s13, s14")
    e("s_and_b32 s30, s15, s16")
    e("s_and_b32 s5, s5, s30")
    e("s_cbranch_scc0 L_POLL")
    lab("L_GO")
    e("s_barrier                               ; D")
    e("s_waitcnt lgkmcnt(0)")
    e("s_mul_i32 s18, s99, 15")
    e("s_lshl2_add_u32 s18, s94, s18")
    e("s_lshl2_add_u32 s18, s18, s7")
    e(f"s_mul_i32 s18, s18, {P_W}")
    e(f"s_add_u32 s18, s18, {PART_OFF}")
    srd(32, 24, "s18", 16*P_W)
    for d in range(4):
        e(f"s_add_u32 s18, s97, {d}")
        e("s_and_b32 s18, s18, 3")
        e(f"s_mul_i32 s18, s18, {4*P_W}")
        e(f"s_add_u32 s{36+d}, s18, {max(d-1,0)*2048}")
        if d:
            e(f"s_sub_u32 s18, s97, {d}")
            e("s_and_b32 s18, s18, 3")
            e(f"s_mul_i32 s{88+d}, s18, {2*FG}")
    e("s_mul_i32 s18, s98, 3")
    e("s_add_u32 s18, s18, s95")
    e("s_lshl1_add_u32 s18, s18, s19")
    e("s_lshl2_add_u32 s18, s18, s97")
    e(f"s_mul_i32 s18, s18, {16*2560}")
    e("s_mul_i32 s30, s4, 1280")
    e("s_add_u32 s18, s18, s30")
    e("s_lshl1_add_u32 s30, s96, s29")
    e("s_lshl_b32 s30, s30, 7")
    e("s_add_u32 s18, s18, s30")
    e(f"s_sub_u32 s30, {768*2560}, s18")
    srd(40, 20, "s18", "s30")
    e(f"v_and_b32 v{T1+1}, 15, v{LANE}")
    e(f"v_mul_u32_u24 v{T1+1}, 2560, v{T1+1}")
    e(f"v_and_b32 v{T1+2}, 48, v{LANE}")
    e(f"v_add_u32 v{T1+1}, v{T1+1}, v{T1+2}")

    ND = cfg.ndef
    assert 2 <= ND <= 7
    pacc = lambda T, j: (T*4+j)*4
    def breg(u, j):
        if j == 0 and 16 - ND <= u < 14:
            return HOLD + 8*(u - (16 - ND))
        return PBb[u & 1] + j*8
    def pa_rd(u, T, buf):
        k = u % 7
        areg = QA + 4*(0 if k < 3 else 1 if k == 3 else 2)
        aoff = WSL[k] - (0 if k < 3 else WSL[3] if k == 3 else WSL[4])
        return [(f"ds_read_b64_tr_b16 {vr(PA[buf]+T*8+s*4+h*2,2)}, v{areg+T} offset:{aoff + (32*s+16*h)*256}", ("PA", buf, T))
                for s in range(2) for h in range(2)]
    def p_reads(u):
        b = u & 1
        bb = lambda j: [(f"ds_read_b128 {vr(breg(u, j)+s*4,4)}, v{QB2+s} offset:{(u%3)*8192 + j*1024}", ("PB", b, j)) for s in range(2)]
        if u < cfg.prea:
            return bb(0) + bb(1) + bb(2) + bb(3)
        if u >= 16 - ND:
            return pa_rd(u,0,b) + bb(1) + bb(2) + bb(3) + pa_rd(u,1,b) + pa_rd(u,2,b) + pa_rd(u,3,b) + bb(0)
        return pa_rd(u,0,b) + bb(0) + bb(1) + bb(2) + bb(3) + pa_rd(u,1,b) + pa_rd(u,2,b) + pa_rd(u,3,b)
    def pm(u, T, j, s, buf=None):
        return mfma(pacc(T, j), PA[u & 1 if buf is None else buf]+T*8+s*4, breg(u, j)+s*4, "0" if (u == 0 and s == 0) else None)
    def send(d):
        r = []
        for Tp in range(2):
            a0 = pacc(2*Tp, d)
            r += cvt4(a0, a0, pacc(2*Tp+1, d))
            r.append(f"buffer_store_dwordx4 {vr(a0,4)}, v{T1}, s[32:35], s{36+d} offen offset:{Tp*1024}{cfg.p_st}")
        return r
    lg.pend = []
    for u in range(cfg.prea):
        for T in range(4):
            for r in pa_rd(u, T, u):
                emit(r)
    e("s_barrier                               ; C_0")
    stamp(9)
    for r in p_reads(0):
        emit(r)
    for u in range(15):
        b = u & 1
        rd = p_reads(u+1)
        js = (1, 2, 3) if u >= 16 - ND else (0, 1, 2, 3)
        seq = [(T, j, s) for T in range(4) for j in js for s in range(2)]
        pb = min(cfg.pbar, 5) if len(js) == 3 else cfg.pbar
        for n, (T, j, s) in enumerate(seq):
            if u == 0:
                lg.need(("PA", b, T), ("PB", b, j))
            elif n == 0:
                lg.need(("PA", b, 0), *[("PB", b, jj) for jj in js])
            e(pm(u, T, j, s))
            if n == pb:
                lg.drain()
                e(f"s_barrier                               ; C_{u+1}")
            if n > pb and rd:
                emit(rd.pop(0))
                if len(js) == 3 and n < pb + 9:
                    emit(rd.pop(0))
        assert not rd
    seq = [(15, T, j, s) for j in (1, 2, 3) for T in range(4) for s in range(2)] + \
          [(uu, T, 0, s) for uu in (14, 15) for T in range(4) for s in range(2)]
    older = list(range(16 - ND, 14))
    fill = []
    for n, (uu, T, j, s) in enumerate(seq):
        lg.need(("PA", 1, T), ("PB", 1, j))
        e(pm(uu, T, j, s))
        if n in (9, 17, 25):
            fill += send(n // 8)
        if n >= 32 and older:
            fill += pa_rd(older[0], (n - 32)//2, 0)[2*(n & 1):2*(n & 1)+2]
        for _ in range(2):
            if fill:
                emit(fill.pop(0))
    assert not fill
    def old_stage(k):
        for T in range(4):
            lg.need(("PA", k & 1, T))
            for s in range(2):
                e(pm(older[k], T, 0, s, k & 1))
                if k + 1 < len(older):
                    for r in pa_rd(older[k+1], T, (k+1) & 1)[2*s:2*s+2]:
                        emit(r)
    nbefore = min(len(older), 2)
    for k in range(nbefore):
        old_stage(k)
    stamp(10)
    e("s_add_u32 s37, s36, 4096")
    e(f"s_mov_b64 exec, {3 if cfg.dup else 1}")
    e("s_waitcnt vmcnt(0)")
    stamp(11)
    e(f"buffer_store_dword v{FONE}, v{FOFF}, s[44:47], s100 offen offset:128 sc1")
    e("s_mov_b64 exec, -1")
    for k in range(nbefore, len(older)):
        old_stage(k)
    RB = 136
    def p3_loads(d0):
        for dd in range(d0, 4):
            for d in range(nd):
                e(f"s_load_dword s{12+dd+3*d}, s[8:9], s{88+dd} offset:{d*8192} glc")
    p3_loads(1)
    e("s_mov_b32 s30, 0xffff0000")
    e("s_waitcnt lgkmcnt(0)")
    for d in (1, 2, 3):
        e(f"s_mov_b32 s31, {cfg.spin}")
        lab(f"L_P3W{d}")
        if cfg.dup:
            e(f"s_or_b32 s5, s{12+d}, s{15+d}")
        else:
            e(f"s_cmp_lg_u32 s{12+d}, 0")
        e(f"s_cbranch_scc1 L_P3G{d}")
        p3_loads(d)
        e("s_sub_u32 s31, s31, 1")
        e("s_waitcnt lgkmcnt(0)")
        e(f"s_cbranch_scc0 L_P3W{d}")
        lab(f"L_P3G{d}")
        for f in (2*d - 2, 2*d - 1):
            e(f"buffer_load_dwordx4 {vr(RB+4*f,4)}, v{T1}, s[32:35], s{36 + f//4} offen offset:{(f%4)*1024}{cfg.p_ld}")
    stamp(12)
    TT = 168
    def finish(Tp):
        a0 = pacc(2*Tp, 0)
        for x in cvt4(a0, a0, pacc(2*Tp+1, 0)):
            e(x)
        e("s_nop 0")
        e(f"v_permlane32_swap_b32 v{a0}, v{a0+2}")
        e(f"v_permlane32_swap_b32 v{a0+1}, v{a0+3}")
        e("s_nop 0")
        e(f"v_permlane16_swap_b32 v{a0}, v{a0+2}")
        e(f"v_permlane16_swap_b32 v{a0+1}, v{a0+3}")
        e(f"buffer_store_dwordx4 {vr(a0,4)}, v{T1+1}, s[40:43], 0 offen offset:{Tp*64}{cfg.out_st}")
    for f in range(6):
        e(f"s_waitcnt vmcnt({5-f if f < 5 else 1})")
        Tp = f & 1
        for k in range(4):
            x = RB + 4*f + k
            e(f"v_lshlrev_b32 v{TT+2*k}, 16, v{x}")
            e(f"v_and_b32 v{TT+2*k+1}, s30, v{x}")
        for k in range(4):
            a = pacc(2*Tp + k//2, 0) + 2*(k & 1)
            e(f"v_pk_add_f32 {vr(a,2)}, {vr(a,2)}, {vr(TT+2*k,2)}")
        if f == 5: stamp(13)
        if f >= 4:
            finish(Tp)
    stamp(14)
    lab("L_FIN")
    if cfg.stamps:
        e("s_waitcnt vmcnt(0)")
        stamp(15)
        stamp_flush()
    lab("L_END")
    e("s_endpgm")

def kd(name):
    return f""".amdhsa_kernel {name}
  .amdhsa_next_free_vgpr 256
  .amdhsa_next_free_sgpr 102
  .amdhsa_accum_offset 256
  .amdhsa_group_segment_fixed_size 0
  .amdhsa_kernarg_size 104
  .amdhsa_user_sgpr_count 2
  .amdhsa_user_sgpr_kernarg_segment_ptr 1
  .amdhsa_system_sgpr_workgroup_id_x 1
.end_amdhsa_kernel
"""

prologue(); helper(); compute()
probs = check_hazards(A.L)
for p in probs:
    print("HAZARD:", p, file=sys.stderr)
K = NAME + "_kernel"
if cfg.diag:
    from diag import gen_diag
    hdr = (f"; diagnostic build\n; @launch kernel={K} grid=(256,1,1) block=(512,1,1) lds=163840\n"
           "; @launch kernel=d_kernel grid=(1,1,1) block=(256,1,1) lds=256\n")
else:
    hdr = open(os.path.join(os.path.dirname(os.path.abspath(__file__)), "header.txt")).read()
out = hdr + '.amdgcn_target "amdgcn-amd-amdhsa--gfx950"\n.text\n'
out += f".globl {K}\n.p2align 8\n.type {K},@function\n" + A.text()
if cfg.diag:
    out += ".globl d_kernel\n.p2align 8\n.type d_kernel,@function\n" + "\n".join(gen_diag(cfg.diag.strip(), STAMP_OFF)) + "\n"
out += '.section .rodata,"a"\n.p2align 6\n' + kd(K)
if cfg.diag:
    out += ".p2align 6\n" + kd("d_kernel")
open(sys.argv[1], "w").write(out)
sys.exit(1 if probs else 0)
```

```python
import sys, os, math, struct
sys.path.insert(0, os.path.dirname(os.path.abspath(__file__)))
from asmlib import *

NAME = "concat_heads__gqa_block_cached__mha_block_cached__near_ridge"

class Cfg:
    nt_x = ""; nt_wq = ""; nt_k = " nt"; nt_v = " nt"; nt_wo = ""
    o_st = " sc1"; o_ld = " sc1"; out_st = " sc1"; p_st = " sc1"; p_ld = " sc1"
    rot = 3
    scheds = " S0 S1/S2/S3/S4/S5/S6/S7/S8/S9/K012/K345 V0/V1|S0 S1/S2/K01234 Va S3/S4/S5/S6/S7/S8/S9/K5/V1/W0"
    smap = " 0011"
    wp = " 2,2/2,2"
    wpoll = 7
    wfirst = 2
    wtail = 100
    rtab = " 0,2,5,8,10,13"
    rnt = 0
    vwm = 2
    prea = 2
    vbar = 0
    ndef = 2
    pbar = 5
    kbar = 33
    dup = 0
    force = -1
    nsamp = 4
    cpf = 1
    prio = 1
    stamps = 0
    hst = 0
    spin = 1000000
    diag = ""
    qn = 0
cfg = Cfg()
for a in sys.argv[2:]:
    k, v = a.split("=")
    old = getattr(cfg, k)
    setattr(cfg, k, int(v) if isinstance(old, int) else ((" " + v.replace("+", " ")) if v else ""))

A = Asm()
e, lab, cmt = A.e, A.lab, A.cmt

STAMP_OFF = 64 << 20
GS = 4 << 20
FG = 16384
FLAG_IN = 96 * FG
PROBE_IN = 100 * FG
O_HEAD = 12 * FG
SLOT = 40960
XB = 24576
PHYS = [0, 2*SLOT, SLOT]
V1B, V0B, K0B = 49152, 90112, 114688
WSL = [0, 16384, 32768, 73728, 114688, 131072, 147456]
kpos = lambda kt: K0B + ((kt + 1) % 6) * 8192

def stamp(i):
    if cfg.stamps:
        e(f"{'s_memtime' if cfg.stamps == 2 else 's_memrealtime'} s[{52+2*i}:{53+2*i}]")
def stamp_flush():
    e(f"s_add_u32 s84, s24, {STAMP_OFF}")
    e("s_addc_u32 s85, s25, 0")
    e("s_mov_b32 s86, 0x100000")
    e("s_mov_b32 s87, 0x20000")
    e("s_lshl_b32 s92, s2, 3")
    e("s_add_u32 s92, s92, s7")
    e("s_lshl_b32 s92, s92, 6")
    e("s_waitcnt lgkmcnt(0)")
    e("v_mbcnt_lo_u32_b32 v251, -1, 0")
    e("v_lshlrev_b32 v251, 2, v251")
    for i in range(16):
        e(f"v_writelane_b32 v250, s{52+2*i}, {i}")
    e("s_mov_b64 exec, 0xffff")
    e("buffer_store_dword v250, v251, s[84:87], s92 offen sc1")

def srd(d, lo, off, size):
    e(f"s_add_u32 s{d}, s{lo}, {off}")
    e(f"s_addc_u32 s{d+1}, s{lo+1}, 0")
    e(f"s_mov_b32 s{d+2}, {size}")
    e(f"s_mov_b32 s{d+3}, 0x20000")

def align_ws():
    e("s_add_u32 s24, s24, 0x1fffff")
    e("s_addc_u32 s25, s25, 0")
    e("s_and_b32 s24, s24, 0xffe00000")

def cvt4(d, a0, a1):
    return [f"v_cvt_pk_bf16_f32 v{d}, v{a0}, v{a0+1}", f"v_cvt_pk_bf16_f32 v{d+1}, v{a0+2}, v{a0+3}",
            f"v_cvt_pk_bf16_f32 v{d+2}, v{a1}, v{a1+1}", f"v_cvt_pk_bf16_f32 v{d+3}, v{a1+2}, v{a1+3}"]

def prologue():
    lab(NAME + "_kernel")
    e("s_cmp_ge_u32 s2, 256")
    e("s_cbranch_scc1 L_END")
    e("s_and_b32 s3, s2, 7")
    e("s_lshr_b32 s4, s3, 2")
    e("s_mul_i32 s5, s4, 40")
    e("s_load_dwordx8 s[8:15], s[0:1], s5")
    e("s_load_dwordx2 s[16:17], s[0:1], s5 offset:32")
    e("s_load_dwordx4 s[20:23], s[0:1], 80")
    e("s_load_dwordx2 s[24:25], s[0:1], 96")
    if cfg.stamps:
        for i in range(1, 16):
            e(f"s_mov_b32 s{52+2*i}, 0")
    stamp(0)
    if cfg.cpf:
        cmt("instruction prefetch into L2: workgroup r reads code lines 8r..8r+7 (values unused)")
        e("s_getpc_b64 s[90:91]")
        lab("L_PC")
        e("s_and_b32 s18, s2, 0xf8")
        e("v_xor_b32 v1, 256, v0")
        e("v_add_u32 v235, s18, v1")
        e("v_lshlrev_b32 v235, 7, v235")
        e("v_min_u32 v235, L_END-L_PC, v235")
        e("v_cmp_gt_u32 vcc, 8, v1")
        e("s_and_saveexec_b64 s[18:19], vcc")
        e("s_cbranch_execz L_NOCPF")
        e("global_load_dword v235, v235, s[90:91]")
        lab("L_NOCPF")
        e("s_mov_b64 exec, -1")
    e("v_lshrrev_b32 v1, 6, v0")
    e("v_xor_b32 v1, 4, v1")
    e("s_lshr_b32 s6, s2, 3")
    e("v_readfirstlane_b32 s7, v1")
    e("v_and_b32 v0, 63, v0")
    e("s_bfe_u32 s26, s6, 0x10002")
    e("s_lshr_b32 s27, s6, 3")
    e("s_and_b32 s6, s6, 3")
    e("s_lshl_b32 s27, s27, 2")
    e("s_lshl_b32 s26, s26, 4")
    e("s_or_b32 s6, s6, s27")
    e("s_or_b32 s6, s6, s26")
    if cfg.stamps:
        e("s_lshl_b32 s2, s6, 3")
        e("s_or_b32 s2, s2, s3")
    e("s_and_b32 s97, s3, 3")
    e("s_and_b32 s27, s6, 7")
    e("s_lshl3_add_u32 s26, s97, s27")
    e("s_lshr_b32 s28, s6, 3")
    e("s_cmp_lt_u32 s7, 4")
    e("s_cbranch_scc1 L_COMPUTE")

def ids():
    cmt("s94 = m (15: no output tile), s95 = tt, s96 = nt, s97 = head group, s98 = set, s99 = (branch*2+set)*4")
    e("s_and_b32 s94, s6, 15")
    e("s_mul_i32 s95, s94, 52")
    e("s_lshr_b32 s95, s95, 8")
    e("s_mul_i32 s96, s95, 5")
    e("s_sub_u32 s96, s94, s96")
    e("s_lshr_b32 s98, s6, 4")
    e("s_lshl1_add_u32 s99, s4, s98")
    e("s_lshl_b32 s99, s99, 2")

def helper():
    cmt("================ loader waves: x / wq ring, K, V, then wo / O rings (all LDS-DMA)")
    vm = Counter(A, "vmcnt", 63)
    e("s_sub_u32 s19, s7, 4")
    if cfg.rot == 3:
        e("s_add_u32 s30, s27, s28"); e("s_and_b32 s30, s30, 3"); e("s_mul_i32 s30, s30, 5"); e("s_lshr_b32 s30, s30, 1")
    elif cfg.rot == 2:
        e("s_lshl1_add_u32 s30, s28, s27"); e("s_and_b32 s30, s30, 7"); e("s_mul_i32 s30, s30, 5"); e("s_lshr_b32 s30, s30, 2")
    elif cfg.rot == 1:
        e("s_add_u32 s30, s27, s28"); e("s_and_b32 s30, s30, 1"); e("s_mul_i32 s30, s30, 5")
    elif cfg.rot >= 10:
        tab = [int(c) for c in str(cfg.rot)[1:]]
        e("s_add_u32 s30, s27, s28"); e("s_and_b32 s30, s30, 3"); e("s_lshl_b32 s30, s30, 2")
        e(f"s_lshr_b32 s30, {sum(b << (4*i) for i, b in enumerate(tab)):#x}, s30"); e("s_and_b32 s30, s30, 15")
    XV, WV = 10, 14
    e("v_lshrrev_b32 v1, 4, v0")
    e("v_and_b32 v2, 15, v0")
    e("v_lshlrev_b32 v3, 1, v1")
    e("v_xor_b32 v4, v2, v3")
    e("v_lshlrev_b32 v4, 4, v4")
    e("s_lshl_b32 s29, s19, 4")
    e("v_add_u32 v5, s29, v1")
    e(f"v_lshl_add_u32 v{WV}, v5, 13, v4")
    e(f"v_add_u32 v{WV+1}, {32768-1024}, v{WV}")
    e(f"v_xor_b32 v5, 128, v{WV}")
    e(f"v_add_u32 v{WV+2}, {2*(32768-1024)}, v5")
    e(f"v_add_u32 v{WV+3}, {3*(32768-1024)}, v5")
    e("v_lshrrev_b32 v5, 3, v0")
    e("v_and_b32 v6, 7, v0")
    e("v_and_b32 v7, 6, v5")
    e("v_xor_b32 v6, v6, v7")
    e("s_mul_i32 s29, s19, 48")
    e("v_add_u32 v5, s29, v5")
    e("v_mul_u32_u24 v5, 1280, v5")
    e(f"v_lshl_add_u32 v{XV}, v6, 4, v5")
    for t in range(1, 4):
        e(f"v_add_u32 v{XV+t}, {t*(10240-1024)}, v{XV}")
    e(f"s_mul_i32 s88, s19, {48*128}")
    e("s_lshl_b32 s89, s19, 12")
    e(f"s_mul_i32 s29, s28, {192*1280}")
    e("s_lshl_b32 s31, s26, 8")
    e(f"s_sub_u32 s38, {640*8192}, s31")
    e("s_mov_b32 s39, 0x20000")
    e(f"s_mov_b32 s34, {192*1280}")
    e("s_mov_b32 s35, 0x20000")
    e("s_mov_b32 s100, 0")
    e("s_waitcnt lgkmcnt(0)")
    e("s_add_u32 s36, s14, s31")
    e("s_addc_u32 s37, s15, 0")
    e("s_add_u32 s32, s8, s29")
    e("s_addc_u32 s33, s9, 0")

    def stage(i):
        slot = PHYS[i % 3]
        e(f"s_add_u32 m0, s89, {slot + XB}")
        e("s_lshl_b32 s90, s30, 19")
        for t in range(4):
            vm.issue(f"buffer_load_dwordx4 v{WV+t}, s[36:39], s90 offen offset:{t*1024}{cfg.nt_wq} lds", ("st", i))
        e(f"s_add_u32 m0, s88, {slot}")
        e("s_lshl_b32 s91, s30, 7")
        for t in range(4):
            vm.issue(f"buffer_load_dwordx4 v{XV+t}, s[32:35], s91 offen offset:{t*1024}{cfg.nt_x} lds", ("st", i))
        e("s_add_u32 m0, m0, 4096")
        e("s_add_u32 s91, s91, 40960")
        for t in range(2):
            vm.issue(f"buffer_load_dwordx4 v{XV+t}, s[32:35], s91 offen offset:{t*1024}{cfg.nt_x} lds", ("st", i))
        if i < 9:
            e("s_add_u32 s30, s30, 1")
            e("s_cmp_eq_u32 s30, 10")
            e("s_cselect_b32 s30, 0, s30")
    def kv_setup():
        e("s_lshl_b32 s29, s28, 6")
        e("s_add_u32 s29, s29, s26")
        e("s_mul_i32 s29, s29, 24576")
        srd(44, 12, "s29", 33*24576)
        srd(40, 10, "s29", 33*24576)
        e("v_lshlrev_b32 v18, 4, v0")
        e("s_and_b32 s31, s19, 1")
        e("s_lshl_b32 s31, s31, 7")
        e("v_xor_b32 v19, s31, v4")
        e("v_lshl_add_u32 v19, v1, 8, v19")
        e("s_lshl_b32 s93, s19, 10")
        e("v_add_u32 v19, s93, v19")
        e("s_lshl_b32 s31, s19, 2")
        e("v_add_u32 v5, s31, v1")
        e("v_xor_b32 v6, v2, v5")
        e("v_lshlrev_b32 v6, 4, v6")
        e("v_lshl_add_u32 v20, v5, 8, v6")
    def kload(kts):
        for kt in kts:
            for b in range(2):
                e(f"s_add_u32 m0, s93, {kpos(kt) + b*4096}")
                e(f"s_mov_b32 s90, {b*32*24576 + kt*4096}")
                vm.issue(f"buffer_load_dwordx4 v20, s[40:43], s90 offen{cfg.nt_k} lds", "k")
    def vload(b):
        for n in range(6):
            e(f"s_add_u32 m0, s93, {(V1B if b else V0B) + n*4096}")
            e(f"s_mov_b32 s90, {b*32*24576 + n*4096}")
            vm.issue(f"buffer_load_dwordx4 v19, s[44:47], s90 offen{cfg.nt_v} lds", "v")
    VR = 80
    def vreg():
        for n in range(6):
            e(f"s_mov_b32 s90, {n*4096}")
            vm.issue(f"buffer_load_dwordx4 {vr(VR+4*n,4)}, v19, s[44:47], s90 offen{cfg.nt_v}", "vr")
    def late_vw(k):
        cmt("V tile that was staged in registers (s100 = 1) goes to LDS now")
        e("s_cmp_eq_u32 s100, 0")
        e(f"s_cbranch_scc1 L_NOVW{k}")
        e(f"s_add_u32 s90, s93, {V0B}")
        e("v_add_u32 v22, s90, v18")
        for n in range(6):
            e(f"ds_write_b128 v22, {vr(VR+4*n,4)} offset:{n*4096}")
        lab(f"L_NOVW{k}")

    PUB = [0]
    def publish():
        PUB[0] += 1
        e("s_and_b32 s31, s6, 14")
        e("s_lshl4_add_u32 s31, s19, s31")
        e("s_cmp_lg_u32 s31, 14")
        e(f"s_cbranch_scc1 L_NOPUB{PUB[0]}")
        e(f"v_mov_b32 v5, {PHYS[2] + XB}")
        e("ds_read_b128 v[32:35], v5")
        e("ds_read_b128 v[36:39], v5 offset:16")
        srd(48, 22, 0, 256)
        e("s_lshr_b32 s31, s6, 4")
        e("s_lshl1_add_u32 s31, s4, s31")
        e("s_andn2_b32 s29, 1, s6")
        e("s_lshl1_add_u32 s31, s31, s29")
        e("s_lshl2_add_u32 s31, s31, s97")
        e("s_lshl_b32 s31, s31, 2")
        e("v_mov_b32 v5, 0")
        e("s_waitcnt lgkmcnt(0)")
        e("v_min3_u32 v32, v32, v34, v36")
        e("v_min3_u32 v33, v33, v35, v37")
        e("v_min_u32 v32, v32, v38")
        e("v_min_u32 v33, v33, v39")
        e("v_cmp_lt_u32 vcc, v33, v32")
        e("s_mov_b64 exec, 1")
        e("s_nop 0")
        e("v_cndmask_b32 v32, 1, 3, vcc")
        e("buffer_store_dword v32, v5, s[48:51], s31 offen sc1")
        e("s_mov_b64 exec, -1")
        lab(f"L_NOPUB{PUB[0]}")
    def run_sched(sched):
        iv = [x.split() for x in sched.strip().split("/")]
        assert len(iv) == 12
        setup_done = False
        for i, toks in enumerate(iv):
            for tk in toks:
                if tk[0] != "S" and not setup_done:
                    kv_setup(); setup_done = True
                if tk[0] == "S":
                    n = int(tk[1:])
                    assert n <= max(2, i + 1)
                    stage(n)
                elif tk[0] == "K":
                    assert i <= 10 and ("5" not in tk or i >= 9)
                    kload([int(c) for c in tk[1:]])
                elif tk == "V0":
                    assert i >= 9; vload(0)
                elif tk == "V1":
                    assert i >= 10; vload(1)
                elif tk == "Va":
                    vreg()
                elif tk == "W0":
                    assert i == 11
                    vm.need("vr")
                    e("s_mov_b32 s100, 1")
                else:
                    assert False, tk
            if i == 0 and not setup_done:
                kv_setup(); setup_done = True
            if i < 10:
                vm.need(("st", i))
            if i == 10:
                vm.need("k")
            if i < 11:
                e(f"s_barrier                               ; B_{i}")
            if i == 0:
                assert "S2" not in toks
                publish()
            if cfg.hst == 2: continue
            if i < (10 if cfg.hst else 8): stamp(1 + i)
            if i == 10: stamp(11)

    scs = cfg.scheds.strip().split("|"); smap = cfg.smap.strip()
    smap = "".join(c * 8 for c in smap) if len(smap) == 4 else smap * (32 // len(smap))
    for k, sc in enumerate(scs):
        if k + 1 < len(scs):
            mask = sum(1 << r for r in range(32) if int(smap[r]) == k)
            e(f"s_bitcmp1_b32 {mask:#x}, s6")
            e(f"s_cbranch_scc0 L_H{k+1}")
        vm.pend = []
        run_sched(sc)
        if k + 1 < len(scs):
            e("s_branch L_HX")
            lab(f"L_H{k+1}")
    lab("L_HX")

    vm.pend = []
    ids()
    srd(48, 22, 0, 256)
    align_ws()
    e("s_lshl_b32 s101, s99, 3")
    e("v_and_b32 v9, 7, v0")
    e("v_lshlrev_b32 v9, 2, v9")
    e("buffer_load_dword v32, v9, s[48:51], s101 offen sc1")
    e("s_cmp_eq_u32 s94, 15")
    e("s_cbranch_scc1 L_H_NOP2")
    WO, OV = 24, 28
    e("s_mul_i32 s29, s98, 3")
    e("s_add_u32 s29, s29, s95")
    e("s_lshl_b32 s31, s29, 2")
    e(f"s_lshr_b32 s30, {sum(int(b) << (4*i) for i, b in enumerate(cfg.rtab.split(','))):#x}, s31")
    if cfg.rnt:
        e(f"s_mul_i32 s31, s96, {cfg.rnt}")
        e("s_add_u32 s30, s30, s31")
    e(f"s_mul_i32 s18, s97, {1024*1280}")
    e("s_lshl_b32 s31, s96, 8")
    e("s_add_u32 s18, s18, s31")
    e(f"s_sub_u32 s31, {4096*1280}, s18")
    srd(32, 16, "s18", "s31")
    e("s_add_u32 s18, s99, s97")
    e("s_lshl_b32 s18, s18, 22")
    e("s_lshl_b32 s31, s95, 16")
    e("s_add_u32 s18, s18, s31")
    srd(36, 24, "s18", 8*O_HEAD)
    e("s_lshl_b32 s31, s19, 4")
    e("v_add_u32 v5, s31, v1")
    e("v_mul_u32_u24 v5, 1280, v5")
    e(f"v_add_u32 v{WO}, v5, v4")
    e("v_xor_b32 v6, 128, v4")
    e("v_add_u32 v6, v5, v6")
    e(f"v_add_u32 v{WO+1}, {4*1280-1024}, v6")
    e(f"v_add_u32 v{WO+2}, {2*(4*1280-1024)}, v{WO}")
    e(f"v_add_u32 v{WO+3}, {3*(4*1280-1024)}, v6")
    def wdma(u, ts=range(4)):
        e(f"s_add_u32 s90, s30, {u}")
        e("s_and_b32 s90, s90, 15")
        e(f"s_add_u32 m0, s89, {WSL[u % 7]}")
        e("s_mul_i32 s90, s90, 81920")
        for t in ts:
            vm.issue(f"buffer_load_dwordx4 v{WO+t}, s[32:35], s90 offen offset:{t*1024}{cfg.nt_wo} lds", ("w", u))
    def o_setup():
        e("s_lshr_b32 s18, s19, 1")
        e("s_lshl_b32 s18, s18, 13")
        e("s_add_u32 s18, s18, s89")
        for j in range(4):
            e(f"s_add_u32 s31, s97, {j}")
            e("s_and_b32 s31, s31, 3")
            e(f"s_add_u32 s31, s31, {4-j}")
            e("s_lshl_b32 s31, s31, 10")
            e("s_add_u32 s31, s31, s18")
            e(f"v_add_u32 v{OV+j}, s31, v18")
        e("s_and_b32 s88, s19, 1")
        e("s_lshl_b32 s88, s88, 12")
        e("s_cmp_ge_u32 s19, 2")
        e(f"s_mov_b32 s31, {V1B}")
        e(f"s_cselect_b32 s31, {V0B}, s31")
        e("s_add_u32 s88, s88, s31")
    def cleared(k):
        cmt("the flag lines of all four head groups must have been cleared in this launch")
        e(f"s_mov_b32 s31, {cfg.spin}")
        lab(f"L_CNT{k}")
        e("v_cmp_eq_u32 vcc, 0, v32")
        e("s_sub_u32 s31, s31, 1")
        e(f"s_cbranch_scc1 L_CNTOK{k}")
        e(f"s_cbranch_vccz L_CNTOK{k}")
        e("buffer_load_dword v32, v9, s[48:51], s101 offen sc1")
        e("s_waitcnt vmcnt(0)")
        e(f"s_branch L_CNT{k}")
        lab(f"L_CNTOK{k}")
        e("v_cmp_eq_u32 vcc, 3, v32")
        e(f"v_mov_b32 v33, {WSL[3]}")
        e("s_and_b32 s29, vcc_lo, 0xff")
        if cfg.force >= 0:
            e(f"s_mov_b32 s29, {cfg.force}")
        e("v_mov_b32 v32, s29")
        e("ds_write_b32 v33, v32")
        if k != 9:
            e("s_bitcmp1_b32 s29, s97")
            e("s_cselect_b32 s29, 8192, 0")
            e("s_add_u32 s36, s36, s29")
            e("s_addc_u32 s37, s37, 0")
            e("s_sub_u32 s36, s36, 4096")
            e("s_subb_u32 s37, s37, 0")
        e("s_waitcnt lgkmcnt(0)")
    plans = [tuple(int(x) for x in p.split(",")) for p in cfg.wp.strip().split("/")]
    if plans[0] == plans[1]:
        plans = plans[:1]
    else:
        e("s_cmp_lg_u32 s98, 0")
        e("s_cbranch_scc1 L_WP1")
    for k, (a, b) in enumerate(plans):
        assert a <= b <= 3
        vm.pend = []
        if k:
            lab("L_WP1")
        for u in range(a):
            wdma(u)
        if cfg.vwm:
            o_setup()
        if cfg.vwm == 2:
            e(f"s_waitcnt vmcnt({4*a})")
        late_vw(k)
        e(f"s_waitcnt vmcnt({4*a}) lgkmcnt(0)")
        cleared(k)
        e("s_barrier")
        for u in range(a, b):
            wdma(u)
        if not cfg.vwm:
            o_setup()
        e("s_barrier")
        for u in range(b, cfg.wpoll):
            wdma(u)
        if k + 1 < len(plans):
            e("s_branch L_WP2")
    lab("L_WP2")
    if not cfg.hst: stamp(9)
    def oaddr(u):
        e(f"s_add_u32 s90, s30, {u}")
        e("s_bfe_u32 s91, s90, 0x30001")
        e("s_and_b32 s90, s90, 1")
        e(f"s_mul_i32 s91, s91, {O_HEAD}")
        e("s_lshl_b32 s90, s90, 15")
        e(f"s_add_u32 m0, s88, {(u % 3)*8192}")
        e("s_add_u32 s90, s90, s91")
    def oissue(u):
        for j in range(4):
            vm.issue(f"buffer_load_dwordx4 v{OV+j}, s[36:39], s90 offen offset:{j*1024}{cfg.o_ld} lds", ("o", u))
    oaddr(0)
    vm.need(*[("w", u) for u in range(cfg.prea)])
    e("s_barrier")
    if not cfg.hst: stamp(10)
    oissue(0)
    oaddr(1)
    wq = [(u, t) for u in range(cfg.wpoll, 16) for t in range(4)]
    wts = [0 if (i < cfg.wfirst or i > 13) else (100 if i <= 16 - cfg.ndef else cfg.wtail) for i in range(16)]
    R, done = len(wq), 0
    for i in range(16):
        if i + 1 < 16:
            oissue(i + 1)
        tgt = -(-(sum(wts[:i+1]) * R) // sum(wts))
        tgt = max(tgt, sum(1 for (u, t) in wq if u <= i + 1))
        tgt = min(tgt, sum(1 for (u, t) in wq if u <= max(6, i + 5)))
        grp = wq[done:tgt]; done = max(done, tgt)
        for u in sorted(set(g[0] for g in grp)):
            wdma(u, [t for (uu, t) in grp if uu == u])
        if i + 2 < 16:
            oaddr(i + 2)
        vm.need(("o", i), ("w", i))
        e(f"s_barrier                               ; C_{i}")
        if cfg.hst == 2:
            if i >= 2: stamp(i - 1)
            continue
        if i == 0: stamp(12)
        if i == 4: stamp(13)
        if i == 15: stamp(14)
    assert done == R
    e("s_branch L_FIN")
    lab("L_H_NOP2")
    late_vw(9)
    e("s_waitcnt vmcnt(0) lgkmcnt(0)")
    cleared(9)
    e("s_barrier                               ; B_11")
    e("s_barrier                               ; E")
    e("s_branch L_FIN")

def compute():
    lab("L_COMPUTE")
    lg = Counter(A, "lgkmcnt", 15)
    AB = 96
    BB = [128, 152]
    AA = 176
    BA = 184
    KA, FONE, FOFF, LANE, OA, VA0 = 186, 252, 253, 254, 190, 191
    KB = [192, 208, 96]
    T0 = 224
    acc = lambda T, j: (T*3+j)*4
    if cfg.prio:
        e(f"s_setprio {cfg.prio}")
    e(f"v_mov_b32 v{LANE}, v0")
    e(f"v_lshrrev_b32 v{T0}, 4, v0")
    e(f"v_and_b32 v{T0+1}, 15, v0")
    e(f"v_bfe_u32 v{T0+2}, v0, 2, 2")
    e(f"v_and_b32 v{T0+3}, 3, v0")
    ids()
    e("s_lshl_b32 s43, s97, 22")
    e("s_lshr_b32 s29, s94, 3")
    e(f"s_mul_i32 s29, s29, {FG}")
    e("s_lshl_b32 s39, s27, 10")
    e("s_add_u32 s39, s39, s29")
    e("s_add_u32 s100, s43, s39")
    e(f"v_mov_b32 v{T0+8}, 0")
    e(f"v_mov_b32 v{FONE}, 1")
    e(f"v_lshlrev_b32 v{T0+10}, 7, v0")
    e("s_lshl4_add_u32 s93, s7, s94")
    e("s_lshl_b32 s101, s99, 22")
    e(f"s_add_u32 s18, s101, {FLAG_IN}")
    e("s_waitcnt lgkmcnt(0)")
    align_ws()
    srd(44, 24, "s18", 4*GS - FLAG_IN)
    e("s_andn2_b32 s29, 1, s94")
    e("s_lshl_b32 s29, s29, 21")
    e("s_add_u32 s29, s29, s43")
    e("s_add_u32 s29, s29, s101")
    e("s_lshr_b32 s30, s7, 1")
    e("s_lshl_b32 s30, s30, 1")
    e("s_add_u32 s30, s30, s7")
    e("s_lshl_b32 s30, s30, 12")
    e("s_add_u32 s29, s29, s30")
    e(f"s_add_u32 s29, s29, {PROBE_IN}")
    e("s_add_u32 s48, s24, s29")
    e("s_addc_u32 s49, s25, 0")
    e("s_cmp_lt_u32 s94, 14")
    e("s_cbranch_scc1 L_NOCLR")
    e("s_load_dword s51, s[48:49], 0 glc")
    e("s_load_dword s51, s[48:49], 8192 glc")
    e("s_cmp_lg_u32 s93, 15")
    e("s_cbranch_scc1 L_NOCLR")
    e("s_mov_b32 exec_lo, 0x1f1f1f1f")
    e("s_mov_b32 exec_hi, 0x1f1f1f1f")
    for k in range(4):
        e(f"s_add_u32 s31, s43, {k*8192}")
        e(f"buffer_store_dword v{T0+8}, v{T0+10}, s[44:47], s31 offen sc1")
    e("s_mov_b64 exec, -1")
    lab("L_NOCLR")
    e(f"v_lshl_add_u32 v{T0+4}, v{T0}, 3, v{T0+2}")
    e(f"v_lshlrev_b32 v{T0+4}, 8, v{T0+4}")
    e(f"v_lshl_add_u32 v{T0+4}, v{T0+3}, 3, v{T0+4}")
    e(f"v_add_u32 v{T0+4}, {XB}, v{T0+4}")
    e(f"v_and_b32 v{T0+5}, 1, v{T0}")
    e(f"v_lshl_add_u32 v{T0+5}, v{T0+5}, 2, v{T0+2}")
    for T in range(8):
        e(f"v_xor_b32 v{T0+6}, {T}, v{T0+5}")
        e(f"v_lshl_add_u32 v{AA+T}, v{T0+6}, 5, v{T0+4}")
    e(f"v_and_b32 v{T0+6}, 6, v{T0+1}")
    e(f"v_xor_b32 v{T0+6}, v{T0+6}, v{T0}")
    e(f"v_lshlrev_b32 v{T0+6}, 4, v{T0+6}")
    e(f"v_lshl_add_u32 v{T0+6}, v{T0+1}, 7, v{T0+6}")
    e(f"s_mul_i32 s29, s7, {48*128}")
    e(f"v_add_u32 v{BA}, s29, v{T0+6}")
    e(f"v_xor_b32 v{BA+1}, 64, v{BA}")
    e("s_lshr_b32 s19, s7, 1")
    e("s_lshl_b32 s29, s19, 12")
    e(f"s_add_u32 s29, s29, {K0B}")
    e(f"v_lshrrev_b32 v{T0+6}, 1, v{T0}")
    e(f"v_xor_b32 v{T0+6}, v{T0+6}, v{T0+1}")
    e(f"v_lshlrev_b32 v{T0+6}, 4, v{T0+6}")
    e(f"v_lshl_add_u32 v{T0+6}, v{T0+1}, 8, v{T0+6}")
    e(f"v_and_b32 v{T0+7}, 1, v{T0}")
    e(f"v_lshl_add_u32 v{T0+6}, v{T0+7}, 3, v{T0+6}")
    e(f"v_add_u32 v{KA}, s29, v{T0+6}")
    e(f"v_lshrrev_b32 v{T0+6}, 2, v0")
    e(f"v_and_b32 v{T0+7}, 7, v{T0+6}")
    e(f"v_lshlrev_b32 v{T0+6}, 8, v{T0+6}")
    e(f"v_lshl_add_u32 v{T0+6}, v{T0+7}, 5, v{T0+6}")
    e(f"v_lshl_add_u32 v{T0+6}, v{T0+3}, 3, v{T0+6}")
    e("s_cmp_eq_u32 s19, 0")
    e(f"s_mov_b32 s29, {V1B}")
    e(f"s_cselect_b32 s29, {V0B}, s29")
    e(f"v_add_u32 v{VA0}, s29, v{T0+6}")
    e(f"v_lshlrev_b32 v{OA}, 4, v0")
    e("s_lshl_b32 s30, s7, 7")
    e(f"v_mov_b32 v{FOFF}, s30")
    e(f"v_mov_b32 v187, {WSL[3]}")
    for i in range(96):
        e(f"v_mov_b32 v{i}, 0")
    e(f"s_mul_i32 s29, s27, {O_HEAD}")
    e("s_add_u32 s29, s29, s43")
    e("s_add_u32 s29, s29, s101")
    srd(32, 24, "s29", O_HEAD)
    e("s_and_b32 s29, s28, 1")
    e("s_mul_i32 s29, s29, 12")
    e("s_mul_i32 s31, s7, 3")
    e("s_add_u32 s29, s29, s31")
    for j in range(3):
        e(f"s_add_u32 s31, s29, {j}")
        e("s_lshr_b32 s18, s31, 3")
        e("s_lshl_b32 s18, s18, 16")
        e("s_and_b32 s31, s31, 7")
        e("s_lshl_b32 s31, s31, 10")
        e(f"s_add_u32 s{40+j}, s31, s18")
    e("s_add_u32 s18, s39, s30")
    e("s_add_u32 s18, s18, 128")
    e("s_add_u32 s8, s44, s18")
    e("s_addc_u32 s9, s45, 0")
    e("s_lshl_b32 s18, s7, 11")
    e("s_add_u32 s18, s18, s43")
    e("s_add_u32 s10, s44, s18")
    e("s_addc_u32 s11, s45, 0")
    e("s_cmp_eq_u32 s95, 2")
    e(f"s_cselect_b32 s12, {FG}, 0")
    e("s_cmp_lt_u32 s94, 14")
    e("s_cbranch_scc1 L_NOCLR2")
    e("s_mov_b32 s13, -1")
    e("s_mov_b32 s14, -1")
    e("s_waitcnt lgkmcnt(0)")
    e("s_memtime s[16:17]")
    for k in range(cfg.nsamp):
        a, b = (16, 36) if k % 2 == 0 else (36, 16)
        e("s_waitcnt lgkmcnt(0)")
        if k:
            e(f"s_sub_u32 s15, s{a}, s{b}")
            e(f"s_min_u32 s{13 + ((k-1) & 1)}, s{13 + ((k-1) & 1)}, s15")
        e(f"s_load_dword s51, s[48:49], {(k & 1)*8192} glc")
        e("s_waitcnt lgkmcnt(0)")
        e(f"s_memtime s[{b}:{b+1}]")
    e("s_lshl_b32 s18, s7, 3")
    e(f"s_add_u32 s18, s18, {PHYS[2] + XB}")
    e(f"v_mov_b32 v{T0+6}, s18")
    e("s_waitcnt lgkmcnt(0)")
    e("s_sub_u32 s15, s16, s36")
    e("s_min_u32 s14, s14, s15")
    e(f"v_mov_b32 v{T0+4}, s13")
    e(f"v_mov_b32 v{T0+5}, s14")
    e(f"ds_write_b64 v{T0+6}, {vr(T0+4,2)}")
    e("s_waitcnt vmcnt(0) lgkmcnt(0)")
    lab("L_NOCLR2")

    def a_rd(T):
        return [(f"ds_read_b64_tr_b16 {vr(AB + (T & 3)*8 + s*4 + h*2, 2)}, v{AA+T} offset:{s*8192 + h*1024}", ("A", T & 3, s))
                for s in range(2) for h in range(2)]
    def b_rd(j, s, par):
        return (f"ds_read_b128 {vr(BB[par]+(j*2+s)*4,4)}, v{BA+s} offset:{j*2048}", ("B", par, j, s))
    def head_reads(par):
        a0 = a_rd(0)
        return [a0[0], a0[1], b_rd(0,0,par), a0[2], a0[3], b_rd(0,1,par), b_rd(1,0,par), b_rd(1,1,par),
                b_rd(2,0,par), b_rd(2,1,par)] + a_rd(1)
    def k_rd(kt):
        return [(f"ds_read_b64 {vr(KB[kt%3]+4*s+2*h,2)}, v{AA+2*s+h} offset:{kpos(kt) - K0B}", ("K", kt % 3, s))
                for s in range(4) for h in range(2)]
    def cvtq(s):
        return [x for j in range(3) for x in cvt4(acc(2*s, j), acc(2*s, j), acc(2*s+1, j))]
    def emit(x):
        if isinstance(x, tuple):
            lg.issue(x[0], x[1])
        else:
            e(x)
    def qstage(par, last=False, exit_label=None):
        att = {n: [] for n in range(48)}
        for T, n0 in ((2,0),(3,4),(4,8),(5,12),(6,18),(7,24)):
            for k, r in enumerate(a_rd(T)):
                att[n0+k].append(r)
        if not last:
            adv = [f"v_add_u32 v{AA+T}, s30, v{AA+T}" for T in range(8)] + [f"v_add_u32 v{BA+s}, s30, v{BA+s}" for s in range(2)]
            for k, x in enumerate(adv):
                att[28 + k//2].append(x)
            att[16] += ["s_mov_b32 s30, s88", "s_mov_b32 s88, s89"]
            att[17] += ["s_mov_b32 s89, s90", "s_mov_b32 s90, s30"]
            if par == 0:
                att[22].append("s_add_u32 s29, s29, 1")
                att[23].append("s_cmp_eq_u32 s29, 5")
            for k, r in enumerate(head_reads(par ^ 1)):
                att[34+k].append(r)
        else:
            for k in range(8):
                att[(4, 5, 8, 9, 12, 16, 22, 28)[k]].append(f"v_xor_b32 v{AA+k}, {32*k}, v{KA}")
            for k, r in enumerate(k_rd(0) + k_rd(1)[:4]):
                att[min(47, cfg.kbar + 1 + k//2)].append(r)
            for k, x in enumerate(cvtq(0)):
                att[(16, 17, 17, 18, 19, 20, 21, 22, 23, 23, 24, 25)[k]].append(x)
            for k, x in enumerate(cvtq(1)):
                att[(26, 27, 28, 29, 29, 30, 30, 31, 31, 32, 32, 33)[k]].append(x)
            for k, x in enumerate(cvtq(2)):
                att[40 + (k*2)//3].append(x)
        for n in range(48):
            T, j, s = n//6, (n % 6)//2, n % 2
            if n % 6 == 0:
                lg.need(("A", T & 3, 0), ("A", T & 3, 1), *([("B", par, 0, 0), ("B", par, 0, 1)] if T == 0 else []))
            if T == 0 and n == 2:
                lg.need(*[("B", par, jj, ss) for jj in (1, 2) for ss in (0, 1)])
            e(mfma(acc(T, j), AB + (T & 3)*8 + s*4, BB[par] + (j*2+s)*4))
            for x in att[n]:
                emit(x)
            if cfg.qn and (n * cfg.qn) // 48 != ((n + 1) * cfg.qn) // 48:
                e("s_nop 5")
            if n == (cfg.kbar if last else 33):
                lg.drain()
                e("s_barrier                               ; B_{i+1}: this stage read, next one (or K) landed")
        if exit_label:
            e(f"s_cbranch_scc1 {exit_label}")

    e("s_mov_b32 s29, 0")
    e(f"s_mov_b32 s88, {2*SLOT}")
    e(f"s_mov_b32 s89, {(-SLOT) & 0xffffffff}")
    e("s_mov_b32 s90, s89")
    e("s_barrier                               ; B_0")
    stamp(1)
    for r in head_reads(0):
        emit(r)
    lab("L_QLOOP")
    qstage(0, exit_label="L_QDONE")
    saved = [set(t) for t in lg.pend]
    qstage(1)
    e("s_branch L_QLOOP")
    lab("L_QDONE")
    lg.pend = saved
    qstage(1, last=True)
    stamp(2)
    QB = lambda s, j: acc(2*s, j)
    sregs = [acc(T, j) for T in (1, 3, 5) for j in range(3)] + [BB[0] + 4*k for k in range(6)] + [acc(7, j) for j in range(3)]
    SS = lambda kt, j: sregs[kt*3 + j]
    M = T0
    vaddr = [f"v_xor_b32 v{AA+T}, {32*T}, v{VA0}" for T in range(8)]
    c = math.log2(math.e) / math.sqrt(128.0)
    cbits = struct.unpack("<I", struct.pack("<f", c))[0]
    ONES = T0 + 12
    for kt in range(6):
        lg.need(*[("K", kt % 3, s) for s in range(4)])
        order = [(j, s) for j in range(3) for s in range(4)] if kt else \
                [(j, s) for j in range(3) for s in range(3)] + [(j, 3) for j in range(3)]
        att = {n: [] for n in range(12)}
        rd = k_rd(kt + 2) if kt + 2 < 6 else []
        if kt == 0:
            for k, x in enumerate(k_rd(1)[4:]):
                att[k//2].append(x)
            for k, x in enumerate(cvtq(3)):
                att[2 + k//2].append(x)
            for k, x in enumerate(rd):
                att[8 + k//2].append(x)
        else:
            for k, x in enumerate(rd):
                att[k].append(x)
        if kt == 4:
            for k, x in enumerate(vaddr):
                att[(0, 0, 1, 1, 2, 2, 10, 10)[k]].append(x)
        if kt == 5:
            att[0] += [f"s_mov_b32 s30, {cbits:#x}", f"s_mov_b32 s31, {cbits:#x}"]
            for r in range(4):
                att[1 + r//2].append(f"v_mov_b32 v{ONES+r}, 0x3f803f80")
        if kt >= 1:
            for j in range(3):
                b = SS(kt-1, j)
                if kt == 1:
                    att[5 + 2*j] += [f"v_max3_f32 v{M+j}, v{b}, v{b+1}, v{b+2}"]
                    att[6 + 2*j] += [f"v_max_f32 v{M+j}, v{M+j}, v{b+3}"]
                else:
                    o = 6 if kt < 4 else 4
                    att[o + 2*j] += [f"v_max3_f32 v{M+j}, v{M+j}, v{b}, v{b+1}"]
                    att[o + 1 + 2*j] += [f"v_max3_f32 v{M+j}, v{M+j}, v{b+2}, v{b+3}"]
        if kt == 5:
            b = SS(5, 0)
            att[10] += [f"v_max3_f32 v{M}, v{M}, v{b}, v{b+1}"]
            att[11] += [f"v_max3_f32 v{M}, v{M}, v{b+2}, v{b+3}"]
        for n, (j, s) in enumerate(order):
            e(mfma(SS(kt, j), KB[kt % 3] + 4*s, QB(s, j), "0" if s == 0 else None))
            for x in att[n]:
                emit(x)
    b = SS(5, 1)
    e(f"v_mov_b32 v{M+4}, v{M}")
    e(f"v_max3_f32 v{M+1}, v{M+1}, v{b}, v{b+1}")
    e(f"v_max3_f32 v{M+1}, v{M+1}, v{b+2}, v{b+3}")
    e(f"v_permlane32_swap_b32 v{M}, v{M+4}")
    e(f"v_mov_b32 v{M+5}, v{M+1}")
    e(f"v_max_f32 v{M}, v{M}, v{M+4}")
    e(f"v_mov_b32 v{M+4}, v{M}")
    b = SS(5, 2)
    e(f"v_permlane32_swap_b32 v{M+1}, v{M+5}")
    e(f"v_max3_f32 v{M+2}, v{M+2}, v{b}, v{b+1}")
    e(f"v_max3_f32 v{M+2}, v{M+2}, v{b+2}, v{b+3}")
    e(f"v_permlane16_swap_b32 v{M}, v{M+4}")
    e(f"v_mov_b32 v{M+6}, v{M+2}")
    e(f"v_max_f32 v{M+1}, v{M+1}, v{M+5}")
    e(f"v_mov_b32 v{M+5}, v{M+1}")
    e(f"v_permlane32_swap_b32 v{M+2}, v{M+6}")
    e(f"v_max_f32 v{M}, v{M}, v{M+4}")
    e(f"v_permlane16_swap_b32 v{M+1}, v{M+5}")
    e(f"v_max_f32 v{M+2}, v{M+2}, v{M+6}")
    e(f"v_mov_b32 v{M+6}, v{M+2}")
    e(f"v_max_f32 v{M+1}, v{M+1}, v{M+5}")
    e("s_nop 0")
    e(f"v_permlane16_swap_b32 v{M+2}, v{M+6}")
    e(f"v_max_f32 v{M+2}, v{M+2}, v{M+6}")
    NM = T0 + 4
    for j in range(3):
        e(f"v_mul_f32 v{NM+2*j}, s30, v{M+j}")
    stamp(3)
    pregs = [BB[1] + 4*k for k in range(6)] + [AB + 4*k for k in range(3)]
    PB = lambda s, j: pregs[s*3 + j]
    LS = T0 + 16
    VB = [KB[0], KB[0]+12, AB+12]
    def v_rd(T):
        return [(f"ds_read_b64_tr_b16 {vr(VB[T%3]+4*s+2*h,2)}, v{AA+T} offset:{(32*s+16*h)*256}", ("V", T % 3))
                for s in range(3) for h in range(2)]
    def v_start():
        stamp(4)
        e("s_barrier                               ; B_11: V visible")
        stamp(5)
        emit(("ds_read_b32 v188, v187", ("V", 0)))
        for r in v_rd(0) + v_rd(1):
            emit(r)
    pend_m = []
    for s in range(3):
        for j in range(3):
            if cfg.vbar and s*3 + j == 9 - cfg.vbar:
                v_start()
            for kt in (2*s, 2*s+1):
                b = SS(kt, j)
                for h in range(2):
                    e(f"v_pk_fma_f32 {vr(b+2*h,2)}, {vr(b+2*h,2)}, s[30:31], {vr(NM+2*j,2)} op_sel_hi:[1,1,0] neg_lo:[0,0,1] neg_hi:[0,0,1]")
            if pend_m:
                e(pend_m.pop())
            for kt in (2*s, 2*s+1):
                b = SS(kt, j)
                for r in range(4):
                    e(f"v_exp_f32 v{b+r}, v{b+r}")
            for x in cvt4(PB(s, j), SS(2*s, j), SS(2*s+1, j)):
                e(x)
            pend_m.append(mfma(LS+4*j, ONES, PB(s, j), "0" if s == 0 else None))
    if not cfg.vbar:
        v_start()
        e(pend_m.pop())
    RC = T0 + 4
    def epi(s, pk=False):
        r = []
        for j in range(3):
            a0, a1 = acc(2*s, j), acc(2*s+1, j)
            for a in (a0, a1):
                if pk:
                    r += [f"v_pk_mul_f32 {vr(a+2*h,2)}, {vr(a+2*h,2)}, {vr(RC+2*j,2)} op_sel_hi:[1,0]" for h in range(2)]
                else:
                    r += [f"v_mul_f32 v{a+k}, v{a+k}, v{RC+2*j}" for k in range(4)]
            r += cvt4(a0, a0, a1)
            r.append(f"buffer_store_dwordx4 {vr(a0,4)}, v{OA}, s[32:35], s{40+j} offen{cfg.o_st}")
        if s < 3:
            r.append(f"v_add_u32 v{OA}, {FG}, v{OA}")
        return r
    backlog = []
    for T in range(8):
        lg.need(("V", T % 3))
        rd = v_rd(T+2) if T + 2 < 8 else []
        if T == 0:
            backlog += ["v_readfirstlane_b32 s92, v188", "v_bfe_u32 v188, v188, s97, 1",
                        f"v_lshl_add_u32 v{OA}, v188, 13, v{OA}", f"v_lshl_add_u32 v{FOFF}, v188, 13, v{FOFF}"]
        if T == 1:
            backlog += [f"v_rcp_f32 v{RC+2*j}, v{LS+4*j}" for j in range(3)]
        n = 0
        for j in range(3):
            for s in range(3):
                e(mfma(acc(T, j), VB[T % 3] + 4*s, PB(s, j), "0" if s == 0 else None))
                if pend_m and n == 1:
                    e(pend_m.pop())
                k = 0
                if rd:
                    emit(rd.pop(0)); k += 1
                if T >= 2 and T % 2 == 0 and n == 1:
                    backlog += epi(T//2 - 1)
                while backlog and k < 2:
                    e(backlog.pop(0)); k += 1
                n += 1
    for x in backlog:
        e(x)
    stamp(6)
    for x in epi(3, True):
        e(x)
    stamp(7)
    PA = [64, 96]; PBb = [128, 160]
    QA, QB2 = 192, 204
    T1 = 206
    HOLD = 212
    e(f"v_lshrrev_b32 v{T1+2}, 2, v{LANE}")
    e(f"v_and_b32 v{T1+3}, 7, v{T1+2}")
    e("s_and_b32 s29, s7, 1")
    e("s_lshl_b32 s30, s29, 2")
    e(f"v_xor_b32 v{T1+3}, s30, v{T1+3}")
    e(f"v_lshlrev_b32 v{T1+2}, 8, v{T1+2}")
    e(f"v_lshl_add_u32 v{T1+2}, v{T1+3}, 5, v{T1+2}")
    e(f"v_and_b32 v{T1+3}, 3, v{LANE}")
    e(f"v_lshl_add_u32 v{T1+2}, v{T1+3}, 3, v{T1+2}")
    for T in range(4):
        e(f"v_xor_b32 v{QA+T}, {32*T}, v{T1+2}")
        e(f"v_add_u32 v{QA+4+T}, {WSL[3]}, v{QA+T}")
        e(f"v_add_u32 v{QA+8+T}, {WSL[4]}, v{QA+T}")
    e(f"v_lshlrev_b32 v{T1}, 4, v{LANE}")
    e("s_lshl_b32 s30, s19, 12")
    e(f"s_add_u32 s30, s30, {V1B}")
    e(f"v_add_u32 v{QB2}, s30, v{T1}")
    e(f"v_add_u32 v{QB2+1}, {V0B - V1B}, v{QB2}")
    nd = 2 if cfg.dup else 1
    fl = [[13, 14, 15, 16], [17, 18, 88, 89]]
    e("s_bitcmp1_b32 s92, s97")
    e("s_cselect_b32 s18, 8192, 0")
    e("s_add_u32 s10, s10, s18")
    e("s_addc_u32 s11, s11, 0")
    e("s_cmp_lg_u32 s95, 1")
    e("s_cselect_b32 s15, 1, 0")
    e("s_mov_b32 s16, s15")
    e("s_mov_b32 s13, 0")
    e("s_mov_b32 s14, 0")
    if cfg.dup:
        for r in fl[1]:
            e(f"s_mov_b32 s{r}, 0")
    e(f"s_mov_b32 s31, {cfg.spin}")
    e("s_cmp_eq_u32 s7, 0")
    e("s_cbranch_scc1 L_FLAG")
    e("s_waitcnt vmcnt(0)")
    stamp(8)
    e("s_barrier                               ; E")
    e("s_branch L_NOFLAG")
    lab("L_FLAG")
    e(f"s_mov_b64 exec, {3 if cfg.dup else 1}")
    e("s_waitcnt vmcnt(0)")
    stamp(8)
    e("s_barrier")
    e(f"buffer_store_dword v{FONE}, v{FOFF}, s[44:47], s100 offen sc1")
    e("s_mov_b64 exec, -1")
    lab("L_NOFLAG")
    e("s_cmp_eq_u32 s94, 15")
    e("s_cbranch_scc1 L_FIN")
    lab("L_POLL")
    for k in range(4):
        e(f"s_cmp_lg_u32 s{fl[0][k]}, 0")
        e(f"s_cbranch_scc1 L_PS{k}")
        for d in range(nd):
            if k < 2:
                e(f"s_load_dword s{fl[d][k]}, s[10:11], s12 offset:{k*1024 + d*8192} glc")
            else:
                e(f"s_load_dword s{fl[d][k]}, s[10:11], {FG + (k-2)*1024 + d*8192} glc")
        lab(f"L_PS{k}")
    e("s_sub_u32 s31, s31, 1")
    e("s_cbranch_scc1 L_GO")
    e("s_waitcnt lgkmcnt(0)")
    if cfg.dup:
        for k in range(4):
            e(f"s_or_b32 s{fl[0][k]}, s{fl[0][k]}, s{fl[1][k]}")
    e("s_and_b32 s5, s13, s14")
    e("s_and_b32 s30, s15, s16")
    e("s_and_b32 s5, s5, s30")
    e("s_cbranch_scc0 L_POLL")
    lab("L_GO")
    e("s_barrier                               ; D")
    e("s_waitcnt lgkmcnt(0)")
    e("s_lshl2_add_u32 s18, s94, s7")
    e("s_lshl_b32 s18, s18, 14")
    e("s_add_u32 s18, s18, s101")
    e(f"s_add_u32 s18, s18, {2 << 20}")
    srd(32, 24, "s18", 3*GS + FG)
    for d in range(4):
        e(f"s_add_u32 s18, s97, {d}")
        e("s_and_b32 s18, s18, 3")
        e("s_add_u32 s30, s18, 4")
        e("s_lshl_b32 s18, s18, 22")
        e("s_bitcmp1_b32 s92, s30")
        e(f"s_cselect_b32 s30, 8192, 0")
        e("s_add_u32 s18, s18, s30")
        e(f"s_add_u32 s{36+d}, s18, {max(d-1,0)*2048}")
        if d:
            e(f"s_sub_u32 s18, s97, {d}")
            e("s_and_b32 s18, s18, 3")
            e("s_bitcmp1_b32 s92, s18")
            e(f"s_cselect_b32 s30, 8192, 0")
            e("s_lshl_b32 s18, s18, 22")
            e(f"s_add_u32 s{88+d}, s18, s30")
    e("s_mul_i32 s18, s98, 3")
    e("s_add_u32 s18, s18, s95")
    e("s_lshl1_add_u32 s18, s18, s19")
    e("s_lshl2_add_u32 s18, s18, s97")
    e(f"s_mul_i32 s18, s18, {16*2560}")
    e("s_mul_i32 s30, s4, 1280")
    e("s_add_u32 s18, s18, s30")
    e("s_lshl1_add_u32 s30, s96, s29")
    e("s_lshl_b32 s30, s30, 7")
    e("s_add_u32 s18, s18, s30")
    e(f"s_sub_u32 s30, {768*2560}, s18")
    srd(40, 20, "s18", "s30")
    e(f"v_and_b32 v{T1+1}, 15, v{LANE}")
    e(f"v_mul_u32_u24 v{T1+1}, 2560, v{T1+1}")
    e(f"v_and_b32 v{T1+2}, 48, v{LANE}")
    e(f"v_add_u32 v{T1+1}, v{T1+1}, v{T1+2}")

    ND = cfg.ndef
    assert 2 <= ND <= 7
    pacc = lambda T, j: (T*4+j)*4
    def breg(u, j):
        if j == 0 and 16 - ND <= u < 14:
            return HOLD + 8*(u - (16 - ND))
        return PBb[u & 1] + j*8
    def pa_rd(u, T, buf):
        k = u % 7
        areg = QA + 4*(0 if k < 3 else 1 if k == 3 else 2)
        aoff = WSL[k] - (0 if k < 3 else WSL[3] if k == 3 else WSL[4])
        return [(f"ds_read_b64_tr_b16 {vr(PA[buf]+T*8+s*4+h*2,2)}, v{areg+T} offset:{aoff + (32*s+16*h)*256}", ("PA", buf, T))
                for s in range(2) for h in range(2)]
    def p_reads(u):
        b = u & 1
        bb = lambda j: [(f"ds_read_b128 {vr(breg(u, j)+s*4,4)}, v{QB2+s} offset:{(u%3)*8192 + j*1024}", ("PB", b, j)) for s in range(2)]
        if u < cfg.prea:
            return bb(0) + bb(1) + bb(2) + bb(3)
        if u >= 16 - ND:
            return pa_rd(u,0,b) + bb(1) + bb(2) + bb(3) + pa_rd(u,1,b) + pa_rd(u,2,b) + pa_rd(u,3,b) + bb(0)
        return pa_rd(u,0,b) + bb(0) + bb(1) + bb(2) + bb(3) + pa_rd(u,1,b) + pa_rd(u,2,b) + pa_rd(u,3,b)
    def pm(u, T, j, s, buf=None):
        return mfma(pacc(T, j), PA[u & 1 if buf is None else buf]+T*8+s*4, breg(u, j)+s*4, "0" if (u == 0 and s == 0) else None)
    def send(d):
        r = []
        for Tp in range(2):
            a0 = pacc(2*Tp, d)
            r += cvt4(a0, a0, pacc(2*Tp+1, d))
            r.append(f"buffer_store_dwordx4 {vr(a0,4)}, v{T1}, s[32:35], s{36+d} offen offset:{Tp*1024}{cfg.p_st}")
        return r
    lg.pend = []
    for u in range(cfg.prea):
        for T in range(4):
            for r in pa_rd(u, T, u):
                emit(r)
    e("s_barrier                               ; C_0")
    stamp(9)
    for r in p_reads(0):
        emit(r)
    for u in range(15):
        b = u & 1
        rd = p_reads(u+1)
        js = (1, 2, 3) if u >= 16 - ND else (0, 1, 2, 3)
        seq = [(T, j, s) for T in range(4) for j in js for s in range(2)]
        pb = min(cfg.pbar, 5) if len(js) == 3 else cfg.pbar
        for n, (T, j, s) in enumerate(seq):
            if u == 0:
                lg.need(("PA", b, T), ("PB", b, j))
            elif n == 0:
                lg.need(("PA", b, 0), *[("PB", b, jj) for jj in js])
            e(pm(u, T, j, s))
            if n == pb:
                lg.drain()
                e(f"s_barrier                               ; C_{u+1}")
            if n > pb and rd:
                emit(rd.pop(0))
                if len(js) == 3 and n < pb + 9:
                    emit(rd.pop(0))
        assert not rd
    seq = [(15, T, j, s) for j in (1, 2, 3) for T in range(4) for s in range(2)] + \
          [(uu, T, 0, s) for uu in (14, 15) for T in range(4) for s in range(2)]
    older = list(range(16 - ND, 14))
    fill = []
    for n, (uu, T, j, s) in enumerate(seq):
        lg.need(("PA", 1, T), ("PB", 1, j))
        e(pm(uu, T, j, s))
        if n in (9, 17, 25):
            fill += send(n // 8)
        if n >= 32 and older:
            fill += pa_rd(older[0], (n - 32)//2, 0)[2*(n & 1):2*(n & 1)+2]
        for _ in range(2):
            if fill:
                emit(fill.pop(0))
    assert not fill
    def old_stage(k):
        for T in range(4):
            lg.need(("PA", k & 1, T))
            for s in range(2):
                e(pm(older[k], T, 0, s, k & 1))
                if k + 1 < len(older):
                    for r in pa_rd(older[k+1], T, (k+1) & 1)[2*s:2*s+2]:
                        emit(r)
    nbefore = min(len(older), 2)
    for k in range(nbefore):
        old_stage(k)
    stamp(10)
    e("s_add_u32 s37, s36, 4096")
    e(f"s_mov_b64 exec, {3 if cfg.dup else 1}")
    e("s_waitcnt vmcnt(0)")
    stamp(11)
    e(f"buffer_store_dword v{FONE}, v{FOFF}, s[44:47], s100 offen offset:128 sc1")
    e("s_mov_b64 exec, -1")
    for k in range(nbefore, len(older)):
        old_stage(k)
    RB = 136
    def p3_loads(d0):
        for dd in range(d0, 4):
            for d in range(nd):
                e(f"s_load_dword s{12+dd+3*d}, s[8:9], s{88+dd} offset:{d*8192} glc")
    p3_loads(1)
    e("s_mov_b32 s30, 0xffff0000")
    e("s_waitcnt lgkmcnt(0)")
    for d in (1, 2, 3):
        e(f"s_mov_b32 s31, {cfg.spin}")
        lab(f"L_P3W{d}")
        if cfg.dup:
            e(f"s_or_b32 s5, s{12+d}, s{15+d}")
        else:
            e(f"s_cmp_lg_u32 s{12+d}, 0")
        e(f"s_cbranch_scc1 L_P3G{d}")
        p3_loads(d)
        e("s_sub_u32 s31, s31, 1")
        e("s_waitcnt lgkmcnt(0)")
        e(f"s_cbranch_scc0 L_P3W{d}")
        lab(f"L_P3G{d}")
        for f in (2*d - 2, 2*d - 1):
            e(f"buffer_load_dwordx4 {vr(RB+4*f,4)}, v{T1}, s[32:35], s{36 + f//4} offen offset:{(f%4)*1024}{cfg.p_ld}")
    stamp(12)
    TT = 168
    def finish(Tp):
        a0 = pacc(2*Tp, 0)
        for x in cvt4(a0, a0, pacc(2*Tp+1, 0)):
            e(x)
        e("s_nop 0")
        e(f"v_permlane32_swap_b32 v{a0}, v{a0+2}")
        e(f"v_permlane32_swap_b32 v{a0+1}, v{a0+3}")
        e("s_nop 0")
        e(f"v_permlane16_swap_b32 v{a0}, v{a0+2}")
        e(f"v_permlane16_swap_b32 v{a0+1}, v{a0+3}")
        e(f"buffer_store_dwordx4 {vr(a0,4)}, v{T1+1}, s[40:43], 0 offen offset:{Tp*64}{cfg.out_st}")
    for f in range(6):
        e(f"s_waitcnt vmcnt({5-f if f < 5 else 1})")
        Tp = f & 1
        for k in range(4):
            x = RB + 4*f + k
            e(f"v_lshlrev_b32 v{TT+2*k}, 16, v{x}")
            e(f"v_and_b32 v{TT+2*k+1}, s30, v{x}")
        for k in range(4):
            a = pacc(2*Tp + k//2, 0) + 2*(k & 1)
            e(f"v_pk_add_f32 {vr(a,2)}, {vr(a,2)}, {vr(TT+2*k,2)}")
        if f == 5: stamp(13)
        if f >= 4:
            finish(Tp)
    stamp(14)
    lab("L_FIN")
    if cfg.stamps:
        e("s_waitcnt vmcnt(0)")
        stamp(15)
        stamp_flush()
    lab("L_END")
    e("s_endpgm")

def kd(name):
    return f""".amdhsa_kernel {name}
  .amdhsa_next_free_vgpr 256
  .amdhsa_next_free_sgpr 102
  .amdhsa_accum_offset 256
  .amdhsa_group_segment_fixed_size 0
  .amdhsa_kernarg_size 104
  .amdhsa_user_sgpr_count 2
  .amdhsa_user_sgpr_kernarg_segment_ptr 1
  .amdhsa_system_sgpr_workgroup_id_x 1
.end_amdhsa_kernel
"""

prologue(); helper(); compute()
probs = check_hazards(A.L)
for p in probs:
    print("HAZARD:", p, file=sys.stderr)
K = NAME + "_kernel"
if cfg.diag:
    from diag import gen_diag
    hdr = (f"; diagnostic build\n; @launch kernel={K} grid=(256,1,1) block=(512,1,1) lds=163840\n"
           "; @launch kernel=d_kernel grid=(1,1,1) block=(256,1,1) lds=256\n")
else:
    hdr = open(os.path.join(os.path.dirname(os.path.abspath(__file__)), "header.txt")).read()
out = hdr + '.amdgcn_target "amdgcn-amd-amdhsa--gfx950"\n.text\n'
out += f".globl {K}\n.p2align 8\n.type {K},@function\n" + A.text()
if cfg.diag:
    out += ".globl d_kernel\n.p2align 8\n.type d_kernel,@function\n" + "\n".join(gen_diag(cfg.diag.strip(), STAMP_OFF)) + "\n"
out += '.section .rodata,"a"\n.p2align 6\n' + kd(K)
if cfg.diag:
    out += ".p2align 6\n" + kd("d_kernel")
open(sys.argv[1], "w").write(out)
sys.exit(1 if probs else 0)
```

```python
import sys, os, math, struct
sys.path.insert(0, os.path.dirname(os.path.abspath(__file__)))
from asmlib import *

NAME = "concat_heads__gqa_block_cached__mha_block_cached__near_ridge"

class Cfg:
    nt_x = ""; nt_wq = ""; nt_k = " nt"; nt_v = " nt"; nt_wo = ""
    o_st = " sc1"; o_ld = " sc1"; out_st = " sc1"; p_st = " sc1"; p_ld = " sc1"
    rot = 10477
    scheds = " S0 S1/S2/S3/S4/S5/S6/S7/S8/S9 K012/K345/V0/V1|S0 S1/S2/K01234 Va S3/S4/S5/S6/S7/S8/S9/K5/V1/W0"
    smap = " 0011"
    wp = " 2,2/2,2"
    wpoll = 7
    wfirst = 2
    wtail = 100
    rtab = " 0,2,5,8,10,13"
    rnt = 0
    vwm = 2
    prea = 2
    vbar = 0
    snake = 2
    nrot = 16
    lead0 = 9
    lpre = 1
    ndef = 2
    pbar = 5
    kbar = 33
    dup = 0
    cpf = 1
    prio = 1
    stamps = 0
    hst = 0
    spin = 1000000
    diag = ""
    qn = 0
cfg = Cfg()
for a in sys.argv[2:]:
    k, v = a.split("=")
    old = getattr(cfg, k)
    setattr(cfg, k, int(v) if isinstance(old, int) else ((" " + v.replace("+", " ")) if v else ""))

A = Asm()
e, lab, cmt = A.e, A.lab, A.cmt

STAMP_OFF = 64 << 20
FG = 16384 if cfg.dup else 8192
FLAG_SZ = 32 * FG
O_OFF = 1 << 20
O_HEAD = 196608
PART_OFF = 16 << 20
P_W = 6144
SLOT = 40960
XB = 24576
PHYS = [0, 2*SLOT, SLOT]
V1B, V0B, K0B = 49152, 90112, 114688
WSL = [0, 16384, 32768, 73728, 114688, 131072, 147456]
kpos = lambda kt: K0B + ((kt + 1) % 6) * 8192

def stamp(i):
    if cfg.stamps:
        e(f"{'s_memtime' if cfg.stamps == 2 else 's_memrealtime'} s[{52+2*i}:{53+2*i}]")
def stamp_flush():
    e(f"s_add_u32 s84, s24, {STAMP_OFF}")
    e("s_addc_u32 s85, s25, 0")
    e("s_mov_b32 s86, 0x100000")
    e("s_mov_b32 s87, 0x20000")
    e("s_lshl_b32 s92, s2, 3")
    e("s_add_u32 s92, s92, s7")
    e("s_lshl_b32 s92, s92, 6")
    e("s_waitcnt lgkmcnt(0)")
    e("v_mbcnt_lo_u32_b32 v251, -1, 0")
    e("v_lshlrev_b32 v251, 2, v251")
    for i in range(16):
        e(f"v_writelane_b32 v250, s{52+2*i}, {i}")
    e("s_mov_b64 exec, 0xffff")
    e("buffer_store_dword v250, v251, s[84:87], s92 offen sc1")

def srd(d, lo, off, size):
    e(f"s_add_u32 s{d}, s{lo}, {off}")
    e(f"s_addc_u32 s{d+1}, s{lo+1}, 0")
    e(f"s_mov_b32 s{d+2}, {size}")
    e(f"s_mov_b32 s{d+3}, 0x20000")

def cvt4(d, a0, a1):
    return [f"v_cvt_pk_bf16_f32 v{d}, v{a0}, v{a0+1}", f"v_cvt_pk_bf16_f32 v{d+1}, v{a0+2}, v{a0+3}",
            f"v_cvt_pk_bf16_f32 v{d+2}, v{a1}, v{a1+1}", f"v_cvt_pk_bf16_f32 v{d+3}, v{a1+2}, v{a1+3}"]

def prologue():
    lab(NAME + "_kernel")
    e("s_cmp_ge_u32 s2, 256")
    e("s_cbranch_scc1 L_END")
    e("s_and_b32 s3, s2, 7")
    e("s_lshr_b32 s4, s3, 2")
    e("s_mul_i32 s5, s4, 40")
    e("s_load_dwordx8 s[8:15], s[0:1], s5")
    e("s_load_dwordx2 s[16:17], s[0:1], s5 offset:32")
    e("s_load_dwordx4 s[20:23], s[0:1], 80")
    e("s_load_dwordx2 s[24:25], s[0:1], 96")
    if cfg.stamps:
        for i in range(1, 16):
            e(f"s_mov_b32 s{52+2*i}, 0")
    stamp(0)
    if cfg.cpf:
        cmt("instruction prefetch into L2: workgroup r reads code lines 8r..8r+7 (values unused)")
        e("s_getpc_b64 s[90:91]")
        lab("L_PC")
        e("s_and_b32 s18, s2, 0xf8")
        e("v_xor_b32 v1, 256, v0")
        e("v_add_u32 v235, s18, v1")
        e("v_lshlrev_b32 v235, 7, v235")
        e("v_min_u32 v235, L_END-L_PC, v235")
        e("v_cmp_gt_u32 vcc, 8, v1")
        e("s_and_saveexec_b64 s[18:19], vcc")
        e("s_cbranch_execz L_NOCPF")
        e("global_load_dword v235, v235, s[90:91]")
        lab("L_NOCPF")
        e("s_mov_b64 exec, -1")
    e("v_lshrrev_b32 v1, 6, v0")
    e("v_xor_b32 v1, 4, v1")
    e("s_lshr_b32 s6, s2, 3")
    e("v_readfirstlane_b32 s7, v1")
    e("v_and_b32 v0, 63, v0")
    e("s_bfe_u32 s26, s6, 0x10002")
    e("s_lshr_b32 s27, s6, 3")
    e("s_and_b32 s6, s6, 3")
    e("s_lshl_b32 s27, s27, 2")
    e("s_lshl_b32 s26, s26, 4")
    e("s_or_b32 s6, s6, s27")
    e("s_or_b32 s6, s6, s26")
    if cfg.stamps:
        e("s_lshl_b32 s2, s6, 3")
        e("s_or_b32 s2, s2, s3")
    e("s_and_b32 s97, s3, 3")
    e("s_and_b32 s27, s6, 7")
    e("s_lshl3_add_u32 s26, s97, s27")
    e("s_lshr_b32 s28, s6, 3")
    e("s_cmp_lt_u32 s7, 4")
    e("s_cbranch_scc1 L_COMPUTE")

def ids():
    cmt("s94 = m (15: no output tile), s95 = tt, s96 = nt, s97 = head group, s98 = set, s99 = (branch*2+set)*4")
    e("s_and_b32 s94, s6, 15")
    e("s_mul_i32 s95, s94, 52")
    e("s_lshr_b32 s95, s95, 8")
    e("s_mul_i32 s96, s95, 5")
    e("s_sub_u32 s96, s94, s96")
    e("s_lshr_b32 s98, s6, 4")
    e("s_lshl1_add_u32 s99, s4, s98")
    e("s_lshl_b32 s99, s99, 2")

def helper():
    cmt("================ loader waves: x / wq ring, K, V, then wo / O rings (all LDS-DMA)")
    vm = Counter(A, "vmcnt", 63)
    e("s_sub_u32 s19, s7, 4")
    if cfg.rot == 3:
        e("s_add_u32 s30, s27, s28"); e("s_and_b32 s30, s30, 3"); e("s_mul_i32 s30, s30, 5"); e("s_lshr_b32 s30, s30, 1")
    elif cfg.rot == 2:
        e("s_lshl1_add_u32 s30, s28, s27"); e("s_and_b32 s30, s30, 7"); e("s_mul_i32 s30, s30, 5"); e("s_lshr_b32 s30, s30, 2")
    elif cfg.rot == 1:
        e("s_add_u32 s30, s27, s28"); e("s_and_b32 s30, s30, 1"); e("s_mul_i32 s30, s30, 5")
    elif cfg.rot >= 10:
        tab = [int(c) for c in str(cfg.rot)[1:]]
        e("s_add_u32 s30, s27, s28"); e("s_and_b32 s30, s30, 3"); e("s_lshl_b32 s30, s30, 2")
        e(f"s_lshr_b32 s30, {sum(b << (4*i) for i, b in enumerate(tab)):#x}, s30"); e("s_and_b32 s30, s30, 15")
    XV, WV = 10, 14
    e("v_lshrrev_b32 v1, 4, v0")
    e("v_and_b32 v2, 15, v0")
    e("v_lshlrev_b32 v3, 1, v1")
    e("v_xor_b32 v4, v2, v3")
    e("v_lshlrev_b32 v4, 4, v4")
    e("s_lshl_b32 s29, s19, 4")
    e("v_add_u32 v5, s29, v1")
    e(f"v_lshl_add_u32 v{WV}, v5, 13, v4")
    e(f"v_add_u32 v{WV+1}, {32768-1024}, v{WV}")
    e(f"v_xor_b32 v5, 128, v{WV}")
    e(f"v_add_u32 v{WV+2}, {2*(32768-1024)}, v5")
    e(f"v_add_u32 v{WV+3}, {3*(32768-1024)}, v5")
    e("v_lshrrev_b32 v5, 3, v0")
    e("v_and_b32 v6, 7, v0")
    e("v_and_b32 v7, 6, v5")
    e("v_xor_b32 v6, v6, v7")
    e("s_mul_i32 s29, s19, 48")
    e("v_add_u32 v5, s29, v5")
    e("v_mul_u32_u24 v5, 1280, v5")
    e(f"v_lshl_add_u32 v{XV}, v6, 4, v5")
    for t in range(1, 4):
        e(f"v_add_u32 v{XV+t}, {t*(10240-1024)}, v{XV}")
    e(f"s_mul_i32 s88, s19, {48*128}")
    e("s_lshl_b32 s89, s19, 12")
    e(f"s_mul_i32 s29, s28, {192*1280}")
    e("s_lshl_b32 s31, s26, 8")
    e(f"s_sub_u32 s38, {640*8192}, s31")
    e("s_mov_b32 s39, 0x20000")
    e(f"s_mov_b32 s34, {192*1280}")
    e("s_mov_b32 s35, 0x20000")
    e("s_mov_b32 s100, 0")
    e("s_waitcnt lgkmcnt(0)")
    e("s_add_u32 s36, s14, s31")
    e("s_addc_u32 s37, s15, 0")
    e("s_add_u32 s32, s8, s29")
    e("s_addc_u32 s33, s9, 0")

    def stage(i):
        slot = PHYS[i % 3]
        e(f"s_add_u32 m0, s89, {slot + XB}")
        e("s_lshl_b32 s90, s30, 19")
        for t in range(4):
            vm.issue(f"buffer_load_dwordx4 v{WV+t}, s[36:39], s90 offen offset:{t*1024}{cfg.nt_wq} lds", ("st", i))
        e(f"s_add_u32 m0, s88, {slot}")
        e("s_lshl_b32 s91, s30, 7")
        for t in range(4):
            vm.issue(f"buffer_load_dwordx4 v{XV+t}, s[32:35], s91 offen offset:{t*1024}{cfg.nt_x} lds", ("st", i))
        e("s_add_u32 m0, m0, 4096")
        e("s_add_u32 s91, s91, 40960")
        for t in range(2):
            vm.issue(f"buffer_load_dwordx4 v{XV+t}, s[32:35], s91 offen offset:{t*1024}{cfg.nt_x} lds", ("st", i))
        if i < 9:
            e("s_add_u32 s30, s30, 1")
            e("s_cmp_eq_u32 s30, 10")
            e("s_cselect_b32 s30, 0, s30")
    def kv_setup():
        e("s_lshl_b32 s29, s28, 6")
        e("s_add_u32 s29, s29, s26")
        e("s_mul_i32 s29, s29, 24576")
        srd(44, 12, "s29", 33*24576)
        srd(40, 10, "s29", 33*24576)
        e("v_lshlrev_b32 v18, 4, v0")
        e("s_and_b32 s31, s19, 1")
        e("s_lshl_b32 s31, s31, 7")
        e("v_xor_b32 v19, s31, v4")
        e("v_lshl_add_u32 v19, v1, 8, v19")
        e("s_lshl_b32 s93, s19, 10")
        e("v_add_u32 v19, s93, v19")
        e("s_lshl_b32 s31, s19, 2")
        e("v_add_u32 v5, s31, v1")
        e("v_xor_b32 v6, v2, v5")
        e("v_lshlrev_b32 v6, 4, v6")
        e("v_lshl_add_u32 v20, v5, 8, v6")
    def kload(kts):
        for kt in kts:
            for b in range(2):
                e(f"s_add_u32 m0, s93, {kpos(kt) + b*4096}")
                e(f"s_mov_b32 s90, {b*32*24576 + kt*4096}")
                vm.issue(f"buffer_load_dwordx4 v20, s[40:43], s90 offen{cfg.nt_k} lds", "k")
    def vload(b):
        for n in range(6):
            e(f"s_add_u32 m0, s93, {(V1B if b else V0B) + n*4096}")
            e(f"s_mov_b32 s90, {b*32*24576 + n*4096}")
            vm.issue(f"buffer_load_dwordx4 v19, s[44:47], s90 offen{cfg.nt_v} lds", "v")
    VR = 80
    def vreg():
        for n in range(6):
            e(f"s_mov_b32 s90, {n*4096}")
            vm.issue(f"buffer_load_dwordx4 {vr(VR+4*n,4)}, v19, s[44:47], s90 offen{cfg.nt_v}", "vr")
    def late_vw(k):
        cmt("V tile that was staged in registers (s100 = 1) goes to LDS now")
        e("s_cmp_eq_u32 s100, 0")
        e(f"s_cbranch_scc1 L_NOVW{k}")
        e(f"s_add_u32 s90, s93, {V0B}")
        e("v_add_u32 v22, s90, v18")
        for n in range(6):
            e(f"ds_write_b128 v22, {vr(VR+4*n,4)} offset:{n*4096}")
        lab(f"L_NOVW{k}")

    def run_sched(sched):
        iv = [x.split() for x in sched.strip().split("/")]
        assert len(iv) == 12
        setup_done = False
        for i, toks in enumerate(iv):
            for tk in toks:
                if tk[0] != "S" and not setup_done:
                    kv_setup(); setup_done = True
                if tk[0] == "S":
                    n = int(tk[1:])
                    assert n <= max(2, i + 1)
                    stage(n)
                elif tk[0] == "K":
                    assert i <= 10 and ("5" not in tk or i >= 9)
                    kload([int(c) for c in tk[1:]])
                elif tk == "V0":
                    assert i >= 9; vload(0)
                elif tk == "V1":
                    assert i >= 10; vload(1)
                elif tk == "Va":
                    vreg()
                elif tk == "W0":
                    assert i == 11
                    vm.need("vr")
                    e("s_mov_b32 s100, 1")
                else:
                    assert False, tk
            if i == 0 and not setup_done:
                kv_setup(); setup_done = True
            if i < 10:
                vm.need(("st", i))
            if i == 10:
                vm.need("k")
            if i < 11:
                e(f"s_barrier                               ; B_{i}")
            if cfg.hst == 2: continue
            if i < (10 if cfg.hst else 8): stamp(1 + i)
            if i == 10: stamp(11)

    scs = cfg.scheds.strip().split("|"); smap = cfg.smap.strip()
    smap = "".join(c * 8 for c in smap) if len(smap) == 4 else smap * (32 // len(smap))
    for k, sc in enumerate(scs):
        if k + 1 < len(scs):
            mask = sum(1 << r for r in range(32) if int(smap[r]) == k)
            e(f"s_bitcmp1_b32 {mask:#x}, s6")
            e(f"s_cbranch_scc0 L_H{k+1}")
        vm.pend = []
        run_sched(sc)
        if k + 1 < len(scs):
            e("s_branch L_HX")
            lab(f"L_H{k+1}")
    lab("L_HX")

    vm.pend = []
    ids()
    srd(48, 22, 0, 256)
    e("s_lshl_b32 s101, s99, 2")
    e("v_mov_b32 v9, 0")
    e("s_cmp_eq_u32 s94, 15")
    e("s_cbranch_scc1 L_H_NOP2")
    e("buffer_load_dwordx4 v[32:35], v9, s[48:51], s101 offen sc1")
    WO, OV = 24, 28
    e("s_mul_i32 s29, s98, 3")
    e("s_add_u32 s29, s29, s95")
    e("s_lshl_b32 s31, s29, 2")
    e(f"s_lshr_b32 s30, {sum(int(b) << (4*i) for i, b in enumerate(cfg.rtab.split(','))):#x}, s31")
    if cfg.nrot < 16:
        e("s_and_b32 s30, s30, 15")
    def stg(u):
        if cfg.nrot == 16:
            e(f"s_add_u32 s90, s30, {u}")
        elif u >= cfg.nrot:
            e(f"s_mov_b32 s90, {u}")
        else:
            e(f"s_add_u32 s90, s30, {u}")
            e(f"s_sub_u32 s91, s90, {cfg.nrot}")
            e("s_cselect_b32 s90, s90, s91")
    if cfg.rnt:
        e(f"s_mul_i32 s31, s96, {cfg.rnt}")
        e("s_add_u32 s30, s30, s31")
    e(f"s_mul_i32 s18, s97, {1024*1280}")
    e("s_lshl_b32 s31, s96, 8")
    e("s_add_u32 s18, s18, s31")
    e(f"s_sub_u32 s31, {4096*1280}, s18")
    srd(32, 16, "s18", "s31")
    e(f"s_mul_i32 s18, s3, {8*O_HEAD}")
    e("s_lshl_b32 s31, s29, 15")
    e("s_add_u32 s18, s18, s31")
    e(f"s_add_u32 s18, s18, {O_OFF - 4096}")
    srd(36, 24, "s18", 8*O_HEAD)
    e("s_lshl_b32 s31, s19, 4")
    e("v_add_u32 v5, s31, v1")
    e("v_mul_u32_u24 v5, 1280, v5")
    e(f"v_add_u32 v{WO}, v5, v4")
    e("v_xor_b32 v6, 128, v4")
    e("v_add_u32 v6, v5, v6")
    e(f"v_add_u32 v{WO+1}, {4*1280-1024}, v6")
    e(f"v_add_u32 v{WO+2}, {2*(4*1280-1024)}, v{WO}")
    e(f"v_add_u32 v{WO+3}, {3*(4*1280-1024)}, v6")
    def wdma(u, ts=range(4)):
        stg(u)
        if cfg.nrot == 16:
            e("s_and_b32 s90, s90, 15")
        e(f"s_add_u32 m0, s89, {WSL[u % 7]}")
        e("s_mul_i32 s90, s90, 81920")
        for t in ts:
            vm.issue(f"buffer_load_dwordx4 v{WO+t}, s[32:35], s90 offen offset:{t*1024}{cfg.nt_wo} lds", ("w", u))
    def o_setup():
        for j in range(4):
            e(f"s_add_u32 s31, s97, {j}")
            e("s_and_b32 s31, s31, 3")
            e(f"s_add_u32 s31, s31, {4-j}")
            e("s_lshl_b32 s31, s31, 10")
            e("s_add_u32 s31, s31, s89")
            e(f"v_add_u32 v{OV+j}, s31, v18")
        e("s_and_b32 s88, s19, 1")
        e("s_lshl_b32 s88, s88, 12")
        e("s_cmp_ge_u32 s19, 2")
        e(f"s_mov_b32 s31, {V1B}")
        e(f"s_cselect_b32 s31, {V0B}, s31")
        e("s_add_u32 s88, s88, s31")
    def cleared(k):
        cmt("the flag lines of all four head groups must have been cleared in this launch")
        e(f"s_mov_b32 s31, {cfg.spin}")
        lab(f"L_CNT{k}")
        e("v_and_b32 v32, v32, v33")
        e("v_and_b32 v34, v34, v35")
        e("v_and_b32 v32, v32, v34")
        e("s_sub_u32 s31, s31, 1")
        e("v_readfirstlane_b32 s29, v32")
        e(f"s_cbranch_scc1 L_CNTOK{k}")
        e("s_cmp_eq_u32 s29, 1")
        e(f"s_cbranch_scc1 L_CNTOK{k}")
        e("buffer_load_dwordx4 v[32:35], v9, s[48:51], s101 offen sc1")
        e("s_waitcnt vmcnt(0)")
        e(f"s_branch L_CNT{k}")
        lab(f"L_CNTOK{k}")
    plans = [tuple(int(x) for x in p.split(",")) for p in cfg.wp.strip().split("/")]
    if plans[0] == plans[1]:
        plans = plans[:1]
    else:
        e("s_cmp_lg_u32 s98, 0")
        e("s_cbranch_scc1 L_WP1")
    for k, (a, b) in enumerate(plans):
        assert a <= 4 and a <= b <= cfg.wpoll
        vm.pend = []
        if k:
            lab("L_WP1")
        for u in range(a):
            wdma(u)
        if cfg.vwm:
            o_setup()
        if cfg.vwm == 2:
            e(f"s_waitcnt vmcnt({4*a})")
        late_vw(k)
        e(f"s_waitcnt vmcnt({4*a}) lgkmcnt(0)")
        cleared(k)
        e("s_barrier")
        for u in range(a, b):
            wdma(u)
        if not cfg.vwm:
            o_setup()
        e("s_barrier")
        for u in range(b, cfg.wpoll):
            wdma(u)
        if k + 1 < len(plans):
            e("s_branch L_WP2")
    lab("L_WP2")
    if not cfg.hst: stamp(9)
    def oaddr(u):
        stg(u)
        e("s_bfe_u32 s91, s90, 0x30001")
        e("s_and_b32 s90, s90, 1")
        e(f"s_mul_i32 s91, s91, {O_HEAD}")
        e("s_lshl_b32 s90, s90, 14")
        e(f"s_add_u32 m0, s88, {(u % 3)*8192}")
        e("s_add_u32 s90, s90, s91")
    def oissue(u):
        for j in range(4):
            vm.issue(f"buffer_load_dwordx4 v{OV+j}, s[36:39], s90 offen offset:{j*1024}{cfg.o_ld} lds", ("o", u))
    oaddr(0)
    vm.need(*[("w", u) for u in range(cfg.prea)])
    e("s_barrier")
    if not cfg.hst: stamp(10)
    oissue(0)
    oaddr(1)
    wq = [(u, t) for u in range(cfg.wpoll, 16) for t in range(4)]
    wts = [0 if (i < cfg.wfirst or i > 13) else (100 if i <= 16 - cfg.ndef else cfg.wtail) for i in range(16)]
    R, done = len(wq), 0
    for i in range(16):
        if i + 1 < 16:
            oissue(i + 1)
        tgt = -(-(sum(wts[:i+1]) * R) // sum(wts))
        tgt = max(tgt, sum(1 for (u, t) in wq if u <= i + 1))
        tgt = min(tgt, sum(1 for (u, t) in wq if u <= max(6, i + 5)))
        grp = wq[done:tgt]; done = max(done, tgt)
        for u in sorted(set(g[0] for g in grp)):
            wdma(u, [t for (uu, t) in grp if uu == u])
        if i + 2 < 16:
            oaddr(i + 2)
        vm.need(("o", i), ("w", i))
        e(f"s_barrier                               ; C_{i}")
        if cfg.hst == 2:
            if i >= 2: stamp(i - 1)
            continue
        if i == 0: stamp(12)
        if i == 4: stamp(13)
        if i == 15: stamp(14)
    assert done == R
    e("s_branch L_FIN")
    lab("L_H_NOP2")
    if cfg.nrot < 16:
        cmt("no tile: pull the wo rows of the last stages into L2 for the other workgroups (one dword per line, values unused)")
        total = (16 - cfg.nrot) * 81920
        npc = -(-total // 32768)
        e(f"s_mul_i32 s18, s97, {1024*1280}")
        e(f"s_add_u32 s18, s18, {cfg.nrot*81920}")
        srd(32, 16, "s18", total)
        e("s_lshl_b32 s31, s19, 13")
        e("v_lshl_add_u32 v24, v0, 7, s31")
        e(f"s_mul_i32 s90, s98, {cfg.lead0*32768}")
        e(f"s_mul_i32 s91, s98, {(npc - cfg.lead0)*32768}")
        e(f"s_add_u32 s91, s91, {cfg.lead0*32768}")
        for k in range(cfg.lpre):
            e("buffer_load_dword v25, v24, s[32:35], s90 offen")
            e("s_add_u32 s90, s90, 32768")
        e(f"s_waitcnt vmcnt({cfg.lpre})")
        e("s_mov_b32 s88, s90")
        late_vw(9)
        e("s_waitcnt lgkmcnt(0)")
        e("s_barrier                               ; B_11")
        e("s_barrier                               ; E")
        lab("L_LEAD")
        e("s_cmp_ge_u32 s88, s91")
        e("s_cbranch_scc1 L_FIN")
        e("buffer_load_dword v25, v24, s[32:35], s88 offen")
        e("s_add_u32 s88, s88, 32768")
        e("s_branch L_LEAD")
        return
    late_vw(9)
    e("s_waitcnt vmcnt(0) lgkmcnt(0)")
    e("s_barrier                               ; B_11")
    e("s_barrier                               ; E")
    e("s_branch L_FIN")

def compute():
    lab("L_COMPUTE")
    lg = Counter(A, "lgkmcnt", 15)
    AB = 96
    BB = [128, 152]
    AA = 176
    BA = 184
    KA, FONE, FOFF, LANE, OA, VA0 = 186, 252, 253, 254, 190, 191
    KB = [192, 208, 96]
    T0 = 224
    acc = lambda T, j: (T*3+j)*4
    if cfg.prio:
        e(f"s_setprio {cfg.prio}")
    e(f"v_mov_b32 v{LANE}, v0")
    e(f"v_lshrrev_b32 v{T0}, 4, v0")
    e(f"v_and_b32 v{T0+1}, 15, v0")
    e(f"v_bfe_u32 v{T0+2}, v0, 2, 2")
    e(f"v_and_b32 v{T0+3}, 3, v0")
    ids()
    e("s_add_u32 s29, s99, s97")
    e("s_lshl_b32 s101, s29, 2")
    e(f"s_mul_i32 s43, s29, {2*FG}")
    e("s_lshr_b32 s29, s94, 3")
    e(f"s_mul_i32 s29, s29, {FG}")
    e("s_lshl_b32 s39, s27, 10")
    e("s_add_u32 s39, s39, s29")
    e("s_add_u32 s100, s43, s39")
    e(f"v_mov_b32 v{T0+8}, 0")
    e(f"v_mov_b32 v{FONE}, 1")
    e(f"v_lshlrev_b32 v{T0+10}, 7, v0")
    e("s_lshl4_add_u32 s93, s7, s94")
    e("s_waitcnt lgkmcnt(0)")
    srd(44, 24, 0, FLAG_SZ)
    srd(48, 22, 0, 256)
    e("s_cmp_lg_u32 s93, 15")
    e("s_cbranch_scc1 L_NOCLR")
    e("s_mov_b32 exec_lo, 0x1f1f1f1f")
    e("s_mov_b32 exec_hi, 0x1f1f1f1f")
    for k in range(2*FG // 8192):
        e(f"s_add_u32 s31, s43, {k*8192}")
        e(f"buffer_store_dword v{T0+8}, v{T0+10}, s[44:47], s31 offen sc1")
    e("s_mov_b64 exec, -1")
    lab("L_NOCLR")
    e(f"v_lshl_add_u32 v{T0+4}, v{T0}, 3, v{T0+2}")
    e(f"v_lshlrev_b32 v{T0+4}, 8, v{T0+4}")
    e(f"v_lshl_add_u32 v{T0+4}, v{T0+3}, 3, v{T0+4}")
    e(f"v_add_u32 v{T0+4}, {XB}, v{T0+4}")
    e(f"v_and_b32 v{T0+5}, 1, v{T0}")
    e(f"v_lshl_add_u32 v{T0+5}, v{T0+5}, 2, v{T0+2}")
    for T in range(8):
        e(f"v_xor_b32 v{T0+6}, {T}, v{T0+5}")
        e(f"v_lshl_add_u32 v{AA+T}, v{T0+6}, 5, v{T0+4}")
    e(f"v_and_b32 v{T0+6}, 6, v{T0+1}")
    e(f"v_xor_b32 v{T0+6}, v{T0+6}, v{T0}")
    e(f"v_lshlrev_b32 v{T0+6}, 4, v{T0+6}")
    e(f"v_lshl_add_u32 v{T0+6}, v{T0+1}, 7, v{T0+6}")
    e(f"s_mul_i32 s29, s7, {48*128}")
    e(f"v_add_u32 v{BA}, s29, v{T0+6}")
    e(f"v_xor_b32 v{BA+1}, 64, v{BA}")
    e("s_lshr_b32 s19, s7, 1")
    e("s_lshl_b32 s29, s19, 12")
    e(f"s_add_u32 s29, s29, {K0B}")
    e(f"v_lshrrev_b32 v{T0+6}, 1, v{T0}")
    e(f"v_xor_b32 v{T0+6}, v{T0+6}, v{T0+1}")
    e(f"v_lshlrev_b32 v{T0+6}, 4, v{T0+6}")
    e(f"v_lshl_add_u32 v{T0+6}, v{T0+1}, 8, v{T0+6}")
    e(f"v_and_b32 v{T0+7}, 1, v{T0}")
    e(f"v_lshl_add_u32 v{T0+6}, v{T0+7}, 3, v{T0+6}")
    e(f"v_add_u32 v{KA}, s29, v{T0+6}")
    e(f"v_lshrrev_b32 v{T0+6}, 2, v0")
    e(f"v_and_b32 v{T0+7}, 7, v{T0+6}")
    e(f"v_lshlrev_b32 v{T0+6}, 8, v{T0+6}")
    e(f"v_lshl_add_u32 v{T0+6}, v{T0+7}, 5, v{T0+6}")
    e(f"v_lshl_add_u32 v{T0+6}, v{T0+3}, 3, v{T0+6}")
    e("s_cmp_eq_u32 s19, 0")
    e(f"s_mov_b32 s29, {V1B}")
    e(f"s_cselect_b32 s29, {V0B}, s29")
    e(f"v_add_u32 v{VA0}, s29, v{T0+6}")
    e(f"v_lshlrev_b32 v{OA}, 4, v0")
    e("s_lshl_b32 s30, s7, 7")
    e(f"v_lshl_add_u32 v{FOFF}, v0, 13, s30")
    for i in range(96):
        e(f"v_mov_b32 v{i}, 0")
    e("s_lshl_b32 s29, s4, 5")
    e("s_add_u32 s29, s29, s26")
    e(f"s_mul_i32 s29, s29, {O_HEAD}")
    e(f"s_add_u32 s29, s29, {O_OFF}")
    srd(32, 24, "s29", O_HEAD)
    e("s_mul_i32 s29, s28, 12")
    e("s_mul_i32 s31, s7, 3")
    e("s_add_u32 s29, s29, s31")
    for j in range(3):
        e(f"s_add_u32 s31, s29, {j}")
        e("s_lshr_b32 s18, s31, 3")
        e("s_lshl_b32 s18, s18, 15")
        e("s_and_b32 s31, s31, 7")
        e("s_lshl_b32 s31, s31, 10")
        e(f"s_add_u32 s{40+j}, s31, s18")
    e(f"s_mul_i32 s18, s99, {2*FG}")
    e("s_add_u32 s18, s18, s39")
    e("s_add_u32 s18, s18, s30")
    e("s_add_u32 s18, s18, 128")
    e("s_add_u32 s8, s24, s18")
    e("s_addc_u32 s9, s25, 0")
    e("s_lshl_b32 s18, s7, 11")
    e("s_add_u32 s18, s18, s43")
    e("s_add_u32 s10, s24, s18")
    e("s_addc_u32 s11, s25, 0")
    e("s_cmp_eq_u32 s95, 2")
    e(f"s_cselect_b32 s12, {FG}, 0")
    e("s_cmp_lg_u32 s93, 15")
    e("s_cbranch_scc1 L_NOCLR2")
    e("s_waitcnt vmcnt(0)")
    e("s_mov_b64 exec, 1")
    e(f"buffer_store_dword v{FONE}, v{T0+8}, s[48:51], s101 offen sc1")
    e("s_mov_b64 exec, -1")
    lab("L_NOCLR2")

    def a_rd(T):
        return [(f"ds_read_b64_tr_b16 {vr(AB + (T & 3)*8 + s*4 + h*2, 2)}, v{AA+T} offset:{s*8192 + h*1024}", ("A", T & 3, s))
                for s in range(2) for h in range(2)]
    def b_rd(j, s, par):
        return (f"ds_read_b128 {vr(BB[par]+(j*2+s)*4,4)}, v{BA+s} offset:{j*2048}", ("B", par, j, s))
    def head_reads(par):
        a0 = a_rd(0)
        return [a0[0], a0[1], b_rd(0,0,par), a0[2], a0[3], b_rd(0,1,par), b_rd(1,0,par), b_rd(1,1,par),
                b_rd(2,0,par), b_rd(2,1,par)] + a_rd(1)
    def k_rd(kt):
        return [(f"ds_read_b64 {vr(KB[kt%3]+4*s+2*h,2)}, v{AA+2*s+h} offset:{kpos(kt) - K0B}", ("K", kt % 3, s))
                for s in range(4) for h in range(2)]
    def cvtq(s):
        return [x for j in range(3) for x in cvt4(acc(2*s, j), acc(2*s, j), acc(2*s+1, j))]
    def emit(x):
        if isinstance(x, tuple):
            lg.issue(x[0], x[1])
        else:
            e(x)
    def qstage(par, last=False, exit_label=None):
        att = {n: [] for n in range(48)}
        for T, n0 in ((2,0),(3,4),(4,8),(5,12),(6,18),(7,24)):
            for k, r in enumerate(a_rd(T)):
                att[n0+k].append(r)
        if not last:
            adv = [f"v_add_u32 v{AA+T}, s30, v{AA+T}" for T in range(8)] + [f"v_add_u32 v{BA+s}, s30, v{BA+s}" for s in range(2)]
            for k, x in enumerate(adv):
                att[28 + k//2].append(x)
            att[16] += ["s_mov_b32 s30, s88", "s_mov_b32 s88, s89"]
            att[17] += ["s_mov_b32 s89, s90", "s_mov_b32 s90, s30"]
            if par == 0:
                att[22].append("s_add_u32 s29, s29, 1")
                att[23].append("s_cmp_eq_u32 s29, 5")
            for k, r in enumerate(head_reads(par ^ 1)):
                att[34+k].append(r)
        else:
            for k in range(8):
                att[(4, 5, 8, 9, 12, 16, 22, 28)[k]].append(f"v_xor_b32 v{AA+k}, {32*k}, v{KA}")
            for k, r in enumerate(k_rd(0) + k_rd(1)[:4]):
                att[min(47, cfg.kbar + 1 + k//2)].append(r)
            for k, x in enumerate(cvtq(0)):
                att[(16, 17, 17, 18, 19, 20, 21, 22, 23, 23, 24, 25)[k]].append(x)
            for k, x in enumerate(cvtq(1)):
                att[(26, 27, 28, 29, 29, 30, 30, 31, 31, 32, 32, 33)[k]].append(x)
            for k, x in enumerate(cvtq(2)):
                att[40 + (k*2)//3].append(x)
        for n in range(48):
            T, j, s = n//6, (n % 6)//2, n % 2
            if cfg.snake:
                s ^= (n // 2) & 1
                if cfg.snake == 2 and T & 1 and not last: j = 2 - j
            if n % 6 == 0:
                lg.need(("A", T & 3, 0), ("A", T & 3, 1), *([("B", par, 0, 0), ("B", par, 0, 1)] if T == 0 else []))
            if T == 0 and n == 2:
                lg.need(*[("B", par, jj, ss) for jj in (1, 2) for ss in (0, 1)])
            e(mfma(acc(T, j), AB + (T & 3)*8 + s*4, BB[par] + (j*2+s)*4))
            for x in att[n]:
                emit(x)
            if cfg.qn and (n * cfg.qn) // 48 != ((n + 1) * cfg.qn) // 48:
                e("s_nop 5")
            if n == (cfg.kbar if last else 33):
                lg.drain()
                e("s_barrier                               ; B_{i+1}: this stage read, next one (or K) landed")
        if exit_label:
            e(f"s_cbranch_scc1 {exit_label}")

    e("s_mov_b32 s29, 0")
    e(f"s_mov_b32 s88, {2*SLOT}")
    e(f"s_mov_b32 s89, {(-SLOT) & 0xffffffff}")
    e("s_mov_b32 s90, s89")
    e("s_barrier                               ; B_0")
    stamp(1)
    for r in head_reads(0):
        emit(r)
    lab("L_QLOOP")
    qstage(0, exit_label="L_QDONE")
    saved = [set(t) for t in lg.pend]
    qstage(1)
    e("s_branch L_QLOOP")
    lab("L_QDONE")
    lg.pend = saved
    qstage(1, last=True)
    stamp(2)
    QB = lambda s, j: acc(2*s, j)
    sregs = [acc(T, j) for T in (1, 3, 5) for j in range(3)] + [BB[0] + 4*k for k in range(6)] + [acc(7, j) for j in range(3)]
    SS = lambda kt, j: sregs[kt*3 + j]
    M = T0
    vaddr = [f"v_xor_b32 v{AA+T}, {32*T}, v{VA0}" for T in range(8)]
    c = math.log2(math.e) / math.sqrt(128.0)
    cbits = struct.unpack("<I", struct.pack("<f", c))[0]
    ONES = T0 + 12
    for kt in range(6):
        lg.need(*[("K", kt % 3, s) for s in range(4)])
        order = [(j, s) for j in range(3) for s in range(4)] if kt else \
                [(j, s) for j in range(3) for s in range(3)] + [(j, 3) for j in range(3)]
        att = {n: [] for n in range(12)}
        rd = k_rd(kt + 2) if kt + 2 < 6 else []
        if kt == 0:
            for k, x in enumerate(k_rd(1)[4:]):
                att[k//2].append(x)
            for k, x in enumerate(cvtq(3)):
                att[2 + k//2].append(x)
            for k, x in enumerate(rd):
                att[8 + k//2].append(x)
        else:
            for k, x in enumerate(rd):
                att[k].append(x)
        if kt == 4:
            for k, x in enumerate(vaddr):
                att[(0, 0, 1, 1, 2, 2, 10, 10)[k]].append(x)
        if kt == 5:
            att[0] += [f"s_mov_b32 s30, {cbits:#x}", f"s_mov_b32 s31, {cbits:#x}"]
            for r in range(4):
                att[1 + r//2].append(f"v_mov_b32 v{ONES+r}, 0x3f803f80")
        if kt >= 1:
            for j in range(3):
                b = SS(kt-1, j)
                if kt == 1:
                    att[5 + 2*j] += [f"v_max3_f32 v{M+j}, v{b}, v{b+1}, v{b+2}"]
                    att[6 + 2*j] += [f"v_max_f32 v{M+j}, v{M+j}, v{b+3}"]
                else:
                    o = 6 if kt < 4 else 4
                    att[o + 2*j] += [f"v_max3_f32 v{M+j}, v{M+j}, v{b}, v{b+1}"]
                    att[o + 1 + 2*j] += [f"v_max3_f32 v{M+j}, v{M+j}, v{b+2}, v{b+3}"]
        if kt == 5:
            b = SS(5, 0)
            att[10] += [f"v_max3_f32 v{M}, v{M}, v{b}, v{b+1}"]
            att[11] += [f"v_max3_f32 v{M}, v{M}, v{b+2}, v{b+3}"]
        for n, (j, s) in enumerate(order):
            e(mfma(SS(kt, j), KB[kt % 3] + 4*s, QB(s, j), "0" if s == 0 else None))
            for x in att[n]:
                emit(x)
    b = SS(5, 1)
    e(f"v_mov_b32 v{M+4}, v{M}")
    e(f"v_max3_f32 v{M+1}, v{M+1}, v{b}, v{b+1}")
    e(f"v_max3_f32 v{M+1}, v{M+1}, v{b+2}, v{b+3}")
    e(f"v_permlane32_swap_b32 v{M}, v{M+4}")
    e(f"v_mov_b32 v{M+5}, v{M+1}")
    e(f"v_max_f32 v{M}, v{M}, v{M+4}")
    e(f"v_mov_b32 v{M+4}, v{M}")
    b = SS(5, 2)
    e(f"v_permlane32_swap_b32 v{M+1}, v{M+5}")
    e(f"v_max3_f32 v{M+2}, v{M+2}, v{b}, v{b+1}")
    e(f"v_max3_f32 v{M+2}, v{M+2}, v{b+2}, v{b+3}")
    e(f"v_permlane16_swap_b32 v{M}, v{M+4}")
    e(f"v_mov_b32 v{M+6}, v{M+2}")
    e(f"v_max_f32 v{M+1}, v{M+1}, v{M+5}")
    e(f"v_mov_b32 v{M+5}, v{M+1}")
    e(f"v_permlane32_swap_b32 v{M+2}, v{M+6}")
    e(f"v_max_f32 v{M}, v{M}, v{M+4}")
    e(f"v_permlane16_swap_b32 v{M+1}, v{M+5}")
    e(f"v_max_f32 v{M+2}, v{M+2}, v{M+6}")
    e(f"v_mov_b32 v{M+6}, v{M+2}")
    e(f"v_max_f32 v{M+1}, v{M+1}, v{M+5}")
    e("s_nop 0")
    e(f"v_permlane16_swap_b32 v{M+2}, v{M+6}")
    e(f"v_max_f32 v{M+2}, v{M+2}, v{M+6}")
    NM = T0 + 4
    for j in range(3):
        e(f"v_mul_f32 v{NM+2*j}, s30, v{M+j}")
    stamp(3)
    pregs = [BB[1] + 4*k for k in range(6)] + [AB + 4*k for k in range(3)]
    PB = lambda s, j: pregs[s*3 + j]
    LS = T0 + 16
    VB = [KB[0], KB[0]+12, AB+12]
    def v_rd(T):
        return [(f"ds_read_b64_tr_b16 {vr(VB[T%3]+4*s+2*h,2)}, v{AA+T} offset:{(32*s+16*h)*256}", ("V", T % 3))
                for s in range(3) for h in range(2)]
    def v_start():
        stamp(4)
        e("s_barrier                               ; B_11: V visible")
        stamp(5)
        for r in v_rd(0) + v_rd(1):
            emit(r)
    pend_m = []
    for s in range(3):
        for j in range(3):
            if cfg.vbar and s*3 + j == 9 - cfg.vbar:
                v_start()
            for kt in (2*s, 2*s+1):
                b = SS(kt, j)
                for h in range(2):
                    e(f"v_pk_fma_f32 {vr(b+2*h,2)}, {vr(b+2*h,2)}, s[30:31], {vr(NM+2*j,2)} op_sel_hi:[1,1,0] neg_lo:[0,0,1] neg_hi:[0,0,1]")
            if pend_m:
                e(pend_m.pop())
            for kt in (2*s, 2*s+1):
                b = SS(kt, j)
                for r in range(4):
                    e(f"v_exp_f32 v{b+r}, v{b+r}")
            for x in cvt4(PB(s, j), SS(2*s, j), SS(2*s+1, j)):
                e(x)
            pend_m.append(mfma(LS+4*j, ONES, PB(s, j), "0" if s == 0 else None))
    if not cfg.vbar:
        v_start()
        e(pend_m.pop())
    RC = T0 + 4
    def epi(s, pk=False):
        r = []
        for j in range(3):
            a0, a1 = acc(2*s, j), acc(2*s+1, j)
            for a in (a0, a1):
                if pk:
                    r += [f"v_pk_mul_f32 {vr(a+2*h,2)}, {vr(a+2*h,2)}, {vr(RC+2*j,2)} op_sel_hi:[1,0]" for h in range(2)]
                else:
                    r += [f"v_mul_f32 v{a+k}, v{a+k}, v{RC+2*j}" for k in range(4)]
            r += cvt4(a0, a0, a1)
            r.append(f"buffer_store_dwordx4 {vr(a0,4)}, v{OA}, s[32:35], s{40+j} offen{cfg.o_st}")
        if s < 3:
            r.append(f"v_add_u32 v{OA}, 8192, v{OA}")
        return r
    backlog = []
    for T in range(8):
        lg.need(("V", T % 3))
        rd = v_rd(T+2) if T + 2 < 8 else []
        if T == 1:
            backlog += [f"v_rcp_f32 v{RC+2*j}, v{LS+4*j}" for j in range(3)]
        n = 0
        for j in range(3):
            for s in range(3):
                e(mfma(acc(T, j), VB[T % 3] + 4*s, PB(s, j), "0" if s == 0 else None))
                if pend_m and n == 1:
                    e(pend_m.pop())
                k = 0
                if rd:
                    emit(rd.pop(0)); k += 1
                if T >= 2 and T % 2 == 0 and n == 1:
                    backlog += epi(T//2 - 1)
                while backlog and k < 2:
                    e(backlog.pop(0)); k += 1
                n += 1
    for x in backlog:
        e(x)
    stamp(6)
    for x in epi(3, True):
        e(x)
    stamp(7)
    PA = [64, 96]; PBb = [128, 160]
    QA, QB2 = 192, 204
    T1 = 206
    HOLD = 212
    e(f"v_lshrrev_b32 v{T1+2}, 2, v{LANE}")
    e(f"v_and_b32 v{T1+3}, 7, v{T1+2}")
    e("s_and_b32 s29, s7, 1")
    e("s_lshl_b32 s30, s29, 2")
    e(f"v_xor_b32 v{T1+3}, s30, v{T1+3}")
    e(f"v_lshlrev_b32 v{T1+2}, 8, v{T1+2}")
    e(f"v_lshl_add_u32 v{T1+2}, v{T1+3}, 5, v{T1+2}")
    e(f"v_and_b32 v{T1+3}, 3, v{LANE}")
    e(f"v_lshl_add_u32 v{T1+2}, v{T1+3}, 3, v{T1+2}")
    for T in range(4):
        e(f"v_xor_b32 v{QA+T}, {32*T}, v{T1+2}")
        e(f"v_add_u32 v{QA+4+T}, {WSL[3]}, v{QA+T}")
        e(f"v_add_u32 v{QA+8+T}, {WSL[4]}, v{QA+T}")
    e(f"v_lshlrev_b32 v{T1}, 4, v{LANE}")
    e("s_lshl_b32 s30, s19, 12")
    e(f"s_add_u32 s30, s30, {V1B}")
    e(f"v_add_u32 v{QB2}, s30, v{T1}")
    e(f"v_add_u32 v{QB2+1}, {V0B - V1B}, v{QB2}")
    nd = 2 if cfg.dup else 1
    fl = [[13, 14, 15, 16], [17, 18, 88, 89]]
    e("s_cmp_lg_u32 s95, 1")
    e("s_cselect_b32 s15, 1, 0")
    e("s_mov_b32 s16, s15")
    e("s_mov_b32 s13, 0")
    e("s_mov_b32 s14, 0")
    if cfg.dup:
        for r in fl[1]:
            e(f"s_mov_b32 s{r}, 0")
    e(f"s_mov_b32 s31, {cfg.spin}")
    e("s_cmp_eq_u32 s7, 0")
    e("s_cbranch_scc1 L_FLAG")
    e("s_waitcnt vmcnt(0)")
    stamp(8)
    e("s_barrier                               ; E")
    e("s_branch L_NOFLAG")
    lab("L_FLAG")
    e(f"s_mov_b64 exec, {3 if cfg.dup else 1}")
    e("s_waitcnt vmcnt(0)")
    stamp(8)
    e("s_barrier")
    e(f"buffer_store_dword v{FONE}, v{FOFF}, s[44:47], s100 offen sc1")
    e("s_mov_b64 exec, -1")
    lab("L_NOFLAG")
    e("s_cmp_eq_u32 s94, 15")
    e("s_cbranch_scc1 L_FIN")
    lab("L_POLL")
    for k in range(4):
        e(f"s_cmp_lg_u32 s{fl[0][k]}, 0")
        e(f"s_cbranch_scc1 L_PS{k}")
        for d in range(nd):
            if k < 2:
                e(f"s_load_dword s{fl[d][k]}, s[10:11], s12 offset:{k*1024 + d*8192} glc")
            else:
                e(f"s_load_dword s{fl[d][k]}, s[10:11], {FG + (k-2)*1024 + d*8192} glc")
        lab(f"L_PS{k}")
    e("s_sub_u32 s31, s31, 1")
    e("s_cbranch_scc1 L_GO")
    e("s_waitcnt lgkmcnt(0)")
    if cfg.dup:
        for k in range(4):
            e(f"s_or_b32 s{fl[0][k]}, s{fl[0][k]}, s{fl[1][k]}")
    e("s_and_b32 s5, s13, s14")
    e("s_and_b32 s30, s15, s16")
    e("s_and_b32 s5, s5, s30")
    e("s_cbranch_scc0 L_POLL")
    lab("L_GO")
    e("s_barrier                               ; D")
    e("s_waitcnt lgkmcnt(0)")
    e("s_mul_i32 s18, s99, 15")
    e("s_lshl2_add_u32 s18, s94, s18")
    e("s_lshl2_add_u32 s18, s18, s7")
    e(f"s_mul_i32 s18, s18, {P_W}")
    e(f"s_add_u32 s18, s18, {PART_OFF}")
    srd(32, 24, "s18", 16*P_W)
    for d in range(4):
        e(f"s_add_u32 s18, s97, {d}")
        e("s_and_b32 s18, s18, 3")
        e(f"s_mul_i32 s18, s18, {4*P_W}")
        e(f"s_add_u32 s{36+d}, s18, {max(d-1,0)*2048}")
        if d:
            e(f"s_sub_u32 s18, s97, {d}")
            e("s_and_b32 s18, s18, 3")
            e(f"s_mul_i32 s{88+d}, s18, {2*FG}")
    e("s_mul_i32 s18, s98, 3")
    e("s_add_u32 s18, s18, s95")
    e("s_lshl1_add_u32 s18, s18, s19")
    e("s_lshl2_add_u32 s18, s18, s97")
    e(f"s_mul_i32 s18, s18, {16*2560}")
    e("s_mul_i32 s30, s4, 1280")
    e("s_add_u32 s18, s18, s30")
    e("s_lshl1_add_u32 s30, s96, s29")
    e("s_lshl_b32 s30, s30, 7")
    e("s_add_u32 s18, s18, s30")
    e(f"s_sub_u32 s30, {768*2560}, s18")
    srd(40, 20, "s18", "s30")
    e(f"v_and_b32 v{T1+1}, 15, v{LANE}")
    e(f"v_mul_u32_u24 v{T1+1}, 2560, v{T1+1}")
    e(f"v_and_b32 v{T1+2}, 48, v{LANE}")
    e(f"v_add_u32 v{T1+1}, v{T1+1}, v{T1+2}")

    ND = cfg.ndef
    assert 2 <= ND <= 7
    pacc = lambda T, j: (T*4+j)*4
    def breg(u, j):
        if j == 0 and 16 - ND <= u < 14:
            return HOLD + 8*(u - (16 - ND))
        return PBb[u & 1] + j*8
    def pa_rd(u, T, buf):
        k = u % 7
        areg = QA + 4*(0 if k < 3 else 1 if k == 3 else 2)
        aoff = WSL[k] - (0 if k < 3 else WSL[3] if k == 3 else WSL[4])
        return [(f"ds_read_b64_tr_b16 {vr(PA[buf]+T*8+s*4+h*2,2)}, v{areg+T} offset:{aoff + (32*s+16*h)*256}", ("PA", buf, T))
                for s in range(2) for h in range(2)]
    def p_reads(u):
        b = u & 1
        bb = lambda j: [(f"ds_read_b128 {vr(breg(u, j)+s*4,4)}, v{QB2+s} offset:{(u%3)*8192 + j*1024}", ("PB", b, j)) for s in range(2)]
        if u < cfg.prea:
            return bb(0) + bb(1) + bb(2) + bb(3)
        if u >= 16 - ND:
            return pa_rd(u,0,b) + bb(1) + bb(2) + bb(3) + pa_rd(u,1,b) + pa_rd(u,2,b) + pa_rd(u,3,b) + bb(0)
        return pa_rd(u,0,b) + bb(0) + bb(1) + bb(2) + bb(3) + pa_rd(u,1,b) + pa_rd(u,2,b) + pa_rd(u,3,b)
    def pm(u, T, j, s, buf=None, first=False):
        return mfma(pacc(T, j), PA[u & 1 if buf is None else buf]+T*8+s*4, breg(u, j)+s*4, "0" if first else None)
    def send(d):
        r = []
        for Tp in range(2):
            a0 = pacc(2*Tp, d)
            r += cvt4(a0, a0, pacc(2*Tp+1, d))
            r.append(f"buffer_store_dwordx4 {vr(a0,4)}, v{T1}, s[32:35], s{36+d} offen offset:{Tp*1024}{cfg.p_st}")
        return r
    lg.pend = []
    for u in range(cfg.prea):
        for T in range(4):
            for r in pa_rd(u, T, u):
                emit(r)
    e("s_barrier                               ; C_0")
    stamp(9)
    for r in p_reads(0):
        emit(r)
    for u in range(15):
        b = u & 1
        rd = p_reads(u+1)
        js = (1, 2, 3) if u >= 16 - ND else (0, 1, 2, 3)
        seq = [(T, j, s) for T in range(4) for j in (js[::-1] if (cfg.snake == 2 and T & 1) else js) for s in range(2)]
        if cfg.snake:
            seq = [(T, j, s ^ ((n // 2) & 1)) for n, (T, j, s) in enumerate(seq)]
        pb = min(cfg.pbar, 5) if len(js) == 3 else cfg.pbar
        for n, (T, j, s) in enumerate(seq):
            if u == 0:
                lg.need(("PA", b, T), ("PB", b, j))
            elif n == 0:
                lg.need(("PA", b, 0), *[("PB", b, jj) for jj in js])
            e(pm(u, T, j, s, first=(u == 0 and n % 2 == 0)))
            if n == pb:
                lg.drain()
                e(f"s_barrier                               ; C_{u+1}")
            if n > pb and rd:
                emit(rd.pop(0))
                if len(js) == 3 and n < pb + 9:
                    emit(rd.pop(0))
        assert not rd
    seq = [(15, T, j, s) for j in (1, 2, 3) for T in range(4) for s in range(2)] + \
          [(uu, T, 0, s) for uu in (14, 15) for T in range(4) for s in range(2)]
    if cfg.snake:
        seq = [(uu, T, j, s ^ ((n // 2) & 1)) for n, (uu, T, j, s) in enumerate(seq)]
    older = list(range(16 - ND, 14))
    fill = []
    for n, (uu, T, j, s) in enumerate(seq):
        lg.need(("PA", 1, T), ("PB", 1, j))
        e(pm(uu, T, j, s))
        if n in (9, 17, 25):
            fill += send(n // 8)
        if n >= 32 and older:
            fill += pa_rd(older[0], (n - 32)//2, 0)[2*(n & 1):2*(n & 1)+2]
        for _ in range(2):
            if fill:
                emit(fill.pop(0))
    assert not fill
    def old_stage(k):
        for T in range(4):
            lg.need(("PA", k & 1, T))
            for s in range(2):
                e(pm(older[k], T, 0, s, k & 1))
                if k + 1 < len(older):
                    for r in pa_rd(older[k+1], T, (k+1) & 1)[2*s:2*s+2]:
                        emit(r)
    nbefore = min(len(older), 2)
    for k in range(nbefore):
        old_stage(k)
    stamp(10)
    e("s_add_u32 s37, s36, 4096")
    e(f"s_mov_b64 exec, {3 if cfg.dup else 1}")
    e("s_waitcnt vmcnt(0)")
    stamp(11)
    e(f"buffer_store_dword v{FONE}, v{FOFF}, s[44:47], s100 offen offset:128 sc1")
    e("s_mov_b64 exec, -1")
    for k in range(nbefore, len(older)):
        old_stage(k)
    RB = 136
    def p3_loads(d0):
        for dd in range(d0, 4):
            for d in range(nd):
                e(f"s_load_dword s{12+dd+3*d}, s[8:9], s{88+dd} offset:{d*8192} glc")
    p3_loads(1)
    e("s_mov_b32 s30, 0xffff0000")
    e("s_waitcnt lgkmcnt(0)")
    for d in (1, 2, 3):
        e(f"s_mov_b32 s31, {cfg.spin}")
        lab(f"L_P3W{d}")
        if cfg.dup:
            e(f"s_or_b32 s5, s{12+d}, s{15+d}")
        else:
            e(f"s_cmp_lg_u32 s{12+d}, 0")
        e(f"s_cbranch_scc1 L_P3G{d}")
        p3_loads(d)
        e("s_sub_u32 s31, s31, 1")
        e("s_waitcnt lgkmcnt(0)")
        e(f"s_cbranch_scc0 L_P3W{d}")
        lab(f"L_P3G{d}")
        for f in (2*d - 2, 2*d - 1):
            e(f"buffer_load_dwordx4 {vr(RB+4*f,4)}, v{T1}, s[32:35], s{36 + f//4} offen offset:{(f%4)*1024}{cfg.p_ld}")
    stamp(12)
    TT = 168
    def finish(Tp):
        a0 = pacc(2*Tp, 0)
        for x in cvt4(a0, a0, pacc(2*Tp+1, 0)):
            e(x)
        e("s_nop 0")
        e(f"v_permlane32_swap_b32 v{a0}, v{a0+2}")
        e(f"v_permlane32_swap_b32 v{a0+1}, v{a0+3}")
        e("s_nop 0")
        e(f"v_permlane16_swap_b32 v{a0}, v{a0+2}")
        e(f"v_permlane16_swap_b32 v{a0+1}, v{a0+3}")
        e(f"buffer_store_dwordx4 {vr(a0,4)}, v{T1+1}, s[40:43], 0 offen offset:{Tp*64}{cfg.out_st}")
    for f in range(6):
        e(f"s_waitcnt vmcnt({5-f if f < 5 else 1})")
        Tp = f & 1
        for k in range(4):
            x = RB + 4*f + k
            e(f"v_lshlrev_b32 v{TT+2*k}, 16, v{x}")
            e(f"v_and_b32 v{TT+2*k+1}, s30, v{x}")
        for k in range(4):
            a = pacc(2*Tp + k//2, 0) + 2*(k & 1)
            e(f"v_pk_add_f32 {vr(a,2)}, {vr(a,2)}, {vr(TT+2*k,2)}")
        if f == 5: stamp(13)
        if f >= 4:
            finish(Tp)
    stamp(14)
    lab("L_FIN")
    if cfg.stamps:
        e("s_waitcnt vmcnt(0)")
        stamp(15)
        stamp_flush()
    lab("L_END")
    e("s_endpgm")

def kd(name):
    return f""".amdhsa_kernel {name}
  .amdhsa_next_free_vgpr 256
  .amdhsa_next_free_sgpr 102
  .amdhsa_accum_offset 256
  .amdhsa_group_segment_fixed_size 0
  .amdhsa_kernarg_size 104
  .amdhsa_user_sgpr_count 2
  .amdhsa_user_sgpr_kernarg_segment_ptr 1
  .amdhsa_system_sgpr_workgroup_id_x 1
.end_amdhsa_kernel
"""

prologue(); helper(); compute()
probs = check_hazards(A.L)
for p in probs:
    print("HAZARD:", p, file=sys.stderr)
K = NAME + "_kernel"
if cfg.diag:
    from diag import gen_diag
    hdr = (f"; diagnostic build\n; @launch kernel={K} grid=(256,1,1) block=(512,1,1) lds=163840\n"
           "; @launch kernel=d_kernel grid=(1,1,1) block=(256,1,1) lds=256\n")
else:
    hdr = open(os.path.join(os.path.dirname(os.path.abspath(__file__)), "header.txt")).read()
out = hdr + '.amdgcn_target "amdgcn-amd-amdhsa--gfx950"\n.text\n'
out += f".globl {K}\n.p2align 8\n.type {K},@function\n" + A.text()
if cfg.diag:
    out += ".globl d_kernel\n.p2align 8\n.type d_kernel,@function\n" + "\n".join(gen_diag(cfg.diag.strip(), STAMP_OFF)) + "\n"
out += '.section .rodata,"a"\n.p2align 6\n' + kd(K)
if cfg.diag:
    out += ".p2align 6\n" + kd("d_kernel")
open(sys.argv[1], "w").write(out)
sys.exit(1 if probs else 0)
```

```python
import sys, os, math, struct
sys.path.insert(0, os.path.dirname(os.path.abspath(__file__)))
from asmlib import *

NAME = "concat_heads__gqa_block_cached__mha_block_cached__near_ridge"

class Cfg:
    nt_x = ""; nt_wq = ""; nt_k = " nt"; nt_v = " nt"; nt_wo = ""
    o_st = " sc1"; o_ld = " sc1"; out_st = " sc1"; p_st = " sc1"; p_ld = " sc1"
    rot = 10246
    scheds = " S0 S1/S2/S3/S4/S5/S6/S7/S8/S9 K012/K345/V0/V1|S0 S1/S2/K012 S3/K34 Va S4/S5/S6/S7/S8/S9/K5/V1/W0"
    smap = " 0011"
    wp = " 2,2/2,2"
    wpoll = 7
    wfirst = 2
    wtail = 100
    rtab = " 0,2,5,8,10,13"
    rnt = 0
    vwm = 2
    prea = 2
    vbar = 0
    snake = 2
    nrot = 16
    lead0 = 9
    lpre = 1
    first = 1
    ndef = 2
    pbar = 5
    kbar = 33
    dup = 0
    cpf = 1
    prio = 1
    stamps = 0
    hst = 0
    spin = 1000000
    diag = ""
    qn = 0
cfg = Cfg()
for a in sys.argv[2:]:
    k, v = a.split("=")
    old = getattr(cfg, k)
    setattr(cfg, k, int(v) if isinstance(old, int) else ((" " + v.replace("+", " ")) if v else ""))

A = Asm()
e, lab, cmt = A.e, A.lab, A.cmt

STAMP_OFF = 64 << 20
FG = 16384 if cfg.dup else 8192
FLAG_SZ = 32 * FG
O_OFF = 1 << 20
O_HEAD = 196608
PART_OFF = 16 << 20
P_W = 6144
SLOT = 40960
XB = 24576
PHYS = [0, 2*SLOT, SLOT]
V1B, V0B, K0B = 49152, 90112, 114688
WSL = [0, 16384, 32768, 73728, 114688, 131072, 147456]
kpos = lambda kt: K0B + ((kt + 1) % 6) * 8192

def stamp(i):
    if cfg.stamps:
        e(f"{'s_memtime' if cfg.stamps == 2 else 's_memrealtime'} s[{52+2*i}:{53+2*i}]")
def stamp_flush():
    e(f"s_add_u32 s84, s24, {STAMP_OFF}")
    e("s_addc_u32 s85, s25, 0")
    e("s_mov_b32 s86, 0x100000")
    e("s_mov_b32 s87, 0x20000")
    e("s_lshl_b32 s92, s2, 3")
    e("s_add_u32 s92, s92, s7")
    e("s_lshl_b32 s92, s92, 6")
    e("s_waitcnt lgkmcnt(0)")
    e("v_mbcnt_lo_u32_b32 v251, -1, 0")
    e("v_lshlrev_b32 v251, 2, v251")
    for i in range(16):
        e(f"v_writelane_b32 v250, s{52+2*i}, {i}")
    e("s_mov_b64 exec, 0xffff")
    e("buffer_store_dword v250, v251, s[84:87], s92 offen sc1")

def srd(d, lo, off, size):
    e(f"s_add_u32 s{d}, s{lo}, {off}")
    e(f"s_addc_u32 s{d+1}, s{lo+1}, 0")
    e(f"s_mov_b32 s{d+2}, {size}")
    e(f"s_mov_b32 s{d+3}, 0x20000")

def cvt4(d, a0, a1):
    return [f"v_cvt_pk_bf16_f32 v{d}, v{a0}, v{a0+1}", f"v_cvt_pk_bf16_f32 v{d+1}, v{a0+2}, v{a0+3}",
            f"v_cvt_pk_bf16_f32 v{d+2}, v{a1}, v{a1+1}", f"v_cvt_pk_bf16_f32 v{d+3}, v{a1+2}, v{a1+3}"]

def prologue():
    lab(NAME + "_kernel")
    e("s_cmp_ge_u32 s2, 256")
    e("s_cbranch_scc1 L_END")
    e("s_and_b32 s3, s2, 7")
    e("s_lshr_b32 s4, s3, 2")
    e("s_mul_i32 s5, s4, 40")
    e("s_load_dwordx8 s[8:15], s[0:1], s5")
    e("s_load_dwordx2 s[16:17], s[0:1], s5 offset:32")
    e("s_load_dwordx4 s[20:23], s[0:1], 80")
    e("s_load_dwordx2 s[24:25], s[0:1], 96")
    if cfg.stamps:
        for i in range(1, 16):
            e(f"s_mov_b32 s{52+2*i}, 0")
    stamp(0)
    if cfg.cpf:
        cmt("instruction prefetch into L2: workgroup r reads code lines 8r..8r+7 (values unused)")
        e("s_getpc_b64 s[90:91]")
        lab("L_PC")
        e("s_and_b32 s18, s2, 0xf8")
        e("v_xor_b32 v1, 256, v0")
        e("v_add_u32 v235, s18, v1")
        e("v_lshlrev_b32 v235, 7, v235")
        e("v_min_u32 v235, L_END-L_PC, v235")
        e("v_cmp_gt_u32 vcc, 8, v1")
        e("s_and_saveexec_b64 s[18:19], vcc")
        e("s_cbranch_execz L_NOCPF")
        e("global_load_dword v235, v235, s[90:91]")
        lab("L_NOCPF")
        e("s_mov_b64 exec, -1")
    e("v_lshrrev_b32 v1, 6, v0")
    e("v_xor_b32 v1, 4, v1")
    e("s_lshr_b32 s6, s2, 3")
    e("v_readfirstlane_b32 s7, v1")
    e("v_and_b32 v0, 63, v0")
    e("s_bfe_u32 s26, s6, 0x10002")
    e("s_lshr_b32 s27, s6, 3")
    e("s_and_b32 s6, s6, 3")
    e("s_lshl_b32 s27, s27, 2")
    e("s_lshl_b32 s26, s26, 4")
    e("s_or_b32 s6, s6, s27")
    e("s_or_b32 s6, s6, s26")
    if cfg.stamps:
        e("s_lshl_b32 s2, s6, 3")
        e("s_or_b32 s2, s2, s3")
    e("s_and_b32 s97, s3, 3")
    e("s_and_b32 s27, s6, 7")
    e("s_lshl3_add_u32 s26, s97, s27")
    e("s_lshr_b32 s28, s6, 3")
    e("s_cmp_lt_u32 s7, 4")
    e("s_cbranch_scc1 L_COMPUTE")

def ids():
    cmt("s94 = m (15: no output tile), s95 = tt, s96 = nt, s97 = head group, s98 = set, s99 = (branch*2+set)*4")
    e("s_and_b32 s94, s6, 15")
    e("s_mul_i32 s95, s94, 52")
    e("s_lshr_b32 s95, s95, 8")
    e("s_mul_i32 s96, s95, 5")
    e("s_sub_u32 s96, s94, s96")
    e("s_lshr_b32 s98, s6, 4")
    e("s_lshl1_add_u32 s99, s4, s98")
    e("s_lshl_b32 s99, s99, 2")

def helper():
    cmt("================ loader waves: x / wq ring, K, V, then wo / O rings (all LDS-DMA)")
    vm = Counter(A, "vmcnt", 63)
    e("s_sub_u32 s19, s7, 4")
    if cfg.rot == 3:
        e("s_add_u32 s30, s27, s28"); e("s_and_b32 s30, s30, 3"); e("s_mul_i32 s30, s30, 5"); e("s_lshr_b32 s30, s30, 1")
    elif cfg.rot == 2:
        e("s_lshl1_add_u32 s30, s28, s27"); e("s_and_b32 s30, s30, 7"); e("s_mul_i32 s30, s30, 5"); e("s_lshr_b32 s30, s30, 2")
    elif cfg.rot == 1:
        e("s_add_u32 s30, s27, s28"); e("s_and_b32 s30, s30, 1"); e("s_mul_i32 s30, s30, 5")
    elif cfg.rot >= 10:
        tab = [int(c) for c in str(cfg.rot)[1:]]
        e("s_add_u32 s30, s27, s28"); e("s_and_b32 s30, s30, 3"); e("s_lshl_b32 s30, s30, 2")
        e(f"s_lshr_b32 s30, {sum(b << (4*i) for i, b in enumerate(tab)):#x}, s30"); e("s_and_b32 s30, s30, 15")
    XV, WV = 10, 14
    e("v_lshrrev_b32 v1, 4, v0")
    e("v_and_b32 v2, 15, v0")
    e("v_lshlrev_b32 v3, 1, v1")
    e("v_xor_b32 v4, v2, v3")
    e("v_lshlrev_b32 v4, 4, v4")
    e("s_lshl_b32 s29, s19, 4")
    e("v_add_u32 v5, s29, v1")
    e(f"v_lshl_add_u32 v{WV}, v5, 13, v4")
    e(f"v_add_u32 v{WV+1}, {32768-1024}, v{WV}")
    e(f"v_xor_b32 v5, 128, v{WV}")
    e(f"v_add_u32 v{WV+2}, {2*(32768-1024)}, v5")
    e(f"v_add_u32 v{WV+3}, {3*(32768-1024)}, v5")
    e("v_lshrrev_b32 v5, 3, v0")
    e("v_and_b32 v6, 7, v0")
    e("v_and_b32 v7, 6, v5")
    e("v_xor_b32 v6, v6, v7")
    e("s_mul_i32 s29, s19, 48")
    e("v_add_u32 v5, s29, v5")
    e("v_mul_u32_u24 v5, 1280, v5")
    e(f"v_lshl_add_u32 v{XV}, v6, 4, v5")
    for t in range(1, 4):
        e(f"v_add_u32 v{XV+t}, {t*(10240-1024)}, v{XV}")
    e(f"s_mul_i32 s88, s19, {48*128}")
    e("s_lshl_b32 s89, s19, 12")
    e(f"s_mul_i32 s29, s28, {192*1280}")
    e("s_lshl_b32 s31, s26, 8")
    e(f"s_sub_u32 s38, {640*8192}, s31")
    e("s_mov_b32 s39, 0x20000")
    e(f"s_mov_b32 s34, {192*1280}")
    e("s_mov_b32 s35, 0x20000")
    e("s_mov_b32 s100, 0")
    e("s_waitcnt lgkmcnt(0)")
    e("s_add_u32 s36, s14, s31")
    e("s_addc_u32 s37, s15, 0")
    e("s_add_u32 s32, s8, s29")
    e("s_addc_u32 s33, s9, 0")

    def stage(i):
        slot = PHYS[i % 3]
        e(f"s_add_u32 m0, s89, {slot + XB}")
        if i < cfg.first:
            e(f"s_mov_b32 s90, {(9 - i) << 19}")
        else:
            e("s_lshl_b32 s90, s30, 19")
        for t in range(4):
            vm.issue(f"buffer_load_dwordx4 v{WV+t}, s[36:39], s90 offen offset:{t*1024}{cfg.nt_wq} lds", ("st", i))
        e(f"s_add_u32 m0, s88, {slot}")
        if i < cfg.first:
            e(f"s_mov_b32 s91, {(9 - i) << 7}")
        else:
            e("s_lshl_b32 s91, s30, 7")
        for t in range(4):
            vm.issue(f"buffer_load_dwordx4 v{XV+t}, s[32:35], s91 offen offset:{t*1024}{cfg.nt_x} lds", ("st", i))
        e("s_add_u32 m0, m0, 4096")
        e("s_add_u32 s91, s91, 40960")
        for t in range(2):
            vm.issue(f"buffer_load_dwordx4 v{XV+t}, s[32:35], s91 offen offset:{t*1024}{cfg.nt_x} lds", ("st", i))
        if cfg.first <= i < 9:
            e("s_add_u32 s30, s30, 1")
            e(f"s_cmp_eq_u32 s30, {10 - cfg.first}")
            e("s_cselect_b32 s30, 0, s30")
    def kv_setup():
        e("s_lshl_b32 s29, s28, 6")
        e("s_add_u32 s29, s29, s26")
        e("s_mul_i32 s29, s29, 24576")
        srd(44, 12, "s29", 33*24576)
        srd(40, 10, "s29", 33*24576)
        e("v_lshlrev_b32 v18, 4, v0")
        e("s_and_b32 s31, s19, 1")
        e("s_lshl_b32 s31, s31, 7")
        e("v_xor_b32 v19, s31, v4")
        e("v_lshl_add_u32 v19, v1, 8, v19")
        e("s_lshl_b32 s93, s19, 10")
        e("v_add_u32 v19, s93, v19")
        e("s_lshl_b32 s31, s19, 2")
        e("v_add_u32 v5, s31, v1")
        e("v_xor_b32 v6, v2, v5")
        e("v_lshlrev_b32 v6, 4, v6")
        e("v_lshl_add_u32 v20, v5, 8, v6")
    def kload(kts):
        for kt in kts:
            for b in range(2):
                e(f"s_add_u32 m0, s93, {kpos(kt) + b*4096}")
                e(f"s_mov_b32 s90, {b*32*24576 + kt*4096}")
                vm.issue(f"buffer_load_dwordx4 v20, s[40:43], s90 offen{cfg.nt_k} lds", "k")
    def vload(b):
        for n in range(6):
            e(f"s_add_u32 m0, s93, {(V1B if b else V0B) + n*4096}")
            e(f"s_mov_b32 s90, {b*32*24576 + n*4096}")
            vm.issue(f"buffer_load_dwordx4 v19, s[44:47], s90 offen{cfg.nt_v} lds", "v")
    VR = 80
    def vreg():
        for n in range(6):
            e(f"s_mov_b32 s90, {n*4096}")
            vm.issue(f"buffer_load_dwordx4 {vr(VR+4*n,4)}, v19, s[44:47], s90 offen{cfg.nt_v}", "vr")
    def late_vw(k):
        cmt("V tile that was staged in registers (s100 = 1) goes to LDS now")
        e("s_cmp_eq_u32 s100, 0")
        e(f"s_cbranch_scc1 L_NOVW{k}")
        e(f"s_add_u32 s90, s93, {V0B}")
        e("v_add_u32 v22, s90, v18")
        for n in range(6):
            e(f"ds_write_b128 v22, {vr(VR+4*n,4)} offset:{n*4096}")
        lab(f"L_NOVW{k}")

    def run_sched(sched):
        iv = [x.split() for x in sched.strip().split("/")]
        assert len(iv) == 12
        setup_done = False
        for i, toks in enumerate(iv):
            for tk in toks:
                if tk[0] != "S" and not setup_done:
                    kv_setup(); setup_done = True
                if tk[0] == "S":
                    n = int(tk[1:])
                    assert n <= max(2, i + 1)
                    stage(n)
                elif tk[0] == "K":
                    assert i <= 10 and ("5" not in tk or i >= 9)
                    kload([int(c) for c in tk[1:]])
                elif tk == "V0":
                    assert i >= 9; vload(0)
                elif tk == "V1":
                    assert i >= 10; vload(1)
                elif tk == "Va":
                    vreg()
                elif tk == "W0":
                    assert i == 11
                    vm.need("vr")
                    e("s_mov_b32 s100, 1")
                else:
                    assert False, tk
            if i == 0 and not setup_done:
                kv_setup(); setup_done = True
            if i < 10:
                vm.need(("st", i))
            if i == 10:
                vm.need("k")
            if i < 11:
                e(f"s_barrier                               ; B_{i}")
            if cfg.hst == 2: continue
            if i < (10 if cfg.hst else 8): stamp(1 + i)
            if i == 10: stamp(11)

    scs = cfg.scheds.strip().split("|"); smap = cfg.smap.strip()
    smap = "".join(c * 8 for c in smap) if len(smap) == 4 else smap * (32 // len(smap))
    for k, sc in enumerate(scs):
        if k + 1 < len(scs):
            mask = sum(1 << r for r in range(32) if int(smap[r]) == k)
            e(f"s_bitcmp1_b32 {mask:#x}, s6")
            e(f"s_cbranch_scc0 L_H{k+1}")
        vm.pend = []
        run_sched(sc)
        if k + 1 < len(scs):
            e("s_branch L_HX")
            lab(f"L_H{k+1}")
    lab("L_HX")

    vm.pend = []
    ids()
    srd(48, 22, 0, 256)
    e("s_lshl_b32 s101, s99, 2")
    e("v_mov_b32 v9, 0")
    e("s_cmp_eq_u32 s94, 15")
    e("s_cbranch_scc1 L_H_NOP2")
    e("buffer_load_dwordx4 v[32:35], v9, s[48:51], s101 offen sc1")
    WO, OV = 24, 28
    e("s_mul_i32 s29, s98, 3")
    e("s_add_u32 s29, s29, s95")
    e("s_lshl_b32 s31, s29, 2")
    e(f"s_lshr_b32 s30, {sum(int(b) << (4*i) for i, b in enumerate(cfg.rtab.split(','))):#x}, s31")
    if cfg.nrot < 16:
        e("s_and_b32 s30, s30, 15")
    def stg(u):
        if cfg.nrot == 16:
            e(f"s_add_u32 s90, s30, {u}")
        elif u >= cfg.nrot:
            e(f"s_mov_b32 s90, {u}")
        else:
            e(f"s_add_u32 s90, s30, {u}")
            e(f"s_sub_u32 s91, s90, {cfg.nrot}")
            e("s_cselect_b32 s90, s90, s91")
    if cfg.rnt:
        e(f"s_mul_i32 s31, s96, {cfg.rnt}")
        e("s_add_u32 s30, s30, s31")
    e(f"s_mul_i32 s18, s97, {1024*1280}")
    e("s_lshl_b32 s31, s96, 8")
    e("s_add_u32 s18, s18, s31")
    e(f"s_sub_u32 s31, {4096*1280}, s18")
    srd(32, 16, "s18", "s31")
    e(f"s_mul_i32 s18, s3, {8*O_HEAD}")
    e("s_lshl_b32 s31, s29, 15")
    e("s_add_u32 s18, s18, s31")
    e(f"s_add_u32 s18, s18, {O_OFF - 4096}")
    srd(36, 24, "s18", 8*O_HEAD)
    e("s_lshl_b32 s31, s19, 4")
    e("v_add_u32 v5, s31, v1")
    e("v_mul_u32_u24 v5, 1280, v5")
    e(f"v_add_u32 v{WO}, v5, v4")
    e("v_xor_b32 v6, 128, v4")
    e("v_add_u32 v6, v5, v6")
    e(f"v_add_u32 v{WO+1}, {4*1280-1024}, v6")
    e(f"v_add_u32 v{WO+2}, {2*(4*1280-1024)}, v{WO}")
    e(f"v_add_u32 v{WO+3}, {3*(4*1280-1024)}, v6")
    def wdma(u, ts=range(4)):
        stg(u)
        if cfg.nrot == 16:
            e("s_and_b32 s90, s90, 15")
        e(f"s_add_u32 m0, s89, {WSL[u % 7]}")
        e("s_mul_i32 s90, s90, 81920")
        for t in ts:
            vm.issue(f"buffer_load_dwordx4 v{WO+t}, s[32:35], s90 offen offset:{t*1024}{cfg.nt_wo} lds", ("w", u))
    def o_setup():
        for j in range(4):
            e(f"s_add_u32 s31, s97, {j}")
            e("s_and_b32 s31, s31, 3")
            e(f"s_add_u32 s31, s31, {4-j}")
            e("s_lshl_b32 s31, s31, 10")
            e("s_add_u32 s31, s31, s89")
            e(f"v_add_u32 v{OV+j}, s31, v18")
        e("s_and_b32 s88, s19, 1")
        e("s_lshl_b32 s88, s88, 12")
        e("s_cmp_ge_u32 s19, 2")
        e(f"s_mov_b32 s31, {V1B}")
        e(f"s_cselect_b32 s31, {V0B}, s31")
        e("s_add_u32 s88, s88, s31")
    def cleared(k):
        cmt("the flag lines of all four head groups must have been cleared in this launch")
        e(f"s_mov_b32 s31, {cfg.spin}")
        lab(f"L_CNT{k}")
        e("v_and_b32 v32, v32, v33")
        e("v_and_b32 v34, v34, v35")
        e("v_and_b32 v32, v32, v34")
        e("s_sub_u32 s31, s31, 1")
        e("v_readfirstlane_b32 s29, v32")
        e(f"s_cbranch_scc1 L_CNTOK{k}")
        e("s_cmp_eq_u32 s29, 1")
        e(f"s_cbranch_scc1 L_CNTOK{k}")
        e("buffer_load_dwordx4 v[32:35], v9, s[48:51], s101 offen sc1")
        e("s_waitcnt vmcnt(0)")
        e(f"s_branch L_CNT{k}")
        lab(f"L_CNTOK{k}")
    plans = [tuple(int(x) for x in p.split(",")) for p in cfg.wp.strip().split("/")]
    if plans[0] == plans[1]:
        plans = plans[:1]
    else:
        e("s_cmp_lg_u32 s98, 0")
        e("s_cbranch_scc1 L_WP1")
    for k, (a, b) in enumerate(plans):
        assert a <= 4 and a <= b <= cfg.wpoll
        vm.pend = []
        if k:
            lab("L_WP1")
        for u in range(a):
            wdma(u)
        if cfg.vwm:
            o_setup()
        if cfg.vwm == 2:
            e(f"s_waitcnt vmcnt({4*a})")
        late_vw(k)
        e(f"s_waitcnt vmcnt({4*a}) lgkmcnt(0)")
        cleared(k)
        e("s_barrier")
        for u in range(a, b):
            wdma(u)
        if not cfg.vwm:
            o_setup()
        e("s_barrier")
        for u in range(b, cfg.wpoll):
            wdma(u)
        if k + 1 < len(plans):
            e("s_branch L_WP2")
    lab("L_WP2")
    if not cfg.hst: stamp(9)
    def oaddr(u):
        stg(u)
        e("s_bfe_u32 s91, s90, 0x30001")
        e("s_and_b32 s90, s90, 1")
        e(f"s_mul_i32 s91, s91, {O_HEAD}")
        e("s_lshl_b32 s90, s90, 14")
        e(f"s_add_u32 m0, s88, {(u % 3)*8192}")
        e("s_add_u32 s90, s90, s91")
    def oissue(u):
        for j in range(4):
            vm.issue(f"buffer_load_dwordx4 v{OV+j}, s[36:39], s90 offen offset:{j*1024}{cfg.o_ld} lds", ("o", u))
    oaddr(0)
    vm.need(*[("w", u) for u in range(cfg.prea)])
    e("s_barrier")
    if not cfg.hst: stamp(10)
    oissue(0)
    oaddr(1)
    wq = [(u, t) for u in range(cfg.wpoll, 16) for t in range(4)]
    wts = [0 if (i < cfg.wfirst or i > 13) else (100 if i <= 16 - cfg.ndef else cfg.wtail) for i in range(16)]
    R, done = len(wq), 0
    for i in range(16):
        if i + 1 < 16:
            oissue(i + 1)
        tgt = -(-(sum(wts[:i+1]) * R) // sum(wts))
        tgt = max(tgt, sum(1 for (u, t) in wq if u <= i + 1))
        tgt = min(tgt, sum(1 for (u, t) in wq if u <= max(6, i + 5)))
        grp = wq[done:tgt]; done = max(done, tgt)
        for u in sorted(set(g[0] for g in grp)):
            wdma(u, [t for (uu, t) in grp if uu == u])
        if i + 2 < 16:
            oaddr(i + 2)
        vm.need(("o", i), ("w", i))
        e(f"s_barrier                               ; C_{i}")
        if cfg.hst == 2:
            if i >= 2: stamp(i - 1)
            continue
        if i == 0: stamp(12)
        if i == 4: stamp(13)
        if i == 15: stamp(14)
    assert done == R
    e("s_branch L_FIN")
    lab("L_H_NOP2")
    if cfg.nrot < 16:
        cmt("no tile: pull the wo rows of the last stages into L2 for the other workgroups (one dword per line, values unused)")
        total = (16 - cfg.nrot) * 81920
        npc = -(-total // 32768)
        e(f"s_mul_i32 s18, s97, {1024*1280}")
        e(f"s_add_u32 s18, s18, {cfg.nrot*81920}")
        srd(32, 16, "s18", total)
        e("s_lshl_b32 s31, s19, 13")
        e("v_lshl_add_u32 v24, v0, 7, s31")
        e(f"s_mul_i32 s90, s98, {cfg.lead0*32768}")
        e(f"s_mul_i32 s91, s98, {(npc - cfg.lead0)*32768}")
        e(f"s_add_u32 s91, s91, {cfg.lead0*32768}")
        for k in range(cfg.lpre):
            e("buffer_load_dword v25, v24, s[32:35], s90 offen")
            e("s_add_u32 s90, s90, 32768")
        e(f"s_waitcnt vmcnt({cfg.lpre})")
        e("s_mov_b32 s88, s90")
        late_vw(9)
        e("s_waitcnt lgkmcnt(0)")
        e("s_barrier                               ; B_11")
        e("s_barrier                               ; E")
        lab("L_LEAD")
        e("s_cmp_ge_u32 s88, s91")
        e("s_cbranch_scc1 L_FIN")
        e("buffer_load_dword v25, v24, s[32:35], s88 offen")
        e("s_add_u32 s88, s88, 32768")
        e("s_branch L_LEAD")
        return
    late_vw(9)
    e("s_waitcnt vmcnt(0) lgkmcnt(0)")
    e("s_barrier                               ; B_11")
    e("s_barrier                               ; E")
    e("s_branch L_FIN")

def compute():
    lab("L_COMPUTE")
    lg = Counter(A, "lgkmcnt", 15)
    AB = 96
    BB = [128, 152]
    AA = 176
    BA = 184
    KA, FONE, FOFF, LANE, OA, VA0 = 186, 252, 253, 254, 190, 191
    KB = [192, 208, 96]
    T0 = 224
    acc = lambda T, j: (T*3+j)*4
    if cfg.prio:
        e(f"s_setprio {cfg.prio}")
    e(f"v_mov_b32 v{LANE}, v0")
    e(f"v_lshrrev_b32 v{T0}, 4, v0")
    e(f"v_and_b32 v{T0+1}, 15, v0")
    e(f"v_bfe_u32 v{T0+2}, v0, 2, 2")
    e(f"v_and_b32 v{T0+3}, 3, v0")
    ids()
    e("s_add_u32 s29, s99, s97")
    e("s_lshl_b32 s101, s29, 2")
    e(f"s_mul_i32 s43, s29, {2*FG}")
    e("s_lshr_b32 s29, s94, 3")
    e(f"s_mul_i32 s29, s29, {FG}")
    e("s_lshl_b32 s39, s27, 10")
    e("s_add_u32 s39, s39, s29")
    e("s_add_u32 s100, s43, s39")
    e(f"v_mov_b32 v{T0+8}, 0")
    e(f"v_mov_b32 v{FONE}, 1")
    e(f"v_lshlrev_b32 v{T0+10}, 7, v0")
    e("s_lshl4_add_u32 s93, s7, s94")
    e("s_waitcnt lgkmcnt(0)")
    srd(44, 24, 0, FLAG_SZ)
    srd(48, 22, 0, 256)
    e("s_cmp_lg_u32 s93, 15")
    e("s_cbranch_scc1 L_NOCLR")
    e("s_mov_b32 exec_lo, 0x1f1f1f1f")
    e("s_mov_b32 exec_hi, 0x1f1f1f1f")
    for k in range(2*FG // 8192):
        e(f"s_add_u32 s31, s43, {k*8192}")
        e(f"buffer_store_dword v{T0+8}, v{T0+10}, s[44:47], s31 offen sc1")
    e("s_mov_b64 exec, -1")
    lab("L_NOCLR")
    e(f"v_lshl_add_u32 v{T0+4}, v{T0}, 3, v{T0+2}")
    e(f"v_lshlrev_b32 v{T0+4}, 8, v{T0+4}")
    e(f"v_lshl_add_u32 v{T0+4}, v{T0+3}, 3, v{T0+4}")
    e(f"v_add_u32 v{T0+4}, {XB}, v{T0+4}")
    e(f"v_and_b32 v{T0+5}, 1, v{T0}")
    e(f"v_lshl_add_u32 v{T0+5}, v{T0+5}, 2, v{T0+2}")
    for T in range(8):
        e(f"v_xor_b32 v{T0+6}, {T}, v{T0+5}")
        e(f"v_lshl_add_u32 v{AA+T}, v{T0+6}, 5, v{T0+4}")
    e(f"v_and_b32 v{T0+6}, 6, v{T0+1}")
    e(f"v_xor_b32 v{T0+6}, v{T0+6}, v{T0}")
    e(f"v_lshlrev_b32 v{T0+6}, 4, v{T0+6}")
    e(f"v_lshl_add_u32 v{T0+6}, v{T0+1}, 7, v{T0+6}")
    e(f"s_mul_i32 s29, s7, {48*128}")
    e(f"v_add_u32 v{BA}, s29, v{T0+6}")
    e(f"v_xor_b32 v{BA+1}, 64, v{BA}")
    e("s_lshr_b32 s19, s7, 1")
    e("s_lshl_b32 s29, s19, 12")
    e(f"s_add_u32 s29, s29, {K0B}")
    e(f"v_lshrrev_b32 v{T0+6}, 1, v{T0}")
    e(f"v_xor_b32 v{T0+6}, v{T0+6}, v{T0+1}")
    e(f"v_lshlrev_b32 v{T0+6}, 4, v{T0+6}")
    e(f"v_lshl_add_u32 v{T0+6}, v{T0+1}, 8, v{T0+6}")
    e(f"v_and_b32 v{T0+7}, 1, v{T0}")
    e(f"v_lshl_add_u32 v{T0+6}, v{T0+7}, 3, v{T0+6}")
    e(f"v_add_u32 v{KA}, s29, v{T0+6}")
    e(f"v_lshrrev_b32 v{T0+6}, 2, v0")
    e(f"v_and_b32 v{T0+7}, 7, v{T0+6}")
    e(f"v_lshlrev_b32 v{T0+6}, 8, v{T0+6}")
    e(f"v_lshl_add_u32 v{T0+6}, v{T0+7}, 5, v{T0+6}")
    e(f"v_lshl_add_u32 v{T0+6}, v{T0+3}, 3, v{T0+6}")
    e("s_cmp_eq_u32 s19, 0")
    e(f"s_mov_b32 s29, {V1B}")
    e(f"s_cselect_b32 s29, {V0B}, s29")
    e(f"v_add_u32 v{VA0}, s29, v{T0+6}")
    e(f"v_lshlrev_b32 v{OA}, 4, v0")
    e("s_lshl_b32 s30, s7, 7")
    e(f"v_lshl_add_u32 v{FOFF}, v0, 13, s30")
    for i in range(96):
        e(f"v_mov_b32 v{i}, 0")
    e("s_lshl_b32 s29, s4, 5")
    e("s_add_u32 s29, s29, s26")
    e(f"s_mul_i32 s29, s29, {O_HEAD}")
    e(f"s_add_u32 s29, s29, {O_OFF}")
    srd(32, 24, "s29", O_HEAD)
    e("s_mul_i32 s29, s28, 12")
    e("s_mul_i32 s31, s7, 3")
    e("s_add_u32 s29, s29, s31")
    for j in range(3):
        e(f"s_add_u32 s31, s29, {j}")
        e("s_lshr_b32 s18, s31, 3")
        e("s_lshl_b32 s18, s18, 15")
        e("s_and_b32 s31, s31, 7")
        e("s_lshl_b32 s31, s31, 10")
        e(f"s_add_u32 s{40+j}, s31, s18")
    e(f"s_mul_i32 s18, s99, {2*FG}")
    e("s_add_u32 s18, s18, s39")
    e("s_add_u32 s18, s18, s30")
    e("s_add_u32 s18, s18, 128")
    e("s_add_u32 s8, s24, s18")
    e("s_addc_u32 s9, s25, 0")
    e("s_lshl_b32 s18, s7, 11")
    e("s_add_u32 s18, s18, s43")
    e("s_add_u32 s10, s24, s18")
    e("s_addc_u32 s11, s25, 0")
    e("s_cmp_eq_u32 s95, 2")
    e(f"s_cselect_b32 s12, {FG}, 0")
    e("s_cmp_lg_u32 s93, 15")
    e("s_cbranch_scc1 L_NOCLR2")
    e("s_waitcnt vmcnt(0)")
    e("s_mov_b64 exec, 1")
    e(f"buffer_store_dword v{FONE}, v{T0+8}, s[48:51], s101 offen sc1")
    e("s_mov_b64 exec, -1")
    lab("L_NOCLR2")

    def a_rd(T):
        return [(f"ds_read_b64_tr_b16 {vr(AB + (T & 3)*8 + s*4 + h*2, 2)}, v{AA+T} offset:{s*8192 + h*1024}", ("A", T & 3, s))
                for s in range(2) for h in range(2)]
    def b_rd(j, s, par):
        return (f"ds_read_b128 {vr(BB[par]+(j*2+s)*4,4)}, v{BA+s} offset:{j*2048}", ("B", par, j, s))
    def head_reads(par):
        a0 = a_rd(0)
        return [a0[0], a0[1], b_rd(0,0,par), a0[2], a0[3], b_rd(0,1,par), b_rd(1,0,par), b_rd(1,1,par),
                b_rd(2,0,par), b_rd(2,1,par)] + a_rd(1)
    def k_rd(kt):
        return [(f"ds_read_b64 {vr(KB[kt%3]+4*s+2*h,2)}, v{AA+2*s+h} offset:{kpos(kt) - K0B}", ("K", kt % 3, s))
                for s in range(4) for h in range(2)]
    def cvtq(s):
        return [x for j in range(3) for x in cvt4(acc(2*s, j), acc(2*s, j), acc(2*s+1, j))]
    def emit(x):
        if isinstance(x, tuple):
            lg.issue(x[0], x[1])
        else:
            e(x)
    def qstage(par, last=False, exit_label=None):
        att = {n: [] for n in range(48)}
        for T, n0 in ((2,0),(3,4),(4,8),(5,12),(6,18),(7,24)):
            for k, r in enumerate(a_rd(T)):
                att[n0+k].append(r)
        if not last:
            adv = [f"v_add_u32 v{AA+T}, s30, v{AA+T}" for T in range(8)] + [f"v_add_u32 v{BA+s}, s30, v{BA+s}" for s in range(2)]
            for k, x in enumerate(adv):
                att[28 + k//2].append(x)
            att[16] += ["s_mov_b32 s30, s88", "s_mov_b32 s88, s89"]
            att[17] += ["s_mov_b32 s89, s90", "s_mov_b32 s90, s30"]
            if par == 0:
                att[22].append("s_add_u32 s29, s29, 1")
                att[23].append("s_cmp_eq_u32 s29, 5")
            for k, r in enumerate(head_reads(par ^ 1)):
                att[34+k].append(r)
        else:
            for k in range(8):
                att[(4, 5, 8, 9, 12, 16, 22, 28)[k]].append(f"v_xor_b32 v{AA+k}, {32*k}, v{KA}")
            for k, r in enumerate(k_rd(0) + k_rd(1)[:4]):
                att[min(47, cfg.kbar + 1 + k//2)].append(r)
            for k, x in enumerate(cvtq(0)):
                att[(16, 17, 17, 18, 19, 20, 21, 22, 23, 23, 24, 25)[k]].append(x)
            for k, x in enumerate(cvtq(1)):
                att[(26, 27, 28, 29, 29, 30, 30, 31, 31, 32, 32, 33)[k]].append(x)
            for k, x in enumerate(cvtq(2)):
                att[40 + (k*2)//3].append(x)
        for n in range(48):
            T, j, s = n//6, (n % 6)//2, n % 2
            if cfg.snake:
                s ^= (n // 2) & 1
                if cfg.snake == 2 and T & 1 and not last: j = 2 - j
            if n % 6 == 0:
                lg.need(("A", T & 3, 0), ("A", T & 3, 1), *([("B", par, 0, 0), ("B", par, 0, 1)] if T == 0 else []))
            if T == 0 and n == 2:
                lg.need(*[("B", par, jj, ss) for jj in (1, 2) for ss in (0, 1)])
            e(mfma(acc(T, j), AB + (T & 3)*8 + s*4, BB[par] + (j*2+s)*4))
            for x in att[n]:
                emit(x)
            if cfg.qn and (n * cfg.qn) // 48 != ((n + 1) * cfg.qn) // 48:
                e("s_nop 5")
            if n == (cfg.kbar if last else 33):
                lg.drain()
                e("s_barrier                               ; B_{i+1}: this stage read, next one (or K) landed")
        if exit_label:
            e(f"s_cbranch_scc1 {exit_label}")

    e("s_mov_b32 s29, 0")
    e(f"s_mov_b32 s88, {2*SLOT}")
    e(f"s_mov_b32 s89, {(-SLOT) & 0xffffffff}")
    e("s_mov_b32 s90, s89")
    e("s_barrier                               ; B_0")
    stamp(1)
    for r in head_reads(0):
        emit(r)
    lab("L_QLOOP")
    qstage(0, exit_label="L_QDONE")
    saved = [set(t) for t in lg.pend]
    qstage(1)
    e("s_branch L_QLOOP")
    lab("L_QDONE")
    lg.pend = saved
    qstage(1, last=True)
    stamp(2)
    QB = lambda s, j: acc(2*s, j)
    sregs = [acc(T, j) for T in (1, 3, 5) for j in range(3)] + [BB[0] + 4*k for k in range(6)] + [acc(7, j) for j in range(3)]
    SS = lambda kt, j: sregs[kt*3 + j]
    M = T0
    vaddr = [f"v_xor_b32 v{AA+T}, {32*T}, v{VA0}" for T in range(8)]
    c = math.log2(math.e) / math.sqrt(128.0)
    cbits = struct.unpack("<I", struct.pack("<f", c))[0]
    ONES = T0 + 12
    for kt in range(6):
        lg.need(*[("K", kt % 3, s) for s in range(4)])
        order = [(j, s) for j in range(3) for s in range(4)] if kt else \
                [(j, s) for j in range(3) for s in range(3)] + [(j, 3) for j in range(3)]
        att = {n: [] for n in range(12)}
        rd = k_rd(kt + 2) if kt + 2 < 6 else []
        if kt == 0:
            for k, x in enumerate(k_rd(1)[4:]):
                att[k//2].append(x)
            for k, x in enumerate(cvtq(3)):
                att[2 + k//2].append(x)
            for k, x in enumerate(rd):
                att[8 + k//2].append(x)
        else:
            for k, x in enumerate(rd):
                att[k].append(x)
        if kt == 4:
            for k, x in enumerate(vaddr):
                att[(0, 0, 1, 1, 2, 2, 10, 10)[k]].append(x)
        if kt == 5:
            att[0] += [f"s_mov_b32 s30, {cbits:#x}", f"s_mov_b32 s31, {cbits:#x}"]
            for r in range(4):
                att[1 + r//2].append(f"v_mov_b32 v{ONES+r}, 0x3f803f80")
        if kt >= 1:
            for j in range(3):
                b = SS(kt-1, j)
                if kt == 1:
                    att[5 + 2*j] += [f"v_max3_f32 v{M+j}, v{b}, v{b+1}, v{b+2}"]
                    att[6 + 2*j] += [f"v_max_f32 v{M+j}, v{M+j}, v{b+3}"]
                else:
                    o = 6 if kt < 4 else 4
                    att[o + 2*j] += [f"v_max3_f32 v{M+j}, v{M+j}, v{b}, v{b+1}"]
                    att[o + 1 + 2*j] += [f"v_max3_f32 v{M+j}, v{M+j}, v{b+2}, v{b+3}"]
        if kt == 5:
            b = SS(5, 0)
            att[10] += [f"v_max3_f32 v{M}, v{M}, v{b}, v{b+1}"]
            att[11] += [f"v_max3_f32 v{M}, v{M}, v{b+2}, v{b+3}"]
        for n, (j, s) in enumerate(order):
            e(mfma(SS(kt, j), KB[kt % 3] + 4*s, QB(s, j), "0" if s == 0 else None))
            for x in att[n]:
                emit(x)
    b = SS(5, 1)
    e(f"v_mov_b32 v{M+4}, v{M}")
    e(f"v_max3_f32 v{M+1}, v{M+1}, v{b}, v{b+1}")
    e(f"v_max3_f32 v{M+1}, v{M+1}, v{b+2}, v{b+3}")
    e(f"v_permlane32_swap_b32 v{M}, v{M+4}")
    e(f"v_mov_b32 v{M+5}, v{M+1}")
    e(f"v_max_f32 v{M}, v{M}, v{M+4}")
    e(f"v_mov_b32 v{M+4}, v{M}")
    b = SS(5, 2)
    e(f"v_permlane32_swap_b32 v{M+1}, v{M+5}")
    e(f"v_max3_f32 v{M+2}, v{M+2}, v{b}, v{b+1}")
    e(f"v_max3_f32 v{M+2}, v{M+2}, v{b+2}, v{b+3}")
    e(f"v_permlane16_swap_b32 v{M}, v{M+4}")
    e(f"v_mov_b32 v{M+6}, v{M+2}")
    e(f"v_max_f32 v{M+1}, v{M+1}, v{M+5}")
    e(f"v_mov_b32 v{M+5}, v{M+1}")
    e(f"v_permlane32_swap_b32 v{M+2}, v{M+6}")
    e(f"v_max_f32 v{M}, v{M}, v{M+4}")
    e(f"v_permlane16_swap_b32 v{M+1}, v{M+5}")
    e(f"v_max_f32 v{M+2}, v{M+2}, v{M+6}")
    e(f"v_mov_b32 v{M+6}, v{M+2}")
    e(f"v_max_f32 v{M+1}, v{M+1}, v{M+5}")
    e("s_nop 0")
    e(f"v_permlane16_swap_b32 v{M+2}, v{M+6}")
    e(f"v_max_f32 v{M+2}, v{M+2}, v{M+6}")
    NM = T0 + 4
    for j in range(3):
        e(f"v_mul_f32 v{NM+2*j}, s30, v{M+j}")
    stamp(3)
    pregs = [BB[1] + 4*k for k in range(6)] + [AB + 4*k for k in range(3)]
    PB = lambda s, j: pregs[s*3 + j]
    LS = T0 + 16
    VB = [KB[0], KB[0]+12, AB+12]
    def v_rd(T):
        return [(f"ds_read_b64_tr_b16 {vr(VB[T%3]+4*s+2*h,2)}, v{AA+T} offset:{(32*s+16*h)*256}", ("V", T % 3))
                for s in range(3) for h in range(2)]
    def v_start():
        stamp(4)
        e("s_barrier                               ; B_11: V visible")
        stamp(5)
        for r in v_rd(0) + v_rd(1):
            emit(r)
    pend_m = []
    for s in range(3):
        for j in range(3):
            if cfg.vbar and s*3 + j == 9 - cfg.vbar:
                v_start()
            for kt in (2*s, 2*s+1):
                b = SS(kt, j)
                for h in range(2):
                    e(f"v_pk_fma_f32 {vr(b+2*h,2)}, {vr(b+2*h,2)}, s[30:31], {vr(NM+2*j,2)} op_sel_hi:[1,1,0] neg_lo:[0,0,1] neg_hi:[0,0,1]")
            if pend_m:
                e(pend_m.pop())
            for kt in (2*s, 2*s+1):
                b = SS(kt, j)
                for r in range(4):
                    e(f"v_exp_f32 v{b+r}, v{b+r}")
            for x in cvt4(PB(s, j), SS(2*s, j), SS(2*s+1, j)):
                e(x)
            pend_m.append(mfma(LS+4*j, ONES, PB(s, j), "0" if s == 0 else None))
    if not cfg.vbar:
        v_start()
        e(pend_m.pop())
    RC = T0 + 4
    def epi(s, pk=False):
        r = []
        for j in range(3):
            a0, a1 = acc(2*s, j), acc(2*s+1, j)
            for a in (a0, a1):
                if pk:
                    r += [f"v_pk_mul_f32 {vr(a+2*h,2)}, {vr(a+2*h,2)}, {vr(RC+2*j,2)} op_sel_hi:[1,0]" for h in range(2)]
                else:
                    r += [f"v_mul_f32 v{a+k}, v{a+k}, v{RC+2*j}" for k in range(4)]
            r += cvt4(a0, a0, a1)
            r.append(f"buffer_store_dwordx4 {vr(a0,4)}, v{OA}, s[32:35], s{40+j} offen{cfg.o_st}")
        if s < 3:
            r.append(f"v_add_u32 v{OA}, 8192, v{OA}")
        return r
    backlog = []
    for T in range(8):
        lg.need(("V", T % 3))
        rd = v_rd(T+2) if T + 2 < 8 else []
        if T == 1:
            backlog += [f"v_rcp_f32 v{RC+2*j}, v{LS+4*j}" for j in range(3)]
        n = 0
        for j in range(3):
            for s in range(3):
                e(mfma(acc(T, j), VB[T % 3] + 4*s, PB(s, j), "0" if s == 0 else None))
                if pend_m and n == 1:
                    e(pend_m.pop())
                k = 0
                if rd:
                    emit(rd.pop(0)); k += 1
                if T >= 2 and T % 2 == 0 and n == 1:
                    backlog += epi(T//2 - 1)
                while backlog and k < 2:
                    e(backlog.pop(0)); k += 1
                n += 1
    for x in backlog:
        e(x)
    stamp(6)
    for x in epi(3, True):
        e(x)
    stamp(7)
    PA = [64, 96]; PBb = [128, 160]
    QA, QB2 = 192, 204
    T1 = 206
    HOLD = 212
    e(f"v_lshrrev_b32 v{T1+2}, 2, v{LANE}")
    e(f"v_and_b32 v{T1+3}, 7, v{T1+2}")
    e("s_and_b32 s29, s7, 1")
    e("s_lshl_b32 s30, s29, 2")
    e(f"v_xor_b32 v{T1+3}, s30, v{T1+3}")
    e(f"v_lshlrev_b32 v{T1+2}, 8, v{T1+2}")
    e(f"v_lshl_add_u32 v{T1+2}, v{T1+3}, 5, v{T1+2}")
    e(f"v_and_b32 v{T1+3}, 3, v{LANE}")
    e(f"v_lshl_add_u32 v{T1+2}, v{T1+3}, 3, v{T1+2}")
    for T in range(4):
        e(f"v_xor_b32 v{QA+T}, {32*T}, v{T1+2}")
        e(f"v_add_u32 v{QA+4+T}, {WSL[3]}, v{QA+T}")
        e(f"v_add_u32 v{QA+8+T}, {WSL[4]}, v{QA+T}")
    e(f"v_lshlrev_b32 v{T1}, 4, v{LANE}")
    e("s_lshl_b32 s30, s19, 12")
    e(f"s_add_u32 s30, s30, {V1B}")
    e(f"v_add_u32 v{QB2}, s30, v{T1}")
    e(f"v_add_u32 v{QB2+1}, {V0B - V1B}, v{QB2}")
    nd = 2 if cfg.dup else 1
    fl = [[13, 14, 15, 16], [17, 18, 88, 89]]
    e("s_cmp_lg_u32 s95, 1")
    e("s_cselect_b32 s15, 1, 0")
    e("s_mov_b32 s16, s15")
    e("s_mov_b32 s13, 0")
    e("s_mov_b32 s14, 0")
    if cfg.dup:
        for r in fl[1]:
            e(f"s_mov_b32 s{r}, 0")
    e(f"s_mov_b32 s31, {cfg.spin}")
    e("s_cmp_eq_u32 s7, 0")
    e("s_cbranch_scc1 L_FLAG")
    e("s_waitcnt vmcnt(0)")
    stamp(8)
    e("s_barrier                               ; E")
    e("s_branch L_NOFLAG")
    lab("L_FLAG")
    e(f"s_mov_b64 exec, {3 if cfg.dup else 1}")
    e("s_waitcnt vmcnt(0)")
    stamp(8)
    e("s_barrier")
    e(f"buffer_store_dword v{FONE}, v{FOFF}, s[44:47], s100 offen sc1")
    e("s_mov_b64 exec, -1")
    lab("L_NOFLAG")
    e("s_cmp_eq_u32 s94, 15")
    e("s_cbranch_scc1 L_FIN")
    lab("L_POLL")
    for k in range(4):
        e(f"s_cmp_lg_u32 s{fl[0][k]}, 0")
        e(f"s_cbranch_scc1 L_PS{k}")
        for d in range(nd):
            if k < 2:
                e(f"s_load_dword s{fl[d][k]}, s[10:11], s12 offset:{k*1024 + d*8192} glc")
            else:
                e(f"s_load_dword s{fl[d][k]}, s[10:11], {FG + (k-2)*1024 + d*8192} glc")
        lab(f"L_PS{k}")
    e("s_sub_u32 s31, s31, 1")
    e("s_cbranch_scc1 L_GO")
    e("s_waitcnt lgkmcnt(0)")
    if cfg.dup:
        for k in range(4):
            e(f"s_or_b32 s{fl[0][k]}, s{fl[0][k]}, s{fl[1][k]}")
    e("s_and_b32 s5, s13, s14")
    e("s_and_b32 s30, s15, s16")
    e("s_and_b32 s5, s5, s30")
    e("s_cbranch_scc0 L_POLL")
    lab("L_GO")
    e("s_barrier                               ; D")
    e("s_waitcnt lgkmcnt(0)")
    e("s_mul_i32 s18, s99, 15")
    e("s_lshl2_add_u32 s18, s94, s18")
    e("s_lshl2_add_u32 s18, s18, s7")
    e(f"s_mul_i32 s18, s18, {P_W}")
    e(f"s_add_u32 s18, s18, {PART_OFF}")
    srd(32, 24, "s18", 16*P_W)
    for d in range(4):
        e(f"s_add_u32 s18, s97, {d}")
        e("s_and_b32 s18, s18, 3")
        e(f"s_mul_i32 s18, s18, {4*P_W}")
        e(f"s_add_u32 s{36+d}, s18, {max(d-1,0)*2048}")
        if d:
            e(f"s_sub_u32 s18, s97, {d}")
            e("s_and_b32 s18, s18, 3")
            e(f"s_mul_i32 s{88+d}, s18, {2*FG}")
    e("s_mul_i32 s18, s98, 3")
    e("s_add_u32 s18, s18, s95")
    e("s_lshl1_add_u32 s18, s18, s19")
    e("s_lshl2_add_u32 s18, s18, s97")
    e(f"s_mul_i32 s18, s18, {16*2560}")
    e("s_mul_i32 s30, s4, 1280")
    e("s_add_u32 s18, s18, s30")
    e("s_lshl1_add_u32 s30, s96, s29")
    e("s_lshl_b32 s30, s30, 7")
    e("s_add_u32 s18, s18, s30")
    e(f"s_sub_u32 s30, {768*2560}, s18")
    srd(40, 20, "s18", "s30")
    e(f"v_and_b32 v{T1+1}, 15, v{LANE}")
    e(f"v_mul_u32_u24 v{T1+1}, 2560, v{T1+1}")
    e(f"v_and_b32 v{T1+2}, 48, v{LANE}")
    e(f"v_add_u32 v{T1+1}, v{T1+1}, v{T1+2}")

    ND = cfg.ndef
    assert 2 <= ND <= 7
    pacc = lambda T, j: (T*4+j)*4
    def breg(u, j):
        if j == 0 and 16 - ND <= u < 14:
            return HOLD + 8*(u - (16 - ND))
        return PBb[u & 1] + j*8
    def pa_rd(u, T, buf):
        k = u % 7
        areg = QA + 4*(0 if k < 3 else 1 if k == 3 else 2)
        aoff = WSL[k] - (0 if k < 3 else WSL[3] if k == 3 else WSL[4])
        return [(f"ds_read_b64_tr_b16 {vr(PA[buf]+T*8+s*4+h*2,2)}, v{areg+T} offset:{aoff + (32*s+16*h)*256}", ("PA", buf, T))
                for s in range(2) for h in range(2)]
    def p_reads(u):
        b = u & 1
        bb = lambda j: [(f"ds_read_b128 {vr(breg(u, j)+s*4,4)}, v{QB2+s} offset:{(u%3)*8192 + j*1024}", ("PB", b, j)) for s in range(2)]
        if u < cfg.prea:
            return bb(0) + bb(1) + bb(2) + bb(3)
        if u >= 16 - ND:
            return pa_rd(u,0,b) + bb(1) + bb(2) + bb(3) + pa_rd(u,1,b) + pa_rd(u,2,b) + pa_rd(u,3,b) + bb(0)
        return pa_rd(u,0,b) + bb(0) + bb(1) + bb(2) + bb(3) + pa_rd(u,1,b) + pa_rd(u,2,b) + pa_rd(u,3,b)
    def pm(u, T, j, s, buf=None, first=False):
        return mfma(pacc(T, j), PA[u & 1 if buf is None else buf]+T*8+s*4, breg(u, j)+s*4, "0" if first else None)
    def send(d):
        r = []
        for Tp in range(2):
            a0 = pacc(2*Tp, d)
            r += cvt4(a0, a0, pacc(2*Tp+1, d))
            r.append(f"buffer_store_dwordx4 {vr(a0,4)}, v{T1}, s[32:35], s{36+d} offen offset:{Tp*1024}{cfg.p_st}")
        return r
    lg.pend = []
    for u in range(cfg.prea):
        for T in range(4):
            for r in pa_rd(u, T, u):
                emit(r)
    e("s_barrier                               ; C_0")
    stamp(9)
    for r in p_reads(0):
        emit(r)
    for u in range(15):
        b = u & 1
        rd = p_reads(u+1)
        js = (1, 2, 3) if u >= 16 - ND else (0, 1, 2, 3)
        seq = [(T, j, s) for T in range(4) for j in (js[::-1] if (cfg.snake == 2 and T & 1) else js) for s in range(2)]
        if cfg.snake:
            seq = [(T, j, s ^ ((n // 2) & 1)) for n, (T, j, s) in enumerate(seq)]
        pb = min(cfg.pbar, 5) if len(js) == 3 else cfg.pbar
        for n, (T, j, s) in enumerate(seq):
            if u == 0:
                lg.need(("PA", b, T), ("PB", b, j))
            elif n == 0:
                lg.need(("PA", b, 0), *[("PB", b, jj) for jj in js])
            e(pm(u, T, j, s, first=(u == 0 and n % 2 == 0)))
            if n == pb:
                lg.drain()
                e(f"s_barrier                               ; C_{u+1}")
            if n > pb and rd:
                emit(rd.pop(0))
                if len(js) == 3 and n < pb + 9:
                    emit(rd.pop(0))
        assert not rd
    seq = [(15, T, j, s) for j in (1, 2, 3) for T in range(4) for s in range(2)] + \
          [(uu, T, 0, s) for uu in (14, 15) for T in range(4) for s in range(2)]
    if cfg.snake:
        seq = [(uu, T, j, s ^ ((n // 2) & 1)) for n, (uu, T, j, s) in enumerate(seq)]
    older = list(range(16 - ND, 14))
    fill = []
    for n, (uu, T, j, s) in enumerate(seq):
        lg.need(("PA", 1, T), ("PB", 1, j))
        e(pm(uu, T, j, s))
        if n in (9, 17, 25):
            fill += send(n // 8)
        if n >= 32 and older:
            fill += pa_rd(older[0], (n - 32)//2, 0)[2*(n & 1):2*(n & 1)+2]
        for _ in range(2):
            if fill:
                emit(fill.pop(0))
    assert not fill
    def old_stage(k):
        for T in range(4):
            lg.need(("PA", k & 1, T))
            for s in range(2):
                e(pm(older[k], T, 0, s, k & 1))
                if k + 1 < len(older):
                    for r in pa_rd(older[k+1], T, (k+1) & 1)[2*s:2*s+2]:
                        emit(r)
    nbefore = min(len(older), 2)
    for k in range(nbefore):
        old_stage(k)
    stamp(10)
    e("s_add_u32 s37, s36, 4096")
    e(f"s_mov_b64 exec, {3 if cfg.dup else 1}")
    e("s_waitcnt vmcnt(0)")
    stamp(11)
    e(f"buffer_store_dword v{FONE}, v{FOFF}, s[44:47], s100 offen offset:128 sc1")
    e("s_mov_b64 exec, -1")
    for k in range(nbefore, len(older)):
        old_stage(k)
    RB = 136
    def p3_loads(d0):
        for dd in range(d0, 4):
            for d in range(nd):
                e(f"s_load_dword s{12+dd+3*d}, s[8:9], s{88+dd} offset:{d*8192} glc")
    p3_loads(1)
    e("s_mov_b32 s30, 0xffff0000")
    e("s_waitcnt lgkmcnt(0)")
    for d in (1, 2, 3):
        e(f"s_mov_b32 s31, {cfg.spin}")
        lab(f"L_P3W{d}")
        if cfg.dup:
            e(f"s_or_b32 s5, s{12+d}, s{15+d}")
        else:
            e(f"s_cmp_lg_u32 s{12+d}, 0")
        e(f"s_cbranch_scc1 L_P3G{d}")
        p3_loads(d)
        e("s_sub_u32 s31, s31, 1")
        e("s_waitcnt lgkmcnt(0)")
        e(f"s_cbranch_scc0 L_P3W{d}")
        lab(f"L_P3G{d}")
        for f in (2*d - 2, 2*d - 1):
            e(f"buffer_load_dwordx4 {vr(RB+4*f,4)}, v{T1}, s[32:35], s{36 + f//4} offen offset:{(f%4)*1024}{cfg.p_ld}")
    stamp(12)
    TT = 168
    def finish(Tp):
        a0 = pacc(2*Tp, 0)
        for x in cvt4(a0, a0, pacc(2*Tp+1, 0)):
            e(x)
        e("s_nop 0")
        e(f"v_permlane32_swap_b32 v{a0}, v{a0+2}")
        e(f"v_permlane32_swap_b32 v{a0+1}, v{a0+3}")
        e("s_nop 0")
        e(f"v_permlane16_swap_b32 v{a0}, v{a0+2}")
        e(f"v_permlane16_swap_b32 v{a0+1}, v{a0+3}")
        e(f"buffer_store_dwordx4 {vr(a0,4)}, v{T1+1}, s[40:43], 0 offen offset:{Tp*64}{cfg.out_st}")
    for f in range(6):
        e(f"s_waitcnt vmcnt({5-f if f < 5 else 1})")
        Tp = f & 1
        for k in range(4):
            x = RB + 4*f + k
            e(f"v_lshlrev_b32 v{TT+2*k}, 16, v{x}")
            e(f"v_and_b32 v{TT+2*k+1}, s30, v{x}")
        for k in range(4):
            a = pacc(2*Tp + k//2, 0) + 2*(k & 1)
            e(f"v_pk_add_f32 {vr(a,2)}, {vr(a,2)}, {vr(TT+2*k,2)}")
        if f == 5: stamp(13)
        if f >= 4:
            finish(Tp)
    stamp(14)
    lab("L_FIN")
    if cfg.stamps:
        e("s_waitcnt vmcnt(0)")
        stamp(15)
        stamp_flush()
    lab("L_END")
    e("s_endpgm")

def kd(name):
    return f""".amdhsa_kernel {name}
  .amdhsa_next_free_vgpr 256
  .amdhsa_next_free_sgpr 102
  .amdhsa_accum_offset 256
  .amdhsa_group_segment_fixed_size 0
  .amdhsa_kernarg_size 104
  .amdhsa_user_sgpr_count 2
  .amdhsa_user_sgpr_kernarg_segment_ptr 1
  .amdhsa_system_sgpr_workgroup_id_x 1
.end_amdhsa_kernel
"""

prologue(); helper(); compute()
probs = check_hazards(A.L)
for p in probs:
    print("HAZARD:", p, file=sys.stderr)
K = NAME + "_kernel"
if cfg.diag:
    from diag import gen_diag
    hdr = (f"; diagnostic build\n; @launch kernel={K} grid=(256,1,1) block=(512,1,1) lds=163840\n"
           "; @launch kernel=d_kernel grid=(1,1,1) block=(256,1,1) lds=256\n")
else:
    hdr = open(os.path.join(os.path.dirname(os.path.abspath(__file__)), "header.txt")).read()
out = hdr + '.amdgcn_target "amdgcn-amd-amdhsa--gfx950"\n.text\n'
out += f".globl {K}\n.p2align 8\n.type {K},@function\n" + A.text()
if cfg.diag:
    out += ".globl d_kernel\n.p2align 8\n.type d_kernel,@function\n" + "\n".join(gen_diag(cfg.diag.strip(), STAMP_OFF)) + "\n"
out += '.section .rodata,"a"\n.p2align 6\n' + kd(K)
if cfg.diag:
    out += ".p2align 6\n" + kd("d_kernel")
open(sys.argv[1], "w").write(out)
sys.exit(1 if probs else 0)
```

```python
import sys, os, math, struct
sys.path.insert(0, os.path.dirname(os.path.abspath(__file__)))
from asmlib import *

NAME = "concat_heads__gqa_block_cached__mha_block_cached__near_ridge"

class Cfg:
    nt_x = ""; nt_wq = ""; nt_k = " nt"; nt_v = " nt"; nt_wo = ""
    o_st = " sc1"; o_ld = " sc1"; out_st = " sc1"; p_st = " sc1"; p_ld = " sc1"
    rot = 10246
    scheds = " S0 S1/S2/S3/S4/S5/S6/S7/S8/S9 K012/K345/V0/V1|S0 S1/S2/K012 S3/K34 Va S4/S5/S6/S7/S8/S9/K5/V1/W0"
    smap = " 0011"
    wp = " 2,2/2,2"
    wpoll = 7
    wfirst = 2
    wtail = 100
    rtab = " 0,2,5,8,10,13"
    rnt = 0
    vwm = 2
    prea = 2
    vbar = 0
    snake = 2
    nrot = 16
    lead0 = 9
    lpre = 1
    first = 1
    touch = 0
    dry = 0
    pp = 0
    skipown = 0
    ntq = 99
    ntw = 99
    weave = 0
    wcnt = ""
    wlast = 14
    tail2 = 1
    ndef = 2
    pbar = 5
    kbar = 33
    dup = 0
    cpf = 1
    prio = 1
    stamps = 0
    hst = 0
    spin = 1000000
    diag = ""
    qn = 0
cfg = Cfg()
for a in sys.argv[2:]:
    k, v = a.split("=")
    old = getattr(cfg, k)
    setattr(cfg, k, int(v) if isinstance(old, int) else ((" " + v.replace("+", " ")) if v else ""))

A = Asm()
e, lab, cmt = A.e, A.lab, A.cmt

STAMP_OFF = 64 << 20
FG = 16384 if cfg.dup else 8192
FLAG_SZ = 32 * FG
O_OFF = 1 << 20
O_HEAD = 196608
PART_OFF = 16 << 20
P_W = 6144
SLOT = 40960
XB = 24576
PHYS = [0, 2*SLOT, SLOT]
V1B, V0B, K0B = 49152, 90112, 114688
WSL = [0, 16384, 32768, 73728, 114688, 131072, 147456]
kpos = lambda kt: K0B + ((kt + 1) % 6) * 8192

def stamp(i):
    if cfg.stamps:
        e(f"{'s_memtime' if cfg.stamps == 2 else 's_memrealtime'} s[{52+2*i}:{53+2*i}]")
def stamp_flush():
    e(f"s_add_u32 s84, s24, {STAMP_OFF}")
    e("s_addc_u32 s85, s25, 0")
    e("s_mov_b32 s86, 0x100000")
    e("s_mov_b32 s87, 0x20000")
    e("s_lshl_b32 s92, s2, 3")
    e("s_add_u32 s92, s92, s7")
    e("s_lshl_b32 s92, s92, 6")
    e("s_waitcnt lgkmcnt(0)")
    e("v_mbcnt_lo_u32_b32 v251, -1, 0")
    e("v_lshlrev_b32 v251, 2, v251")
    for i in range(16):
        e(f"v_writelane_b32 v250, s{52+2*i}, {i}")
    e("s_mov_b64 exec, 0xffff")
    e("buffer_store_dword v250, v251, s[84:87], s92 offen sc1")

def srd(d, lo, off, size):
    e(f"s_add_u32 s{d}, s{lo}, {off}")
    e(f"s_addc_u32 s{d+1}, s{lo+1}, 0")
    e(f"s_mov_b32 s{d+2}, {size}")
    e(f"s_mov_b32 s{d+3}, 0x20000")

def cvt4(d, a0, a1):
    return [f"v_cvt_pk_bf16_f32 v{d}, v{a0}, v{a0+1}", f"v_cvt_pk_bf16_f32 v{d+1}, v{a0+2}, v{a0+3}",
            f"v_cvt_pk_bf16_f32 v{d+2}, v{a1}, v{a1+1}", f"v_cvt_pk_bf16_f32 v{d+3}, v{a1+2}, v{a1+3}"]

def prologue():
    lab(NAME + "_kernel")
    e("s_cmp_ge_u32 s2, 256")
    e("s_cbranch_scc1 L_END")
    e("s_and_b32 s3, s2, 7")
    e("s_lshr_b32 s4, s3, 2")
    e("s_mul_i32 s5, s4, 40")
    e("s_load_dwordx8 s[8:15], s[0:1], s5")
    e("s_load_dwordx2 s[16:17], s[0:1], s5 offset:32")
    e("s_load_dwordx4 s[20:23], s[0:1], 80")
    e("s_load_dwordx2 s[24:25], s[0:1], 96")
    if cfg.stamps:
        for i in range(1, 16):
            e(f"s_mov_b32 s{52+2*i}, 0")
    stamp(0)
    if cfg.cpf:
        cmt("instruction prefetch into L2: workgroup r reads code lines 8r..8r+7 (values unused)")
        e("s_getpc_b64 s[90:91]")
        lab("L_PC")
        e("s_and_b32 s18, s2, 0xf8")
        e("v_xor_b32 v1, 256, v0")
        e("v_add_u32 v235, s18, v1")
        e("v_lshlrev_b32 v235, 7, v235")
        e("v_min_u32 v235, L_END-L_PC, v235")
        e("v_cmp_gt_u32 vcc, 8, v1")
        e("s_and_saveexec_b64 s[18:19], vcc")
        e("s_cbranch_execz L_NOCPF")
        e("global_load_dword v235, v235, s[90:91]")
        lab("L_NOCPF")
        e("s_mov_b64 exec, -1")
    e("v_lshrrev_b32 v1, 6, v0")
    e("v_xor_b32 v1, 4, v1")
    e("s_lshr_b32 s6, s2, 3")
    e("v_readfirstlane_b32 s7, v1")
    e("v_and_b32 v0, 63, v0")
    e("s_bfe_u32 s26, s6, 0x10002")
    e("s_lshr_b32 s27, s6, 3")
    e("s_and_b32 s6, s6, 3")
    e("s_lshl_b32 s27, s27, 2")
    e("s_lshl_b32 s26, s26, 4")
    e("s_or_b32 s6, s6, s27")
    e("s_or_b32 s6, s6, s26")
    if cfg.stamps:
        e("s_lshl_b32 s2, s6, 3")
        e("s_or_b32 s2, s2, s3")
    e("s_and_b32 s97, s3, 3")
    e("s_and_b32 s27, s6, 7")
    e("s_lshl3_add_u32 s26, s97, s27")
    e("s_lshr_b32 s28, s6, 3")
    e("s_cmp_lt_u32 s7, 4")
    e("s_cbranch_scc1 L_COMPUTE")

def ids():
    cmt("s94 = m (15: no output tile), s95 = tt, s96 = nt, s97 = head group, s98 = set, s99 = (branch*2+set)*4")
    e("s_and_b32 s94, s6, 15")
    e("s_mul_i32 s95, s94, 52")
    e("s_lshr_b32 s95, s95, 8")
    e("s_mul_i32 s96, s95, 5")
    e("s_sub_u32 s96, s94, s96")
    e("s_lshr_b32 s98, s6, 4")
    e("s_lshl1_add_u32 s99, s4, s98")
    e("s_lshl_b32 s99, s99, 2")

def helper():
    cmt("================ loader waves: x / wq ring, K, V, then wo / O rings (all LDS-DMA)")
    vm = Counter(A, "vmcnt", 63)
    e("s_sub_u32 s19, s7, 4")
    if cfg.rot == 3:
        e("s_add_u32 s30, s27, s28"); e("s_and_b32 s30, s30, 3"); e("s_mul_i32 s30, s30, 5"); e("s_lshr_b32 s30, s30, 1")
    elif cfg.rot == 2:
        e("s_lshl1_add_u32 s30, s28, s27"); e("s_and_b32 s30, s30, 7"); e("s_mul_i32 s30, s30, 5"); e("s_lshr_b32 s30, s30, 2")
    elif cfg.rot == 1:
        e("s_add_u32 s30, s27, s28"); e("s_and_b32 s30, s30, 1"); e("s_mul_i32 s30, s30, 5")
    elif cfg.rot >= 10:
        tab = [int(c) for c in str(cfg.rot)[1:]]
        e("s_add_u32 s30, s27, s28"); e("s_and_b32 s30, s30, 3"); e("s_lshl_b32 s30, s30, 2")
        e(f"s_lshr_b32 s30, {sum(b << (4*i) for i, b in enumerate(tab)):#x}, s30"); e("s_and_b32 s30, s30, 15")
    XV, WV = 10, 14
    e("v_lshrrev_b32 v1, 4, v0")
    e("v_and_b32 v2, 15, v0")
    e("v_lshlrev_b32 v3, 1, v1")
    e("v_xor_b32 v4, v2, v3")
    e("v_lshlrev_b32 v4, 4, v4")
    e("s_lshl_b32 s29, s19, 4")
    e("v_add_u32 v5, s29, v1")
    e(f"v_lshl_add_u32 v{WV}, v5, 13, v4")
    e(f"v_add_u32 v{WV+1}, {32768-1024}, v{WV}")
    e(f"v_xor_b32 v5, 128, v{WV}")
    e(f"v_add_u32 v{WV+2}, {2*(32768-1024)}, v5")
    e(f"v_add_u32 v{WV+3}, {3*(32768-1024)}, v5")
    e("v_lshrrev_b32 v5, 3, v0")
    e("v_and_b32 v6, 7, v0")
    e("v_and_b32 v7, 6, v5")
    e("v_xor_b32 v6, v6, v7")
    e("s_mul_i32 s29, s19, 48")
    e("v_add_u32 v5, s29, v5")
    e("v_mul_u32_u24 v5, 1280, v5")
    e(f"v_lshl_add_u32 v{XV}, v6, 4, v5")
    for t in range(1, 4):
        e(f"v_add_u32 v{XV+t}, {t*(10240-1024)}, v{XV}")
    e(f"s_mul_i32 s88, s19, {48*128}")
    e("s_lshl_b32 s89, s19, 12")
    e(f"s_mul_i32 s29, s28, {192*1280}")
    e("s_lshl_b32 s31, s26, 8")
    e(f"s_sub_u32 s38, {640*8192}, s31")
    e("s_mov_b32 s39, 0x20000")
    e(f"s_mov_b32 s34, {192*1280}")
    e("s_mov_b32 s35, 0x20000")
    e("s_mov_b32 s100, 0")
    e("s_waitcnt lgkmcnt(0)")
    e("s_add_u32 s36, s14, s31")
    e("s_addc_u32 s37, s15, 0")
    e("s_add_u32 s32, s8, s29")
    e("s_addc_u32 s33, s9, 0")

    def stage(i):
        slot = PHYS[i % 3]
        e(f"s_add_u32 m0, s89, {slot + XB}")
        if i < cfg.first:
            e(f"s_mov_b32 s90, {(9 - i) << 19}")
        else:
            e("s_lshl_b32 s90, s30, 19")
        for t in range(4):
            vm.issue(f"buffer_load_dwordx4 v{WV+t}, s[36:39], s90 offen offset:{t*1024}{cfg.nt_wq if 1 <= i <= cfg.ntq else ''} lds", ("st", i))
        e(f"s_add_u32 m0, s88, {slot}")
        if i < cfg.first:
            e(f"s_mov_b32 s91, {(9 - i) << 7}")
        else:
            e("s_lshl_b32 s91, s30, 7")
        for t in range(4):
            vm.issue(f"buffer_load_dwordx4 v{XV+t}, s[32:35], s91 offen offset:{t*1024}{cfg.nt_x} lds", ("st", i))
        e("s_add_u32 m0, m0, 4096")
        e("s_add_u32 s91, s91, 40960")
        for t in range(2):
            vm.issue(f"buffer_load_dwordx4 v{XV+t}, s[32:35], s91 offen offset:{t*1024}{cfg.nt_x} lds", ("st", i))
        if cfg.first <= i < 9:
            e("s_add_u32 s30, s30, 1")
            e(f"s_cmp_eq_u32 s30, {10 - cfg.first}")
            e("s_cselect_b32 s30, 0, s30")
    def kv_setup():
        e("s_lshl_b32 s29, s28, 6")
        e("s_add_u32 s29, s29, s26")
        e("s_mul_i32 s29, s29, 24576")
        srd(44, 12, "s29", 33*24576)
        srd(40, 10, "s29", 33*24576)
        e("v_lshlrev_b32 v18, 4, v0")
        e("s_and_b32 s31, s19, 1")
        e("s_lshl_b32 s31, s31, 7")
        e("v_xor_b32 v19, s31, v4")
        e("v_lshl_add_u32 v19, v1, 8, v19")
        e("s_lshl_b32 s93, s19, 10")
        e("v_add_u32 v19, s93, v19")
        e("s_lshl_b32 s31, s19, 2")
        e("v_add_u32 v5, s31, v1")
        e("v_xor_b32 v6, v2, v5")
        e("v_lshlrev_b32 v6, 4, v6")
        e("v_lshl_add_u32 v20, v5, 8, v6")
    def kload(kts):
        for kt in kts:
            for b in range(2):
                e(f"s_add_u32 m0, s93, {kpos(kt) + b*4096}")
                e(f"s_mov_b32 s90, {b*32*24576 + kt*4096}")
                vm.issue(f"buffer_load_dwordx4 v20, s[40:43], s90 offen{cfg.nt_k} lds", "k")
    def vload(b):
        for n in range(6):
            e(f"s_add_u32 m0, s93, {(V1B if b else V0B) + n*4096}")
            e(f"s_mov_b32 s90, {b*32*24576 + n*4096}")
            vm.issue(f"buffer_load_dwordx4 v19, s[44:47], s90 offen{cfg.nt_v} lds", "v")
    VR = 80
    def vreg():
        for n in range(6):
            e(f"s_mov_b32 s90, {n*4096}")
            vm.issue(f"buffer_load_dwordx4 {vr(VR+4*n,4)}, v19, s[44:47], s90 offen{cfg.nt_v}", "vr")
    def late_vw(k):
        cmt("V tile that was staged in registers (s100 = 1) goes to LDS now")
        e("s_cmp_eq_u32 s100, 0")
        e(f"s_cbranch_scc1 L_NOVW{k}")
        e(f"s_add_u32 s90, s93, {V0B}")
        e("v_add_u32 v22, s90, v18")
        for n in range(6):
            e(f"ds_write_b128 v22, {vr(VR+4*n,4)} offset:{n*4096}")
        lab(f"L_NOVW{k}")

    def run_sched(sched):
        iv = [x.split() for x in sched.strip().split("/")]
        assert len(iv) == 12
        setup_done = False
        for i, toks in enumerate(iv):
            for tk in toks:
                if tk[0] != "S" and not setup_done:
                    kv_setup(); setup_done = True
                if tk[0] == "S":
                    n = int(tk[1:])
                    assert n <= max(2, i + 1)
                    stage(n)
                elif tk[0] == "K":
                    assert i <= 10 and ("5" not in tk or i >= 9)
                    kload([int(c) for c in tk[1:]])
                elif tk == "V0":
                    assert i >= 9; vload(0)
                elif tk == "V1":
                    assert i >= 10; vload(1)
                elif tk == "Va":
                    vreg()
                elif tk == "W0":
                    assert i == 11
                    vm.need("vr")
                    e("s_mov_b32 s100, 1")
                else:
                    assert False, tk
            if i == 0 and not setup_done:
                kv_setup(); setup_done = True
            if i < 10:
                vm.need(("st", i))
            if i == 10:
                vm.need("k")
            if i < 11:
                e(f"s_barrier                               ; B_{i}")
            if cfg.hst >= 2: continue
            if i < (10 if cfg.hst else 8): stamp(1 + i)
            if i == 10: stamp(11)

    scs = cfg.scheds.strip().split("|"); smap = cfg.smap.strip()
    smap = "".join(c * 8 for c in smap) if len(smap) == 4 else smap * (32 // len(smap))
    for k, sc in enumerate(scs):
        if k + 1 < len(scs):
            mask = sum(1 << r for r in range(32) if int(smap[r]) == k)
            e(f"s_bitcmp1_b32 {mask:#x}, s6")
            e(f"s_cbranch_scc0 L_H{k+1}")
        vm.pend = []
        run_sched(sc)
        if k + 1 < len(scs):
            e("s_branch L_HX")
            lab(f"L_H{k+1}")
    lab("L_HX")

    vm.pend = []
    ids()
    srd(48, 22, 0, 256)
    e("s_lshl_b32 s101, s99, 2")
    e("v_mov_b32 v9, 0")
    e("s_cmp_eq_u32 s94, 15")
    e("s_cbranch_scc1 L_H_NOP2")
    e("buffer_load_dwordx4 v[32:35], v9, s[48:51], s101 offen sc1")
    WO, OV = 24, 28
    e("s_mul_i32 s29, s98, 3")
    e("s_add_u32 s29, s29, s95")
    e("s_lshl_b32 s31, s29, 2")
    e(f"s_lshr_b32 s30, {sum(int(b) << (4*i) for i, b in enumerate(cfg.rtab.split(','))):#x}, s31")
    if cfg.nrot < 16:
        e("s_and_b32 s30, s30, 15")
    def stg(u):
        if cfg.nrot == 16:
            e(f"s_add_u32 s90, s30, {u}")
        elif u >= cfg.nrot:
            e(f"s_mov_b32 s90, {u}")
        else:
            e(f"s_add_u32 s90, s30, {u}")
            e(f"s_sub_u32 s91, s90, {cfg.nrot}")
            e("s_cselect_b32 s90, s90, s91")
    if cfg.rnt:
        e(f"s_mul_i32 s31, s96, {cfg.rnt}")
        e("s_add_u32 s30, s30, s31")
    e(f"s_mul_i32 s18, s97, {1024*1280}")
    e("s_lshl_b32 s31, s96, 8")
    e("s_add_u32 s18, s18, s31")
    e(f"s_sub_u32 s31, {4096*1280}, s18")
    srd(32, 16, "s18", "s31")
    e(f"s_mul_i32 s18, s3, {8*O_HEAD}")
    e("s_lshl_b32 s31, s29, 15")
    e("s_add_u32 s18, s18, s31")
    e(f"s_add_u32 s18, s18, {O_OFF - 4096}")
    srd(36, 24, "s18", 8*O_HEAD)
    e("s_lshl_b32 s31, s19, 4")
    e("v_add_u32 v5, s31, v1")
    e("v_mul_u32_u24 v5, 1280, v5")
    e(f"v_add_u32 v{WO}, v5, v4")
    e("v_xor_b32 v6, 128, v4")
    e("v_add_u32 v6, v5, v6")
    e(f"v_add_u32 v{WO+1}, {4*1280-1024}, v6")
    e(f"v_add_u32 v{WO+2}, {2*(4*1280-1024)}, v{WO}")
    e(f"v_add_u32 v{WO+3}, {3*(4*1280-1024)}, v6")
    def wdma(u, ts=range(4)):
        stg(u)
        if cfg.nrot == 16:
            e("s_and_b32 s90, s90, 15")
        e(f"s_add_u32 m0, s89, {WSL[u % 7]}")
        e("s_mul_i32 s90, s90, 81920")
        for t in ts:
            vm.issue(f"buffer_load_dwordx4 v{WO+t}, s[32:35], s90 offen offset:{t*1024}{cfg.nt_wo if u < cfg.ntw else ''} lds", ("w", u))
    def o_setup():
        for j in range(4):
            e(f"s_add_u32 s31, s97, {j}")
            e("s_and_b32 s31, s31, 3")
            e(f"s_add_u32 s31, s31, {4-j}")
            e("s_lshl_b32 s31, s31, 10")
            e("s_add_u32 s31, s31, s89")
            e(f"v_add_u32 v{OV+j}, s31, v18")
        e("s_and_b32 s88, s19, 1")
        e("s_lshl_b32 s88, s88, 12")
        e("s_cmp_ge_u32 s19, 2")
        e(f"s_mov_b32 s31, {V1B}")
        e(f"s_cselect_b32 s31, {V0B}, s31")
        e("s_add_u32 s88, s88, s31")
    def cleared(k):
        cmt("the flag lines of all four head groups must have been cleared in this launch")
        e(f"s_mov_b32 s31, {cfg.spin}")
        lab(f"L_CNT{k}")
        e("v_and_b32 v32, v32, v33")
        e("v_and_b32 v34, v34, v35")
        e("v_and_b32 v32, v32, v34")
        e("s_sub_u32 s31, s31, 1")
        e("v_readfirstlane_b32 s29, v32")
        e(f"s_cbranch_scc1 L_CNTOK{k}")
        e("s_cmp_eq_u32 s29, 1")
        e(f"s_cbranch_scc1 L_CNTOK{k}")
        e("buffer_load_dwordx4 v[32:35], v9, s[48:51], s101 offen sc1")
        e("s_waitcnt vmcnt(0)")
        e(f"s_branch L_CNT{k}")
        lab(f"L_CNTOK{k}")
    plans = [tuple(int(x) for x in p.split(",")) for p in cfg.wp.strip().split("/")]
    if plans[0] == plans[1]:
        plans = plans[:1]
    else:
        e("s_cmp_lg_u32 s98, 0")
        e("s_cbranch_scc1 L_WP1")
    for k, (a, b) in enumerate(plans):
        assert a <= 4 and a <= b <= cfg.wpoll
        vm.pend = []
        if k:
            lab("L_WP1")
        for u in range(a):
            wdma(u)
        if cfg.vwm:
            o_setup()
        if cfg.vwm == 2:
            e(f"s_waitcnt vmcnt({4*a})")
        late_vw(k)
        e(f"s_waitcnt vmcnt({4*a}) lgkmcnt(0)")
        cleared(k)
        e("s_barrier")
        for u in range(a, b):
            wdma(u)
        if not cfg.vwm:
            o_setup()
        e("s_barrier")
        for u in range(b, cfg.wpoll):
            wdma(u)
        if k + 1 < len(plans):
            e("s_branch L_WP2")
    lab("L_WP2")
    if not cfg.hst: stamp(9)
    def oaddr(u):
        stg(u)
        e("s_bfe_u32 s91, s90, 0x30001")
        e("s_and_b32 s90, s90, 1")
        e(f"s_mul_i32 s91, s91, {O_HEAD}")
        e("s_lshl_b32 s90, s90, 14")
        e(f"s_add_u32 m0, s88, {(u % 3)*8192}")
        e("s_add_u32 s90, s90, s91")
    def oissue(u):
        for j in range(4):
            vm.issue(f"buffer_load_dwordx4 v{OV+j}, s[36:39], s90 offen offset:{j*1024}{cfg.o_ld} lds", ("o", u))
    oaddr(0)
    vm.need(*[("w", u) for u in range(cfg.prea)])
    e("s_barrier")
    if not cfg.hst: stamp(10)
    oissue(0)
    oaddr(1)
    wq = [(u, t) for u in range(cfg.wpoll, 16) for t in range(4)]
    wts = [0 if (i < cfg.wfirst or i > cfg.wlast) else (100 if i <= 16 - cfg.ndef else cfg.wtail) for i in range(16)]
    R, done = len(wq), 0
    for i in range(16):
        if i + 1 < 16 and not cfg.weave:
            oissue(i + 1)
        tgt = -(-(sum(wts[:i+1]) * R) // sum(wts))
        if cfg.wcnt:
            tgt = sum(int(c) for c in cfg.wcnt.strip()[:i+1])
        tgt = max(tgt, sum(1 for (u, t) in wq if u <= i + 1))
        tgt = min(tgt, sum(1 for (u, t) in wq if u <= max(6 + (cfg.prea if i >= 1 else 0), i + 5)))
        grp = wq[done:tgt]; done = max(done, tgt)
        if cfg.weave and i + 1 < 16:
            assert cfg.nrot == 16
            us = sorted(set(g[0] for g in grp))
            sal = []
            for k, u in enumerate(us):
                sal += [f"s_add_u32 s{44+k}, s30, {u}", f"s_and_b32 s{44+k}, s{44+k}, 15", f"s_mul_i32 s{44+k}, s{44+k}, 81920"]
            if i + 2 < 16:
                sal += [f"s_add_u32 s42, s30, {i+2}", "s_bfe_u32 s43, s42, 0x30001", "s_and_b32 s42, s42, 1",
                        f"s_mul_i32 s43, s43, {O_HEAD}", "s_lshl_b32 s42, s42, 14"]
            per = -(-len(sal) // 3)
            for j in range(4):
                vm.issue(f"buffer_load_dwordx4 v{OV+j}, s[36:39], s90 offen offset:{j*1024}{cfg.o_ld} lds", ("o", i + 1))
                for x in sal[per*j:per*(j+1)] if j < 3 else []:
                    e(x)
            nxt = ["s_add_u32 s90, s42, s43"] if i + 2 < 16 else []
            for k, u in enumerate(us):
                e(f"s_add_u32 m0, s89, {WSL[u % 7]}")
                e(nxt.pop() if nxt else "s_nop 0")
                for t in [t for (uu, t) in grp if uu == u]:
                    vm.issue(f"buffer_load_dwordx4 v{WO+t}, s[32:35], s{44+k} offen offset:{t*1024}{cfg.nt_wo} lds", ("w", u))
            for x in nxt:
                e(x)
            if i + 2 < 16:
                e(f"s_add_u32 m0, s88, {((i+2) % 3)*8192}")
            grp = []
        for u in sorted(set(g[0] for g in grp)):
            wdma(u, [t for (uu, t) in grp if uu == u])
        if i + 2 < 16 and not cfg.weave:
            oaddr(i + 2)
        vm.need(("o", i), ("w", i))
        e(f"s_barrier                               ; C_{i}")
        if cfg.hst == 2:
            if i >= 2: stamp(i - 1)
            continue
        if cfg.hst == 4:
            if i in (0, 1, 2, 3, 13, 14, 15): stamp(1 + (0, 1, 2, 3, 13, 14, 15).index(i))
            continue
        if i == 0: stamp(12)
        if i == 4: stamp(13)
        if i == 15: stamp(14)
    assert done == R
    e("s_branch L_FIN")
    lab("L_H_NOP2")
    if cfg.nrot < 16:
        cmt("no tile: pull the wo rows of the last stages into L2 for the other workgroups (one dword per line, values unused)")
        total = (16 - cfg.nrot) * 81920
        npc = -(-total // 32768)
        e(f"s_mul_i32 s18, s97, {1024*1280}")
        e(f"s_add_u32 s18, s18, {cfg.nrot*81920}")
        srd(32, 16, "s18", total)
        e("s_lshl_b32 s31, s19, 13")
        e("v_lshl_add_u32 v24, v0, 7, s31")
        e(f"s_mul_i32 s90, s98, {cfg.lead0*32768}")
        e(f"s_mul_i32 s91, s98, {(npc - cfg.lead0)*32768}")
        e(f"s_add_u32 s91, s91, {cfg.lead0*32768}")
        for k in range(cfg.lpre):
            e("buffer_load_dword v25, v24, s[32:35], s90 offen")
            e("s_add_u32 s90, s90, 32768")
        e(f"s_waitcnt vmcnt({cfg.lpre})")
        e("s_mov_b32 s88, s90")
        late_vw(9)
        e("s_waitcnt lgkmcnt(0)")
        e("s_barrier                               ; B_11")
        e("s_barrier                               ; E")
        lab("L_LEAD")
        e("s_cmp_ge_u32 s88, s91")
        e("s_cbranch_scc1 L_FIN")
        e("buffer_load_dword v25, v24, s[32:35], s88 offen")
        e("s_add_u32 s88, s88, 32768")
        e("s_branch L_LEAD")
        return
    late_vw(9)
    e("s_waitcnt vmcnt(0) lgkmcnt(0)")
    e("s_barrier                               ; B_11")
    e("s_barrier                               ; E")
    e("s_branch L_FIN")

def compute():
    lab("L_COMPUTE")
    lg = Counter(A, "lgkmcnt", 15)
    AB = 96
    BB = [128, 152]
    AA = 176
    BA = 184
    KA, FONE, FOFF, LANE, OA, VA0 = 186, 252, 253, 254, 190, 191
    KB = [192, 208, 96]
    T0 = 224
    acc = lambda T, j: (T*3+j)*4
    if cfg.prio:
        e(f"s_setprio {cfg.prio}")
    e(f"v_mov_b32 v{LANE}, v0")
    e(f"v_lshrrev_b32 v{T0}, 4, v0")
    e(f"v_and_b32 v{T0+1}, 15, v0")
    e(f"v_bfe_u32 v{T0+2}, v0, 2, 2")
    e(f"v_and_b32 v{T0+3}, 3, v0")
    ids()
    e("s_add_u32 s29, s99, s97")
    e("s_lshl_b32 s101, s29, 2")
    e(f"s_mul_i32 s43, s29, {2*FG}")
    e("s_lshr_b32 s29, s94, 3")
    e(f"s_mul_i32 s29, s29, {FG}")
    e("s_lshl_b32 s39, s27, 10")
    e("s_add_u32 s39, s39, s29")
    e("s_add_u32 s100, s43, s39")
    e(f"v_mov_b32 v{T0+8}, 0")
    e(f"v_mov_b32 v{FONE}, 1")
    e(f"v_lshlrev_b32 v{T0+10}, 7, v0")
    e("s_lshl4_add_u32 s93, s7, s94")
    e("s_waitcnt lgkmcnt(0)")
    if cfg.touch:
        cmt("address-translation warm-up: one scalar load per region used later (values unused)")
        def touch(lo, *terms):
            first = True
            for reg, mul in terms:
                if reg is None:
                    e(f"s_add_u32 s18, s18, {mul}" if not first else f"s_mov_b32 s18, {mul}")
                elif first:
                    e(f"s_mul_i32 s18, s{reg}, {mul}")
                else:
                    e(f"s_mul_i32 s19, s{reg}, {mul}")
                    e("s_add_u32 s18, s18, s19")
                first = False
            e(f"s_load_dword s92, s[{lo}:{lo+1}], s18")
        e("s_and_b32 s5, s7, 1")
        touch(14, (7, 1536*1024), (26, 256))
        e("s_cmp_ge_u32 s7, 2")
        e("s_cbranch_scc1 L_TOUCH2")
        touch(10, (28, 64*24576), (26, 24576), (5, 32*24576))
        touch(16, (97, 1024*1280), (5, 1024*1280 - 64))
        if cfg.touch > 1:
            touch(24, (3, 8*O_HEAD), (5, 8*O_HEAD - 64), (None, O_OFF))
            touch(24, (None, FLAG_SZ))
        e("s_branch L_TOUCH3")
        lab("L_TOUCH2")
        touch(12, (28, 64*24576), (26, 24576), (5, 32*24576))
        if cfg.touch > 1:
            touch(24, (99, 15*4*P_W), (94, 16*P_W), (5, 16*P_W - 64), (None, PART_OFF))
            touch(20, (5, 768*2560 - 64))
        lab("L_TOUCH3")
    srd(44, 24, 0, FLAG_SZ)
    srd(48, 22, 0, 256)
    e("s_cmp_lg_u32 s93, 15")
    e("s_cbranch_scc1 L_NOCLR")
    e("s_mov_b32 exec_lo, 0x1f1f1f1f")
    e("s_mov_b32 exec_hi, 0x1f1f1f1f")
    for k in range(2*FG // 8192):
        e(f"s_add_u32 s31, s43, {k*8192}")
        e(f"buffer_store_dword v{T0+8}, v{T0+10}, s[44:47], s31 offen sc1")
    e("s_mov_b64 exec, -1")
    lab("L_NOCLR")
    if cfg.dry:
        cmt("instruction-cache warm-up: one pass through the Q loop with EXEC = 0 (LDS and matrix instructions only; results discarded)")
        e(f"s_bitcmp1_b32 {cfg.dry}, s7")
        e("s_cbranch_scc0 L_DRYDONE")
        for i in range(BB[0], BA + 2):
            e(f"v_mov_b32 v{i}, 0")
        e("s_mov_b32 s29, 0")
        e("s_mov_b64 exec, 0")
        e("s_branch L_QLOOP")
        lab("L_DRYDONE")
        e("s_mov_b64 exec, -1")
        e("s_nop 7")
        e(f"v_mov_b32 v0, v{LANE}")
    e(f"v_lshl_add_u32 v{T0+4}, v{T0}, 3, v{T0+2}")
    e(f"v_lshlrev_b32 v{T0+4}, 8, v{T0+4}")
    e(f"v_lshl_add_u32 v{T0+4}, v{T0+3}, 3, v{T0+4}")
    e(f"v_add_u32 v{T0+4}, {XB}, v{T0+4}")
    e(f"v_and_b32 v{T0+5}, 1, v{T0}")
    e(f"v_lshl_add_u32 v{T0+5}, v{T0+5}, 2, v{T0+2}")
    for T in range(8):
        e(f"v_xor_b32 v{T0+6}, {T}, v{T0+5}")
        e(f"v_lshl_add_u32 v{AA+T}, v{T0+6}, 5, v{T0+4}")
    e(f"v_and_b32 v{T0+6}, 6, v{T0+1}")
    e(f"v_xor_b32 v{T0+6}, v{T0+6}, v{T0}")
    e(f"v_lshlrev_b32 v{T0+6}, 4, v{T0+6}")
    e(f"v_lshl_add_u32 v{T0+6}, v{T0+1}, 7, v{T0+6}")
    e(f"s_mul_i32 s29, s7, {48*128}")
    e(f"v_add_u32 v{BA}, s29, v{T0+6}")
    e(f"v_xor_b32 v{BA+1}, 64, v{BA}")
    e("s_lshr_b32 s19, s7, 1")
    e("s_lshl_b32 s29, s19, 12")
    e(f"s_add_u32 s29, s29, {K0B}")
    e(f"v_lshrrev_b32 v{T0+6}, 1, v{T0}")
    e(f"v_xor_b32 v{T0+6}, v{T0+6}, v{T0+1}")
    e(f"v_lshlrev_b32 v{T0+6}, 4, v{T0+6}")
    e(f"v_lshl_add_u32 v{T0+6}, v{T0+1}, 8, v{T0+6}")
    e(f"v_and_b32 v{T0+7}, 1, v{T0}")
    e(f"v_lshl_add_u32 v{T0+6}, v{T0+7}, 3, v{T0+6}")
    e(f"v_add_u32 v{KA}, s29, v{T0+6}")
    e(f"v_lshrrev_b32 v{T0+6}, 2, v0")
    e(f"v_and_b32 v{T0+7}, 7, v{T0+6}")
    e(f"v_lshlrev_b32 v{T0+6}, 8, v{T0+6}")
    e(f"v_lshl_add_u32 v{T0+6}, v{T0+7}, 5, v{T0+6}")
    e(f"v_lshl_add_u32 v{T0+6}, v{T0+3}, 3, v{T0+6}")
    e("s_cmp_eq_u32 s19, 0")
    e(f"s_mov_b32 s29, {V1B}")
    e(f"s_cselect_b32 s29, {V0B}, s29")
    e(f"v_add_u32 v{VA0}, s29, v{T0+6}")
    e(f"v_lshlrev_b32 v{OA}, 4, v0")
    e("s_lshl_b32 s30, s7, 7")
    e(f"v_lshl_add_u32 v{FOFF}, v0, 13, s30")
    for i in range(96):
        e(f"v_mov_b32 v{i}, 0")
    e("s_lshl_b32 s29, s4, 5")
    e("s_add_u32 s29, s29, s26")
    e(f"s_mul_i32 s29, s29, {O_HEAD}")
    e(f"s_add_u32 s29, s29, {O_OFF}")
    srd(32, 24, "s29", O_HEAD)
    e("s_mul_i32 s29, s28, 12")
    e("s_mul_i32 s31, s7, 3")
    e("s_add_u32 s29, s29, s31")
    for j in range(3):
        e(f"s_add_u32 s31, s29, {j}")
        e("s_lshr_b32 s18, s31, 3")
        e("s_lshl_b32 s18, s18, 15")
        e("s_and_b32 s31, s31, 7")
        e("s_lshl_b32 s31, s31, 10")
        e(f"s_add_u32 s{40+j}, s31, s18")
    e(f"s_mul_i32 s18, s99, {2*FG}")
    e("s_add_u32 s18, s18, s39")
    e("s_add_u32 s18, s18, s30")
    e("s_add_u32 s18, s18, 128")
    e("s_add_u32 s8, s24, s18")
    e("s_addc_u32 s9, s25, 0")
    e("s_lshl_b32 s18, s7, 11")
    e("s_add_u32 s18, s18, s43")
    e("s_add_u32 s10, s24, s18")
    e("s_addc_u32 s11, s25, 0")
    e("s_cmp_eq_u32 s95, 2")
    e(f"s_cselect_b32 s12, {FG}, 0")
    e("s_cmp_lg_u32 s93, 15")
    e("s_cbranch_scc1 L_NOCLR2")
    e("s_waitcnt vmcnt(0)")
    e("s_mov_b64 exec, 1")
    e(f"buffer_store_dword v{FONE}, v{T0+8}, s[48:51], s101 offen sc1")
    e("s_mov_b64 exec, -1")
    lab("L_NOCLR2")

    def a_rd(T):
        return [(f"ds_read_b64_tr_b16 {vr(AB + (T & 3)*8 + s*4 + h*2, 2)}, v{AA+T} offset:{s*8192 + h*1024}", ("A", T & 3, s))
                for s in range(2) for h in range(2)]
    def b_rd(j, s, par):
        return (f"ds_read_b128 {vr(BB[par]+(j*2+s)*4,4)}, v{BA+s} offset:{j*2048}", ("B", par, j, s))
    def head_reads(par):
        a0 = a_rd(0)
        return [a0[0], a0[1], b_rd(0,0,par), a0[2], a0[3], b_rd(0,1,par), b_rd(1,0,par), b_rd(1,1,par),
                b_rd(2,0,par), b_rd(2,1,par)] + a_rd(1)
    def k_rd(kt):
        return [(f"ds_read_b64 {vr(KB[kt%3]+4*s+2*h,2)}, v{AA+2*s+h} offset:{kpos(kt) - K0B}", ("K", kt % 3, s))
                for s in range(4) for h in range(2)]
    def cvtq(s):
        return [x for j in range(3) for x in cvt4(acc(2*s, j), acc(2*s, j), acc(2*s+1, j))]
    def emit(x):
        if isinstance(x, tuple):
            lg.issue(x[0], x[1])
        else:
            e(x)
    def qstage(par, last=False, exit_label=None):
        att = {n: [] for n in range(48)}
        for T, n0 in ((2,0),(3,4),(4,8),(5,12),(6,18),(7,24)):
            for k, r in enumerate(a_rd(T)):
                att[n0+k].append(r)
        if not last:
            adv = [f"v_add_u32 v{AA+T}, s30, v{AA+T}" for T in range(8)] + [f"v_add_u32 v{BA+s}, s30, v{BA+s}" for s in range(2)]
            for k, x in enumerate(adv):
                att[28 + k//2].append(x)
            att[16] += ["s_mov_b32 s30, s88", "s_mov_b32 s88, s89"]
            att[17] += ["s_mov_b32 s89, s90", "s_mov_b32 s90, s30"]
            if par == 0:
                att[22].append("s_add_u32 s29, s29, 1")
                att[23].append("s_cmp_eq_u32 s29, 5")
            for k, r in enumerate(head_reads(par ^ 1)):
                att[34+k].append(r)
        else:
            for k in range(8):
                att[(4, 5, 8, 9, 12, 16, 22, 28)[k]].append(f"v_xor_b32 v{AA+k}, {32*k}, v{KA}")
            for k, r in enumerate(k_rd(0) + k_rd(1)[:4]):
                att[min(47, cfg.kbar + 1 + k//2)].append(r)
            for k, x in enumerate(cvtq(0)):
                att[(16, 17, 17, 18, 19, 20, 21, 22, 23, 23, 24, 25)[k]].append(x)
            for k, x in enumerate(cvtq(1)):
                att[(26, 27, 28, 29, 29, 30, 30, 31, 31, 32, 32, 33)[k]].append(x)
            for k, x in enumerate(cvtq(2)):
                att[40 + (k*2)//3].append(x)
        for n in range(48):
            T, j, s = n//6, (n % 6)//2, n % 2
            if cfg.snake:
                s ^= (n // 2) & 1
                if cfg.snake == 2 and T & 1 and not last: j = 2 - j
            if n % 6 == 0:
                lg.need(("A", T & 3, 0), ("A", T & 3, 1), *([("B", par, 0, 0), ("B", par, 0, 1)] if T == 0 else []))
            if T == 0 and n == 2:
                lg.need(*[("B", par, jj, ss) for jj in (1, 2) for ss in (0, 1)])
            e(mfma(acc(T, j), AB + (T & 3)*8 + s*4, BB[par] + (j*2+s)*4))
            for x in att[n]:
                emit(x)
            if cfg.qn and (n * cfg.qn) // 48 != ((n + 1) * cfg.qn) // 48:
                e("s_nop 5")
            if n == (cfg.kbar if last else 33):
                lg.drain()
                if cfg.dry and not last:
                    e(f"s_cbranch_execz L_QB{par}")
                e("s_barrier                               ; B_{i+1}: this stage read, next one (or K) landed")
                if cfg.dry and not last:
                    lab(f"L_QB{par}")
        if exit_label:
            e(f"s_cbranch_scc1 {exit_label}")

    e("s_mov_b32 s29, 0")
    e(f"s_mov_b32 s88, {2*SLOT}")
    e(f"s_mov_b32 s89, {(-SLOT) & 0xffffffff}")
    e("s_mov_b32 s90, s89")
    e("s_barrier                               ; B_0")
    stamp(1)
    for r in head_reads(0):
        emit(r)
    lab("L_QLOOP")
    qstage(0, exit_label="L_QDONE")
    saved = [set(t) for t in lg.pend]
    qstage(1)
    if cfg.dry:
        e("s_cbranch_execnz L_QLOOP")
        e("s_branch L_DRYDONE")
    else:
        e("s_branch L_QLOOP")
    lab("L_QDONE")
    lg.pend = saved
    qstage(1, last=True)
    stamp(2)
    QB = lambda s, j: acc(2*s, j)
    sregs = [acc(T, j) for T in (1, 3, 5) for j in range(3)] + [BB[0] + 4*k for k in range(6)] + [acc(7, j) for j in range(3)]
    SS = lambda kt, j: sregs[kt*3 + j]
    M = T0
    vaddr = [f"v_xor_b32 v{AA+T}, {32*T}, v{VA0}" for T in range(8)]
    c = math.log2(math.e) / math.sqrt(128.0)
    cbits = struct.unpack("<I", struct.pack("<f", c))[0]
    ONES = T0 + 12
    for kt in range(6):
        lg.need(*[("K", kt % 3, s) for s in range(4)])
        order = [(j, s) for j in range(3) for s in range(4)] if kt else \
                [(j, s) for j in range(3) for s in range(3)] + [(j, 3) for j in range(3)]
        att = {n: [] for n in range(12)}
        rd = k_rd(kt + 2) if kt + 2 < 6 else []
        if kt == 0:
            for k, x in enumerate(k_rd(1)[4:]):
                att[k//2].append(x)
            for k, x in enumerate(cvtq(3)):
                att[2 + k//2].append(x)
            for k, x in enumerate(rd):
                att[8 + k//2].append(x)
        else:
            for k, x in enumerate(rd):
                att[k].append(x)
        if kt == 4:
            for k, x in enumerate(vaddr):
                att[(0, 0, 1, 1, 2, 2, 10, 10)[k]].append(x)
        if kt == 5:
            att[0] += [f"s_mov_b32 s30, {cbits:#x}", f"s_mov_b32 s31, {cbits:#x}"]
            for r in range(4):
                att[1 + r//2].append(f"v_mov_b32 v{ONES+r}, 0x3f803f80")
        if kt >= 1:
            for j in range(3):
                b = SS(kt-1, j)
                if kt == 1:
                    att[5 + 2*j] += [f"v_max3_f32 v{M+j}, v{b}, v{b+1}, v{b+2}"]
                    att[6 + 2*j] += [f"v_max_f32 v{M+j}, v{M+j}, v{b+3}"]
                else:
                    o = 6 if kt < 4 else 4
                    att[o + 2*j] += [f"v_max3_f32 v{M+j}, v{M+j}, v{b}, v{b+1}"]
                    att[o + 1 + 2*j] += [f"v_max3_f32 v{M+j}, v{M+j}, v{b+2}, v{b+3}"]
        if kt == 5:
            b = SS(5, 0)
            att[10] += [f"v_max3_f32 v{M}, v{M}, v{b}, v{b+1}"]
            att[11] += [f"v_max3_f32 v{M}, v{M}, v{b+2}, v{b+3}"]
        for n, (j, s) in enumerate(order):
            e(mfma(SS(kt, j), KB[kt % 3] + 4*s, QB(s, j), "0" if s == 0 else None))
            for x in att[n]:
                emit(x)
    b = SS(5, 1)
    e(f"v_mov_b32 v{M+4}, v{M}")
    e(f"v_max3_f32 v{M+1}, v{M+1}, v{b}, v{b+1}")
    e(f"v_max3_f32 v{M+1}, v{M+1}, v{b+2}, v{b+3}")
    e(f"v_permlane32_swap_b32 v{M}, v{M+4}")
    e(f"v_mov_b32 v{M+5}, v{M+1}")
    e(f"v_max_f32 v{M}, v{M}, v{M+4}")
    e(f"v_mov_b32 v{M+4}, v{M}")
    b = SS(5, 2)
    e(f"v_permlane32_swap_b32 v{M+1}, v{M+5}")
    e(f"v_max3_f32 v{M+2}, v{M+2}, v{b}, v{b+1}")
    e(f"v_max3_f32 v{M+2}, v{M+2}, v{b+2}, v{b+3}")
    e(f"v_permlane16_swap_b32 v{M}, v{M+4}")
    e(f"v_mov_b32 v{M+6}, v{M+2}")
    e(f"v_max_f32 v{M+1}, v{M+1}, v{M+5}")
    e(f"v_mov_b32 v{M+5}, v{M+1}")
    e(f"v_permlane32_swap_b32 v{M+2}, v{M+6}")
    e(f"v_max_f32 v{M}, v{M}, v{M+4}")
    e(f"v_permlane16_swap_b32 v{M+1}, v{M+5}")
    e(f"v_max_f32 v{M+2}, v{M+2}, v{M+6}")
    e(f"v_mov_b32 v{M+6}, v{M+2}")
    e(f"v_max_f32 v{M+1}, v{M+1}, v{M+5}")
    e("s_nop 0")
    e(f"v_permlane16_swap_b32 v{M+2}, v{M+6}")
    e(f"v_max_f32 v{M+2}, v{M+2}, v{M+6}")
    NM = T0 + 4
    for j in range(3):
        e(f"v_mul_f32 v{NM+2*j}, s30, v{M+j}")
    stamp(3)
    pregs = [BB[1] + 4*k for k in range(6)] + [AB + 4*k for k in range(3)]
    PB = lambda s, j: pregs[s*3 + j]
    LS = T0 + 16
    VB = [KB[0], KB[0]+12, AB+12]
    def v_rd(T):
        return [(f"ds_read_b64_tr_b16 {vr(VB[T%3]+4*s+2*h,2)}, v{AA+T} offset:{(32*s+16*h)*256}", ("V", T % 3))
                for s in range(3) for h in range(2)]
    def v_start():
        stamp(4)
        e("s_barrier                               ; B_11: V visible")
        stamp(5)
        for r in v_rd(0) + v_rd(1):
            emit(r)
    pend_m = []
    for s in range(3):
        for j in range(3):
            if cfg.vbar and s*3 + j == 9 - cfg.vbar:
                v_start()
            for kt in (2*s, 2*s+1):
                b = SS(kt, j)
                for h in range(2):
                    e(f"v_pk_fma_f32 {vr(b+2*h,2)}, {vr(b+2*h,2)}, s[30:31], {vr(NM+2*j,2)} op_sel_hi:[1,1,0] neg_lo:[0,0,1] neg_hi:[0,0,1]")
            if pend_m:
                e(pend_m.pop())
            for kt in (2*s, 2*s+1):
                b = SS(kt, j)
                for r in range(4):
                    e(f"v_exp_f32 v{b+r}, v{b+r}")
            for x in cvt4(PB(s, j), SS(2*s, j), SS(2*s+1, j)):
                e(x)
            pend_m.append(mfma(LS+4*j, ONES, PB(s, j), "0" if s == 0 else None))
    if not cfg.vbar:
        v_start()
        e(pend_m.pop())
    RC = T0 + 4
    def epi(s, pk=False):
        r = []
        for j in range(3):
            a0, a1 = acc(2*s, j), acc(2*s+1, j)
            for a in (a0, a1):
                if pk:
                    r += [f"v_pk_mul_f32 {vr(a+2*h,2)}, {vr(a+2*h,2)}, {vr(RC+2*j,2)} op_sel_hi:[1,0]" for h in range(2)]
                else:
                    r += [f"v_mul_f32 v{a+k}, v{a+k}, v{RC+2*j}" for k in range(4)]
            r += cvt4(a0, a0, a1)
            r.append(f"buffer_store_dwordx4 {vr(a0,4)}, v{OA}, s[32:35], s{40+j} offen{cfg.o_st}")
        if s < 3:
            r.append(f"v_add_u32 v{OA}, 8192, v{OA}")
        return r
    backlog = []
    for T in range(8):
        lg.need(("V", T % 3))
        rd = v_rd(T+2) if T + 2 < 8 else []
        if T == 1:
            backlog += [f"v_rcp_f32 v{RC+2*j}, v{LS+4*j}" for j in range(3)]
        n = 0
        for j in range(3):
            for s in range(3):
                e(mfma(acc(T, j), VB[T % 3] + 4*s, PB(s, j), "0" if s == 0 else None))
                if pend_m and n == 1:
                    e(pend_m.pop())
                k = 0
                if rd:
                    emit(rd.pop(0)); k += 1
                if T >= 2 and T % 2 == 0 and n == 1:
                    backlog += epi(T//2 - 1)
                while backlog and k < 2:
                    e(backlog.pop(0)); k += 1
                n += 1
    for x in backlog:
        e(x)
    stamp(6)
    for x in epi(3, True):
        e(x)
    stamp(7)
    PA = [64, 96]; PBb = [128, 160]
    QA, QB2 = 192, 204
    T1 = 206
    HOLD = 212
    e(f"v_lshrrev_b32 v{T1+2}, 2, v{LANE}")
    e(f"v_and_b32 v{T1+3}, 7, v{T1+2}")
    e("s_and_b32 s29, s7, 1")
    e("s_lshl_b32 s30, s29, 2")
    e(f"v_xor_b32 v{T1+3}, s30, v{T1+3}")
    e(f"v_lshlrev_b32 v{T1+2}, 8, v{T1+2}")
    e(f"v_lshl_add_u32 v{T1+2}, v{T1+3}, 5, v{T1+2}")
    e(f"v_and_b32 v{T1+3}, 3, v{LANE}")
    e(f"v_lshl_add_u32 v{T1+2}, v{T1+3}, 3, v{T1+2}")
    for T in range(4):
        e(f"v_xor_b32 v{QA+T}, {32*T}, v{T1+2}")
        e(f"v_add_u32 v{QA+4+T}, {WSL[3]}, v{QA+T}")
        e(f"v_add_u32 v{QA+8+T}, {WSL[4]}, v{QA+T}")
    e(f"v_lshlrev_b32 v{T1}, 4, v{LANE}")
    e("s_lshl_b32 s30, s19, 12")
    e(f"s_add_u32 s30, s30, {V1B}")
    e(f"v_add_u32 v{QB2}, s30, v{T1}")
    e(f"v_add_u32 v{QB2+1}, {V0B - V1B}, v{QB2}")
    nd = 2 if cfg.dup else 1
    fl = [[13, 14, 15, 16], [17, 18, 88, 89]]
    e("s_cmp_lg_u32 s95, 1")
    e("s_cselect_b32 s15, 1, 0")
    e("s_mov_b32 s16, s15")
    e("s_mov_b32 s13, 0")
    e("s_mov_b32 s14, 0")
    if cfg.dup:
        for r in fl[1]:
            e(f"s_mov_b32 s{r}, 0")
    e(f"s_mov_b32 s31, {cfg.spin}")
    e("s_cmp_eq_u32 s7, 0")
    e("s_cbranch_scc1 L_FLAG")
    e("s_waitcnt vmcnt(0)")
    stamp(8)
    e("s_barrier                               ; E")
    e("s_branch L_NOFLAG")
    lab("L_FLAG")
    e(f"s_mov_b64 exec, {3 if cfg.dup else 1}")
    e("s_waitcnt vmcnt(0)")
    stamp(8)
    e("s_barrier")
    e(f"buffer_store_dword v{FONE}, v{FOFF}, s[44:47], s100 offen sc1")
    e("s_mov_b64 exec, -1")
    lab("L_NOFLAG")
    e("s_cmp_eq_u32 s94, 15")
    e("s_cbranch_scc1 L_FIN")
    lab("L_POLL")
    for k in range(4):
        e(f"s_cmp_lg_u32 s{fl[0][k]}, 0")
        e(f"s_cbranch_scc1 L_PS{k}")
        for d in range(nd):
            if k < 2:
                e(f"s_load_dword s{fl[d][k]}, s[10:11], s12 offset:{k*1024 + d*8192} glc")
            else:
                e(f"s_load_dword s{fl[d][k]}, s[10:11], {FG + (k-2)*1024 + d*8192} glc")
        lab(f"L_PS{k}")
    e("s_sub_u32 s31, s31, 1")
    e("s_cbranch_scc1 L_GO")
    e("s_waitcnt lgkmcnt(0)")
    if cfg.dup:
        for k in range(4):
            e(f"s_or_b32 s{fl[0][k]}, s{fl[0][k]}, s{fl[1][k]}")
    e("s_and_b32 s5, s13, s14")
    e("s_and_b32 s30, s15, s16")
    e("s_and_b32 s5, s5, s30")
    e("s_cbranch_scc0 L_POLL")
    lab("L_GO")
    e("s_barrier                               ; D")
    e("s_waitcnt lgkmcnt(0)")
    e("s_mul_i32 s18, s99, 15")
    e("s_lshl2_add_u32 s18, s94, s18")
    e("s_lshl2_add_u32 s18, s18, s7")
    e(f"s_mul_i32 s18, s18, {P_W}")
    e(f"s_add_u32 s18, s18, {PART_OFF}")
    srd(32, 24, "s18", 16*P_W)
    for d in range(4):
        e(f"s_add_u32 s18, s97, {d}")
        e("s_and_b32 s18, s18, 3")
        e(f"s_mul_i32 s18, s18, {4*P_W}")
        e(f"s_add_u32 s{36+d}, s18, {max(d-1,0)*2048}")
        if d:
            e(f"s_sub_u32 s18, s97, {d}")
            e("s_and_b32 s18, s18, 3")
            e(f"s_mul_i32 s{88+d}, s18, {2*FG}")
    e("s_mul_i32 s18, s98, 3")
    e("s_add_u32 s18, s18, s95")
    e("s_lshl1_add_u32 s18, s18, s19")
    e("s_lshl2_add_u32 s18, s18, s97")
    e(f"s_mul_i32 s18, s18, {16*2560}")
    e("s_mul_i32 s30, s4, 1280")
    e("s_add_u32 s18, s18, s30")
    e("s_lshl1_add_u32 s30, s96, s29")
    e("s_lshl_b32 s30, s30, 7")
    e("s_add_u32 s18, s18, s30")
    e(f"s_sub_u32 s30, {768*2560}, s18")
    srd(40, 20, "s18", "s30")
    e(f"v_and_b32 v{T1+1}, 15, v{LANE}")
    e(f"v_mul_u32_u24 v{T1+1}, 2560, v{T1+1}")
    e(f"v_and_b32 v{T1+2}, 48, v{LANE}")
    e(f"v_add_u32 v{T1+1}, v{T1+1}, v{T1+2}")

    ND = cfg.ndef
    assert 2 <= ND <= 7
    pacc = lambda T, j: (T*4+j)*4
    def breg(u, j):
        if j == 0 and 16 - ND <= u < 14:
            return HOLD + 8*(u - (16 - ND))
        return PBb[u & 1] + j*8
    def pa_rd(u, T, buf):
        k = u % 7
        areg = QA + 4*(0 if k < 3 else 1 if k == 3 else 2)
        aoff = WSL[k] - (0 if k < 3 else WSL[3] if k == 3 else WSL[4])
        return [(f"ds_read_b64_tr_b16 {vr(PA[buf]+T*8+s*4+h*2,2)}, v{areg+T} offset:{aoff + (32*s+16*h)*256}", ("PA", buf, T))
                for s in range(2) for h in range(2)]
    def p_reads(u):
        b = u & 1
        bb = lambda j: [(f"ds_read_b128 {vr(breg(u, j)+s*4,4)}, v{QB2+s} offset:{(u%3)*8192 + j*1024}", ("PB", b, j)) for s in range(2)]
        if u < cfg.prea:
            return bb(0) + bb(1) + bb(2) + bb(3)
        if u >= 16 - ND:
            return pa_rd(u,0,b) + bb(1) + bb(2) + bb(3) + pa_rd(u,1,b) + pa_rd(u,2,b) + pa_rd(u,3,b) + bb(0)
        return pa_rd(u,0,b) + bb(0) + bb(1) + bb(2) + bb(3) + pa_rd(u,1,b) + pa_rd(u,2,b) + pa_rd(u,3,b)
    def pm(u, T, j, s, buf=None, first=False):
        return mfma(pacc(T, j), PA[u & 1 if buf is None else buf]+T*8+s*4, breg(u, j)+s*4, "0" if first else None)
    def send(d):
        r = []
        for Tp in range(2):
            a0 = pacc(2*Tp, d)
            r += cvt4(a0, a0, pacc(2*Tp+1, d))
            r.append(f"buffer_store_dwordx4 {vr(a0,4)}, v{T1}, s[32:35], s{36+d} offen offset:{Tp*1024}{cfg.p_st}")
        return r
    lg.pend = []
    for u in range(cfg.prea):
        for T in range(4):
            for r in pa_rd(u, T, u):
                emit(r)
    if cfg.prea:
        lg.drain()
    e("s_barrier                               ; C_0")
    stamp(9)
    for r in p_reads(0):
        emit(r)
    for u in range(15):
        b = u & 1
        rd = p_reads(u+1)
        if cfg.tail2 and u == 14:
            rd, late = rd[:14], rd[14:]
        js = (1, 2, 3) if u >= 16 - ND else (0, 1, 2, 3)
        seq = [(T, j, s) for T in range(4) for j in (js[::-1] if (cfg.snake == 2 and T & 1) else js) for s in range(2)]
        if cfg.snake:
            seq = [(T, j, s ^ ((n // 2) & 1)) for n, (T, j, s) in enumerate(seq)]
        pb = min(cfg.pbar, 5) if len(js) == 3 else cfg.pbar
        for n, (T, j, s) in enumerate(seq):
            if u == 0:
                lg.need(("PA", b, T), ("PB", b, j))
            elif n == 0:
                lg.need(("PA", b, 0), *[("PB", b, jj) for jj in js])
            e(pm(u, T, j, s, first=(u == 0 and n % 2 == 0)))
            if n == pb:
                lg.drain()
                e(f"s_barrier                               ; C_{u+1}")
            if n > pb and rd:
                emit(rd.pop(0))
                if len(js) == 3 and n < pb + 9 and not (cfg.tail2 and u == 14):
                    emit(rd.pop(0))
        assert not rd
    seq = [(15, T, j, s) for j in (1, 2, 3) for T in range(4) for s in range(2)] + \
          [(uu, T, 0, s) for uu in (14, 15) for T in range(4) for s in range(2)]
    if cfg.tail2:
        seq = [(15, T, j, s) for Tp in range(2) for j in (1, 2, 3) for T in (2*Tp, 2*Tp+1) for s in range(2)] + seq[24:]
    if cfg.snake:
        seq = [(uu, T, j, s ^ ((n // 2) & 1)) for n, (uu, T, j, s) in enumerate(seq)]
    older = list(range(16 - ND, 14))
    fill = []
    for n, (uu, T, j, s) in enumerate(seq):
        lg.need(("PA", 1, T), ("PB", 1, j))
        e(pm(uu, T, j, s))
        if cfg.tail2:
            k = 0
            if late:
                emit(late.pop(0)); k += 1
            if n >= 6 and n % 4 == 2 and n <= 26:
                g = (n - 6) // 4
                fill += send(1 + g % 3)[5*(g // 3):5*(g // 3) + 5]
            while fill and k < 2:
                emit(fill.pop(0)); k += 1
            continue
        if n in (9, 17, 25):
            fill += send(n // 8)
        if n >= 32 and older:
            fill += pa_rd(older[0], (n - 32)//2, 0)[2*(n & 1):2*(n & 1)+2]
        for _ in range(2):
            if fill:
                emit(fill.pop(0))
    assert not fill
    def old_stage(k):
        for T in range(4):
            lg.need(("PA", k & 1, T))
            for s in range(2):
                e(pm(older[k], T, 0, s, k & 1))
                if k + 1 < len(older):
                    for r in pa_rd(older[k+1], T, (k+1) & 1)[2*s:2*s+2]:
                        emit(r)
    nbefore = min(len(older), 2)
    for k in range(nbefore):
        old_stage(k)
    stamp(10)
    def p3_loads(d0):
        for dd in range(d0, 4):
            for d in range(nd):
                e(f"s_load_dword s{12+dd+3*d}, s[8:9], s{88+dd} offset:{d*8192} glc")
    if cfg.pp:
        assert ND == 2
        p3_loads(1)
    e("s_add_u32 s37, s36, 4096")
    e(f"s_mov_b64 exec, {3 if cfg.dup else 1}")
    e("s_waitcnt vmcnt(0)")
    stamp(11)
    e(f"buffer_store_dword v{FONE}, v{FOFF}, s[44:47], s100 offen offset:128 sc1")
    e("s_mov_b64 exec, -1")
    for k in range(nbefore, len(older)):
        old_stage(k)
    RB = 136
    if not cfg.pp:
        p3_loads(1)
    e("s_mov_b32 s30, 0xffff0000")
    e("s_waitcnt lgkmcnt(0)")
    for d in (1, 2, 3):
        e(f"s_mov_b32 s31, {cfg.spin}")
        lab(f"L_P3W{d}")
        if cfg.dup:
            e(f"s_or_b32 s5, s{12+d}, s{15+d}")
        else:
            e(f"s_cmp_lg_u32 s{12+d}, 0")
        e(f"s_cbranch_scc1 L_P3G{d}")
        p3_loads(d)
        e("s_sub_u32 s31, s31, 1")
        e(f"s_waitcnt lgkmcnt({4-d if cfg.pp == 2 else 0})")
        e(f"s_cbranch_scc0 L_P3W{d}")
        lab(f"L_P3G{d}")
        for f in (2*d - 2, 2*d - 1):
            e(f"buffer_load_dwordx4 {vr(RB+4*f,4)}, v{T1}, s[32:35], s{36 + f//4} offen offset:{(f%4)*1024}{cfg.p_ld}")
    stamp(12)
    TT = 168
    def finish(Tp):
        a0 = pacc(2*Tp, 0)
        for x in cvt4(a0, a0, pacc(2*Tp+1, 0)):
            e(x)
        e("s_nop 0")
        e(f"v_permlane32_swap_b32 v{a0}, v{a0+2}")
        e(f"v_permlane32_swap_b32 v{a0+1}, v{a0+3}")
        e("s_nop 0")
        e(f"v_permlane16_swap_b32 v{a0}, v{a0+2}")
        e(f"v_permlane16_swap_b32 v{a0+1}, v{a0+3}")
        e(f"buffer_store_dwordx4 {vr(a0,4)}, v{T1+1}, s[40:43], 0 offen offset:{Tp*64}{cfg.out_st}")
    for f in range(6):
        e(f"s_waitcnt vmcnt({5-f if f < 5 else 1})")
        Tp = f & 1
        for k in range(4):
            x = RB + 4*f + k
            e(f"v_lshlrev_b32 v{TT+2*k}, 16, v{x}")
            e(f"v_and_b32 v{TT+2*k+1}, s30, v{x}")
        for k in range(4):
            a = pacc(2*Tp + k//2, 0) + 2*(k & 1)
            e(f"v_pk_add_f32 {vr(a,2)}, {vr(a,2)}, {vr(TT+2*k,2)}")
        if f == 5: stamp(13)
        if f >= 4:
            finish(Tp)
    stamp(14)
    lab("L_FIN")
    if cfg.stamps:
        e("s_waitcnt vmcnt(0)")
        stamp(15)
        stamp_flush()
    lab("L_END")
    e("s_endpgm")

def kd(name):
    return f""".amdhsa_kernel {name}
  .amdhsa_next_free_vgpr 256
  .amdhsa_next_free_sgpr 102
  .amdhsa_accum_offset 256
  .amdhsa_group_segment_fixed_size 0
  .amdhsa_kernarg_size 104
  .amdhsa_user_sgpr_count 2
  .amdhsa_user_sgpr_kernarg_segment_ptr 1
  .amdhsa_system_sgpr_workgroup_id_x 1
.end_amdhsa_kernel
"""

prologue(); helper(); compute()
probs = check_hazards(A.L)
for p in probs:
    print("HAZARD:", p, file=sys.stderr)
K = NAME + "_kernel"
if cfg.diag:
    from diag import gen_diag
    hdr = (f"; diagnostic build\n; @launch kernel={K} grid=(256,1,1) block=(512,1,1) lds=163840\n"
           "; @launch kernel=d_kernel grid=(1,1,1) block=(256,1,1) lds=256\n")
else:
    hdr = open(os.path.join(os.path.dirname(os.path.abspath(__file__)), "header.txt")).read()
out = hdr + '.amdgcn_target "amdgcn-amd-amdhsa--gfx950"\n.text\n'
out += f".globl {K}\n.p2align 8\n.type {K},@function\n" + A.text()
if cfg.diag:
    out += ".globl d_kernel\n.p2align 8\n.type d_kernel,@function\n" + "\n".join(gen_diag(cfg.diag.strip(), STAMP_OFF)) + "\n"
out += '.section .rodata,"a"\n.p2align 6\n' + kd(K)
if cfg.diag:
    out += ".p2align 6\n" + kd("d_kernel")
open(sys.argv[1], "w").write(out)
sys.exit(1 if probs else 0)
```

```python
import sys, os, math, struct
sys.path.insert(0, os.path.dirname(os.path.abspath(__file__)))
from asmlib import *

NAME = "concat_heads__gqa_block_cached__mha_block_cached__near_ridge"

class Cfg:
    nt_x = ""; nt_wq = ""; nt_k = " nt"; nt_v = " nt"; nt_wo = ""
    o_st = " sc1"; o_ld = " sc1"; out_st = " sc1"; p_st = " sc1"; p_ld = " sc1"
    rot = 10246
    scheds = " S0 S1/S2/S3/S4/S5/S6/S7/S8/S9 K012/K345/V0/V1|S0 S1/S2/K012 S3/K34 Va S4/S5/S6/S7/S8/S9/K5/V1/W0"
    smap = " 0011"
    wp = " 2,2/2,2"
    wpoll = 7
    wfirst = 2
    wtail = 100
    rtab = " 0,2,5,8,10,13"
    rnt = 0
    vwm = 2
    prea = 2
    vbar = 0
    snake = 2
    nrot = 16
    lead0 = 9
    lpre = 1
    first = 1
    touch = 0
    dry = 0
    pp = 0
    skipown = 0
    ntq = 99
    ntw = 99
    weave = 0
    wcnt = ""
    wlast = 14
    tail2 = 1
    kw = 0
    ndef = 2
    pbar = 5
    kbar = 33
    dup = 0
    cpf = 2
    prio = 1
    stamps = 0
    hst = 0
    spin = 1000000
    diag = ""
    qn = 0
cfg = Cfg()
for a in sys.argv[2:]:
    k, v = a.split("=")
    old = getattr(cfg, k)
    setattr(cfg, k, int(v) if isinstance(old, int) else ((" " + v.replace("+", " ")) if v else ""))

A = Asm()
e, lab, cmt = A.e, A.lab, A.cmt

STAMP_OFF = 64 << 20
FG = 16384 if cfg.dup else 8192
FLAG_SZ = 32 * FG
O_OFF = 1 << 20
O_HEAD = 196608
PART_OFF = 16 << 20
P_W = 6144
SLOT = 40960
XB = 24576
PHYS = [0, 2*SLOT, SLOT]
V1B, V0B, K0B = 49152, 90112, 114688
WSL = [0, 16384, 32768, 73728, 114688, 131072, 147456]
kpos = lambda kt: K0B + ((kt + 1) % 6) * 8192

def stamp(i):
    if cfg.stamps:
        e(f"{'s_memtime' if cfg.stamps == 2 else 's_memrealtime'} s[{52+2*i}:{53+2*i}]")
def stamp_flush():
    e(f"s_add_u32 s84, s24, {STAMP_OFF}")
    e("s_addc_u32 s85, s25, 0")
    e("s_mov_b32 s86, 0x100000")
    e("s_mov_b32 s87, 0x20000")
    e("s_lshl_b32 s92, s2, 3")
    e("s_add_u32 s92, s92, s7")
    e("s_lshl_b32 s92, s92, 6")
    e("s_waitcnt lgkmcnt(0)")
    e("v_mbcnt_lo_u32_b32 v251, -1, 0")
    e("v_lshlrev_b32 v251, 2, v251")
    for i in range(16):
        e(f"v_writelane_b32 v250, s{52+2*i}, {i}")
    e("s_mov_b64 exec, 0xffff")
    e("buffer_store_dword v250, v251, s[84:87], s92 offen sc1")

def srd(d, lo, off, size):
    e(f"s_add_u32 s{d}, s{lo}, {off}")
    e(f"s_addc_u32 s{d+1}, s{lo+1}, 0")
    e(f"s_mov_b32 s{d+2}, {size}")
    e(f"s_mov_b32 s{d+3}, 0x20000")

def cvt4(d, a0, a1):
    return [f"v_cvt_pk_bf16_f32 v{d}, v{a0}, v{a0+1}", f"v_cvt_pk_bf16_f32 v{d+1}, v{a0+2}, v{a0+3}",
            f"v_cvt_pk_bf16_f32 v{d+2}, v{a1}, v{a1+1}", f"v_cvt_pk_bf16_f32 v{d+3}, v{a1+2}, v{a1+3}"]

def prologue():
    lab(NAME + "_kernel")
    e("s_cmp_ge_u32 s2, 256")
    e("s_cbranch_scc1 L_END")
    e("s_and_b32 s3, s2, 7")
    e("s_lshr_b32 s4, s3, 2")
    e("s_mul_i32 s5, s4, 40")
    e("s_load_dwordx8 s[8:15], s[0:1], s5")
    e("s_load_dwordx2 s[16:17], s[0:1], s5 offset:32")
    e("s_load_dwordx4 s[20:23], s[0:1], 80")
    e("s_load_dwordx2 s[24:25], s[0:1], 96")
    if cfg.stamps:
        for i in range(1, 16):
            e(f"s_mov_b32 s{52+2*i}, 0")
    stamp(0)
    if cfg.kw:
        cmt("early vector read of the kernarg segment (value unused): starts the vector memory path before the pointers arrive")
        e("v_mov_b32 v233, 0")
        if cfg.kw == 1:
            e("s_mov_b64 exec, 1")
            e("global_load_dword v233, v233, s[0:1]")
        else:
            e(f"v_cmp_eq_u32 vcc, {0 if cfg.kw == 2 else 256}, v0")
            e("s_and_saveexec_b64 s[18:19], vcc")
            e("s_cbranch_execz L_NOKW")
            e("global_load_dword v233, v233, s[0:1]")
            lab("L_NOKW")
        e("s_mov_b64 exec, -1")
    if cfg.cpf:
        cmt("instruction prefetch into L2: workgroup r reads code lines 8r..8r+7 (values unused)")
        if cfg.cpf == 1:
            e("v_xor_b32 v1, 256, v0")
        e(f"v_cmp_gt_u32 vcc, 8, v{1 if cfg.cpf == 1 else 0}")
        e("s_and_saveexec_b64 s[18:19], vcc")
        e("s_cbranch_execz L_NOCPF")
        e("s_getpc_b64 s[90:91]")
        lab("L_PC")
        e("s_and_b32 s18, s2, 0xf8")
        e(f"v_add_u32 v2, s18, v{1 if cfg.cpf == 1 else 0}")
        e("v_lshlrev_b32 v2, 7, v2")
        e("v_min_u32 v2, L_END-L_PC, v2")
        e("v_add_co_u32 v2, vcc, s90, v2")
        e("v_mov_b32 v3, s91")
        e("s_nop 0")
        e("v_addc_co_u32 v3, vcc, 0, v3, vcc")
        e("global_load_dword v235, v[2:3], off")
        lab("L_NOCPF")
        e("s_mov_b64 exec, -1")
    e("v_lshrrev_b32 v1, 6, v0")
    e("v_xor_b32 v1, 4, v1")
    e("s_lshr_b32 s6, s2, 3")
    e("v_readfirstlane_b32 s7, v1")
    e("v_and_b32 v0, 63, v0")
    e("s_bfe_u32 s26, s6, 0x10002")
    e("s_lshr_b32 s27, s6, 3")
    e("s_and_b32 s6, s6, 3")
    e("s_lshl_b32 s27, s27, 2")
    e("s_lshl_b32 s26, s26, 4")
    e("s_or_b32 s6, s6, s27")
    e("s_or_b32 s6, s6, s26")
    if cfg.stamps:
        e("s_lshl_b32 s2, s6, 3")
        e("s_or_b32 s2, s2, s3")
    e("s_and_b32 s97, s3, 3")
    e("s_and_b32 s27, s6, 7")
    e("s_lshl3_add_u32 s26, s97, s27")
    e("s_lshr_b32 s28, s6, 3")
    e("s_cmp_lt_u32 s7, 4")
    e("s_cbranch_scc1 L_COMPUTE")

def ids():
    cmt("s94 = m (15: no output tile), s95 = tt, s96 = nt, s97 = head group, s98 = set, s99 = (branch*2+set)*4")
    e("s_and_b32 s94, s6, 15")
    e("s_mul_i32 s95, s94, 52")
    e("s_lshr_b32 s95, s95, 8")
    e("s_mul_i32 s96, s95, 5")
    e("s_sub_u32 s96, s94, s96")
    e("s_lshr_b32 s98, s6, 4")
    e("s_lshl1_add_u32 s99, s4, s98")
    e("s_lshl_b32 s99, s99, 2")

def helper():
    cmt("================ loader waves: x / wq ring, K, V, then wo / O rings (all LDS-DMA)")
    vm = Counter(A, "vmcnt", 63)
    e("s_sub_u32 s19, s7, 4")
    if cfg.rot == 3:
        e("s_add_u32 s30, s27, s28"); e("s_and_b32 s30, s30, 3"); e("s_mul_i32 s30, s30, 5"); e("s_lshr_b32 s30, s30, 1")
    elif cfg.rot == 2:
        e("s_lshl1_add_u32 s30, s28, s27"); e("s_and_b32 s30, s30, 7"); e("s_mul_i32 s30, s30, 5"); e("s_lshr_b32 s30, s30, 2")
    elif cfg.rot == 1:
        e("s_add_u32 s30, s27, s28"); e("s_and_b32 s30, s30, 1"); e("s_mul_i32 s30, s30, 5")
    elif cfg.rot >= 10:
        tab = [int(c) for c in str(cfg.rot)[1:]]
        e("s_add_u32 s30, s27, s28"); e("s_and_b32 s30, s30, 3"); e("s_lshl_b32 s30, s30, 2")
        e(f"s_lshr_b32 s30, {sum(b << (4*i) for i, b in enumerate(tab)):#x}, s30"); e("s_and_b32 s30, s30, 15")
    XV, WV = 10, 14
    e("v_lshrrev_b32 v1, 4, v0")
    e("v_and_b32 v2, 15, v0")
    e("v_lshlrev_b32 v3, 1, v1")
    e("v_xor_b32 v4, v2, v3")
    e("v_lshlrev_b32 v4, 4, v4")
    e("s_lshl_b32 s29, s19, 4")
    e("v_add_u32 v5, s29, v1")
    e(f"v_lshl_add_u32 v{WV}, v5, 13, v4")
    e(f"v_add_u32 v{WV+1}, {32768-1024}, v{WV}")
    e(f"v_xor_b32 v5, 128, v{WV}")
    e(f"v_add_u32 v{WV+2}, {2*(32768-1024)}, v5")
    e(f"v_add_u32 v{WV+3}, {3*(32768-1024)}, v5")
    e("v_lshrrev_b32 v5, 3, v0")
    e("v_and_b32 v6, 7, v0")
    e("v_and_b32 v7, 6, v5")
    e("v_xor_b32 v6, v6, v7")
    e("s_mul_i32 s29, s19, 48")
    e("v_add_u32 v5, s29, v5")
    e("v_mul_u32_u24 v5, 1280, v5")
    e(f"v_lshl_add_u32 v{XV}, v6, 4, v5")
    for t in range(1, 4):
        e(f"v_add_u32 v{XV+t}, {t*(10240-1024)}, v{XV}")
    e(f"s_mul_i32 s88, s19, {48*128}")
    e("s_lshl_b32 s89, s19, 12")
    e(f"s_mul_i32 s29, s28, {192*1280}")
    e("s_lshl_b32 s31, s26, 8")
    e(f"s_sub_u32 s38, {640*8192}, s31")
    e("s_mov_b32 s39, 0x20000")
    e(f"s_mov_b32 s34, {192*1280}")
    e("s_mov_b32 s35, 0x20000")
    e("s_mov_b32 s100, 0")
    e("s_waitcnt lgkmcnt(0)")
    e("s_add_u32 s36, s14, s31")
    e("s_addc_u32 s37, s15, 0")
    e("s_add_u32 s32, s8, s29")
    e("s_addc_u32 s33, s9, 0")

    def stage(i):
        slot = PHYS[i % 3]
        e(f"s_add_u32 m0, s89, {slot + XB}")
        if i < cfg.first:
            e(f"s_mov_b32 s90, {(9 - i) << 19}")
        else:
            e("s_lshl_b32 s90, s30, 19")
        for t in range(4):
            vm.issue(f"buffer_load_dwordx4 v{WV+t}, s[36:39], s90 offen offset:{t*1024}{cfg.nt_wq if 1 <= i <= cfg.ntq else ''} lds", ("st", i))
        e(f"s_add_u32 m0, s88, {slot}")
        if i < cfg.first:
            e(f"s_mov_b32 s91, {(9 - i) << 7}")
        else:
            e("s_lshl_b32 s91, s30, 7")
        for t in range(4):
            vm.issue(f"buffer_load_dwordx4 v{XV+t}, s[32:35], s91 offen offset:{t*1024}{cfg.nt_x} lds", ("st", i))
        e("s_add_u32 m0, m0, 4096")
        e("s_add_u32 s91, s91, 40960")
        for t in range(2):
            vm.issue(f"buffer_load_dwordx4 v{XV+t}, s[32:35], s91 offen offset:{t*1024}{cfg.nt_x} lds", ("st", i))
        if cfg.first <= i < 9:
            e("s_add_u32 s30, s30, 1")
            e(f"s_cmp_eq_u32 s30, {10 - cfg.first}")
            e("s_cselect_b32 s30, 0, s30")
    def kv_setup():
        e("s_lshl_b32 s29, s28, 6")
        e("s_add_u32 s29, s29, s26")
        e("s_mul_i32 s29, s29, 24576")
        srd(44, 12, "s29", 33*24576)
        srd(40, 10, "s29", 33*24576)
        e("v_lshlrev_b32 v18, 4, v0")
        e("s_and_b32 s31, s19, 1")
        e("s_lshl_b32 s31, s31, 7")
        e("v_xor_b32 v19, s31, v4")
        e("v_lshl_add_u32 v19, v1, 8, v19")
        e("s_lshl_b32 s93, s19, 10")
        e("v_add_u32 v19, s93, v19")
        e("s_lshl_b32 s31, s19, 2")
        e("v_add_u32 v5, s31, v1")
        e("v_xor_b32 v6, v2, v5")
        e("v_lshlrev_b32 v6, 4, v6")
        e("v_lshl_add_u32 v20, v5, 8, v6")
    def kload(kts):
        for kt in kts:
            for b in range(2):
                e(f"s_add_u32 m0, s93, {kpos(kt) + b*4096}")
                e(f"s_mov_b32 s90, {b*32*24576 + kt*4096}")
                vm.issue(f"buffer_load_dwordx4 v20, s[40:43], s90 offen{cfg.nt_k} lds", "k")
    def vload(b):
        for n in range(6):
            e(f"s_add_u32 m0, s93, {(V1B if b else V0B) + n*4096}")
            e(f"s_mov_b32 s90, {b*32*24576 + n*4096}")
            vm.issue(f"buffer_load_dwordx4 v19, s[44:47], s90 offen{cfg.nt_v} lds", "v")
    VR = 80
    def vreg():
        for n in range(6):
            e(f"s_mov_b32 s90, {n*4096}")
            vm.issue(f"buffer_load_dwordx4 {vr(VR+4*n,4)}, v19, s[44:47], s90 offen{cfg.nt_v}", "vr")
    def late_vw(k):
        cmt("V tile that was staged in registers (s100 = 1) goes to LDS now")
        e("s_cmp_eq_u32 s100, 0")
        e(f"s_cbranch_scc1 L_NOVW{k}")
        e(f"s_add_u32 s90, s93, {V0B}")
        e("v_add_u32 v22, s90, v18")
        for n in range(6):
            e(f"ds_write_b128 v22, {vr(VR+4*n,4)} offset:{n*4096}")
        lab(f"L_NOVW{k}")

    def run_sched(sched):
        iv = [x.split() for x in sched.strip().split("/")]
        assert len(iv) == 12
        setup_done = False
        for i, toks in enumerate(iv):
            for tk in toks:
                if tk[0] != "S" and not setup_done:
                    kv_setup(); setup_done = True
                if tk[0] == "S":
                    n = int(tk[1:])
                    assert n <= max(2, i + 1)
                    stage(n)
                elif tk[0] == "K":
                    assert i <= 10 and ("5" not in tk or i >= 9)
                    kload([int(c) for c in tk[1:]])
                elif tk == "V0":
                    assert i >= 9; vload(0)
                elif tk == "V1":
                    assert i >= 10; vload(1)
                elif tk == "Va":
                    vreg()
                elif tk == "W0":
                    assert i == 11
                    vm.need("vr")
                    e("s_mov_b32 s100, 1")
                else:
                    assert False, tk
            if i == 0 and not setup_done:
                kv_setup(); setup_done = True
            if i < 10:
                vm.need(("st", i))
            if i == 10:
                vm.need("k")
            if i < 11:
                e(f"s_barrier                               ; B_{i}")
            if cfg.hst >= 2: continue
            if i < (10 if cfg.hst else 8): stamp(1 + i)
            if i == 10: stamp(11)

    scs = cfg.scheds.strip().split("|"); smap = cfg.smap.strip()
    smap = "".join(c * 8 for c in smap) if len(smap) == 4 else smap * (32 // len(smap))
    for k, sc in enumerate(scs):
        if k + 1 < len(scs):
            mask = sum(1 << r for r in range(32) if int(smap[r]) == k)
            e(f"s_bitcmp1_b32 {mask:#x}, s6")
            e(f"s_cbranch_scc0 L_H{k+1}")
        vm.pend = []
        run_sched(sc)
        if k + 1 < len(scs):
            e("s_branch L_HX")
            lab(f"L_H{k+1}")
    lab("L_HX")

    vm.pend = []
    ids()
    srd(48, 22, 0, 256)
    e("s_lshl_b32 s101, s99, 2")
    e("v_mov_b32 v9, 0")
    e("s_cmp_eq_u32 s94, 15")
    e("s_cbranch_scc1 L_H_NOP2")
    e("buffer_load_dwordx4 v[32:35], v9, s[48:51], s101 offen sc1")
    WO, OV = 24, 28
    e("s_mul_i32 s29, s98, 3")
    e("s_add_u32 s29, s29, s95")
    e("s_lshl_b32 s31, s29, 2")
    e(f"s_lshr_b32 s30, {sum(int(b) << (4*i) for i, b in enumerate(cfg.rtab.split(','))):#x}, s31")
    if cfg.nrot < 16:
        e("s_and_b32 s30, s30, 15")
    def stg(u):
        if cfg.nrot == 16:
            e(f"s_add_u32 s90, s30, {u}")
        elif u >= cfg.nrot:
            e(f"s_mov_b32 s90, {u}")
        else:
            e(f"s_add_u32 s90, s30, {u}")
            e(f"s_sub_u32 s91, s90, {cfg.nrot}")
            e("s_cselect_b32 s90, s90, s91")
    if cfg.rnt:
        e(f"s_mul_i32 s31, s96, {cfg.rnt}")
        e("s_add_u32 s30, s30, s31")
    e(f"s_mul_i32 s18, s97, {1024*1280}")
    e("s_lshl_b32 s31, s96, 8")
    e("s_add_u32 s18, s18, s31")
    e(f"s_sub_u32 s31, {4096*1280}, s18")
    srd(32, 16, "s18", "s31")
    e(f"s_mul_i32 s18, s3, {8*O_HEAD}")
    e("s_lshl_b32 s31, s29, 15")
    e("s_add_u32 s18, s18, s31")
    e(f"s_add_u32 s18, s18, {O_OFF - 4096}")
    srd(36, 24, "s18", 8*O_HEAD)
    e("s_lshl_b32 s31, s19, 4")
    e("v_add_u32 v5, s31, v1")
    e("v_mul_u32_u24 v5, 1280, v5")
    e(f"v_add_u32 v{WO}, v5, v4")
    e("v_xor_b32 v6, 128, v4")
    e("v_add_u32 v6, v5, v6")
    e(f"v_add_u32 v{WO+1}, {4*1280-1024}, v6")
    e(f"v_add_u32 v{WO+2}, {2*(4*1280-1024)}, v{WO}")
    e(f"v_add_u32 v{WO+3}, {3*(4*1280-1024)}, v6")
    def wdma(u, ts=range(4)):
        stg(u)
        if cfg.nrot == 16:
            e("s_and_b32 s90, s90, 15")
        e(f"s_add_u32 m0, s89, {WSL[u % 7]}")
        e("s_mul_i32 s90, s90, 81920")
        for t in ts:
            vm.issue(f"buffer_load_dwordx4 v{WO+t}, s[32:35], s90 offen offset:{t*1024}{cfg.nt_wo if u < cfg.ntw else ''} lds", ("w", u))
    def o_setup():
        for j in range(4):
            e(f"s_add_u32 s31, s97, {j}")
            e("s_and_b32 s31, s31, 3")
            e(f"s_add_u32 s31, s31, {4-j}")
            e("s_lshl_b32 s31, s31, 10")
            e("s_add_u32 s31, s31, s89")
            e(f"v_add_u32 v{OV+j}, s31, v18")
        e("s_and_b32 s88, s19, 1")
        e("s_lshl_b32 s88, s88, 12")
        e("s_cmp_ge_u32 s19, 2")
        e(f"s_mov_b32 s31, {V1B}")
        e(f"s_cselect_b32 s31, {V0B}, s31")
        e("s_add_u32 s88, s88, s31")
    def cleared(k):
        cmt("the flag lines of all four head groups must have been cleared in this launch")
        e(f"s_mov_b32 s31, {cfg.spin}")
        lab(f"L_CNT{k}")
        e("v_and_b32 v32, v32, v33")
        e("v_and_b32 v34, v34, v35")
        e("v_and_b32 v32, v32, v34")
        e("s_sub_u32 s31, s31, 1")
        e("v_readfirstlane_b32 s29, v32")
        e(f"s_cbranch_scc1 L_CNTOK{k}")
        e("s_cmp_eq_u32 s29, 1")
        e(f"s_cbranch_scc1 L_CNTOK{k}")
        e("buffer_load_dwordx4 v[32:35], v9, s[48:51], s101 offen sc1")
        e("s_waitcnt vmcnt(0)")
        e(f"s_branch L_CNT{k}")
        lab(f"L_CNTOK{k}")
    plans = [tuple(int(x) for x in p.split(",")) for p in cfg.wp.strip().split("/")]
    if plans[0] == plans[1]:
        plans = plans[:1]
    else:
        e("s_cmp_lg_u32 s98, 0")
        e("s_cbranch_scc1 L_WP1")
    for k, (a, b) in enumerate(plans):
        assert a <= 4 and a <= b <= cfg.wpoll
        vm.pend = []
        if k:
            lab("L_WP1")
        for u in range(a):
            wdma(u)
        if cfg.vwm:
            o_setup()
        if cfg.vwm == 2:
            e(f"s_waitcnt vmcnt({4*a})")
        late_vw(k)
        e(f"s_waitcnt vmcnt({4*a}) lgkmcnt(0)")
        cleared(k)
        e("s_barrier")
        for u in range(a, b):
            wdma(u)
        if not cfg.vwm:
            o_setup()
        e("s_barrier")
        for u in range(b, cfg.wpoll):
            wdma(u)
        if k + 1 < len(plans):
            e("s_branch L_WP2")
    lab("L_WP2")
    if not cfg.hst: stamp(9)
    def oaddr(u):
        stg(u)
        e("s_bfe_u32 s91, s90, 0x30001")
        e("s_and_b32 s90, s90, 1")
        e(f"s_mul_i32 s91, s91, {O_HEAD}")
        e("s_lshl_b32 s90, s90, 14")
        e(f"s_add_u32 m0, s88, {(u % 3)*8192}")
        e("s_add_u32 s90, s90, s91")
    def oissue(u):
        for j in range(4):
            vm.issue(f"buffer_load_dwordx4 v{OV+j}, s[36:39], s90 offen offset:{j*1024}{cfg.o_ld} lds", ("o", u))
    oaddr(0)
    vm.need(*[("w", u) for u in range(cfg.prea)])
    e("s_barrier")
    if not cfg.hst: stamp(10)
    oissue(0)
    oaddr(1)
    wq = [(u, t) for u in range(cfg.wpoll, 16) for t in range(4)]
    wts = [0 if (i < cfg.wfirst or i > cfg.wlast) else (100 if i <= 16 - cfg.ndef else cfg.wtail) for i in range(16)]
    R, done = len(wq), 0
    for i in range(16):
        if i + 1 < 16 and not cfg.weave:
            oissue(i + 1)
        tgt = -(-(sum(wts[:i+1]) * R) // sum(wts))
        if cfg.wcnt:
            tgt = sum(int(c) for c in cfg.wcnt.strip()[:i+1])
        tgt = max(tgt, sum(1 for (u, t) in wq if u <= i + 1))
        tgt = min(tgt, sum(1 for (u, t) in wq if u <= max(6 + (cfg.prea if i >= 1 else 0), i + 5)))
        grp = wq[done:tgt]; done = max(done, tgt)
        if cfg.weave and i + 1 < 16:
            assert cfg.nrot == 16
            us = sorted(set(g[0] for g in grp))
            sal = []
            for k, u in enumerate(us):
                sal += [f"s_add_u32 s{44+k}, s30, {u}", f"s_and_b32 s{44+k}, s{44+k}, 15", f"s_mul_i32 s{44+k}, s{44+k}, 81920"]
            if i + 2 < 16:
                sal += [f"s_add_u32 s42, s30, {i+2}", "s_bfe_u32 s43, s42, 0x30001", "s_and_b32 s42, s42, 1",
                        f"s_mul_i32 s43, s43, {O_HEAD}", "s_lshl_b32 s42, s42, 14"]
            per = -(-len(sal) // 3)
            for j in range(4):
                vm.issue(f"buffer_load_dwordx4 v{OV+j}, s[36:39], s90 offen offset:{j*1024}{cfg.o_ld} lds", ("o", i + 1))
                for x in sal[per*j:per*(j+1)] if j < 3 else []:
                    e(x)
            nxt = ["s_add_u32 s90, s42, s43"] if i + 2 < 16 else []
            for k, u in enumerate(us):
                e(f"s_add_u32 m0, s89, {WSL[u % 7]}")
                e(nxt.pop() if nxt else "s_nop 0")
                for t in [t for (uu, t) in grp if uu == u]:
                    vm.issue(f"buffer_load_dwordx4 v{WO+t}, s[32:35], s{44+k} offen offset:{t*1024}{cfg.nt_wo} lds", ("w", u))
            for x in nxt:
                e(x)
            if i + 2 < 16:
                e(f"s_add_u32 m0, s88, {((i+2) % 3)*8192}")
            grp = []
        for u in sorted(set(g[0] for g in grp)):
            wdma(u, [t for (uu, t) in grp if uu == u])
        if i + 2 < 16 and not cfg.weave:
            oaddr(i + 2)
        vm.need(("o", i), ("w", i))
        e(f"s_barrier                               ; C_{i}")
        if cfg.hst == 2:
            if i >= 2: stamp(i - 1)
            continue
        if cfg.hst == 4:
            if i in (0, 1, 2, 3, 13, 14, 15): stamp(1 + (0, 1, 2, 3, 13, 14, 15).index(i))
            continue
        if i == 0: stamp(12)
        if i == 4: stamp(13)
        if i == 15: stamp(14)
    assert done == R
    e("s_branch L_FIN")
    lab("L_H_NOP2")
    if cfg.nrot < 16:
        cmt("no tile: pull the wo rows of the last stages into L2 for the other workgroups (one dword per line, values unused)")
        total = (16 - cfg.nrot) * 81920
        npc = -(-total // 32768)
        e(f"s_mul_i32 s18, s97, {1024*1280}")
        e(f"s_add_u32 s18, s18, {cfg.nrot*81920}")
        srd(32, 16, "s18", total)
        e("s_lshl_b32 s31, s19, 13")
        e("v_lshl_add_u32 v24, v0, 7, s31")
        e(f"s_mul_i32 s90, s98, {cfg.lead0*32768}")
        e(f"s_mul_i32 s91, s98, {(npc - cfg.lead0)*32768}")
        e(f"s_add_u32 s91, s91, {cfg.lead0*32768}")
        for k in range(cfg.lpre):
            e("buffer_load_dword v25, v24, s[32:35], s90 offen")
            e("s_add_u32 s90, s90, 32768")
        e(f"s_waitcnt vmcnt({cfg.lpre})")
        e("s_mov_b32 s88, s90")
        late_vw(9)
        e("s_waitcnt lgkmcnt(0)")
        e("s_barrier                               ; B_11")
        e("s_barrier                               ; E")
        lab("L_LEAD")
        e("s_cmp_ge_u32 s88, s91")
        e("s_cbranch_scc1 L_FIN")
        e("buffer_load_dword v25, v24, s[32:35], s88 offen")
        e("s_add_u32 s88, s88, 32768")
        e("s_branch L_LEAD")
        return
    late_vw(9)
    e("s_waitcnt vmcnt(0) lgkmcnt(0)")
    e("s_barrier                               ; B_11")
    e("s_barrier                               ; E")
    e("s_branch L_FIN")

def compute():
    lab("L_COMPUTE")
    lg = Counter(A, "lgkmcnt", 15)
    AB = 96
    BB = [128, 152]
    AA = 176
    BA = 184
    KA, FONE, FOFF, LANE, OA, VA0 = 186, 252, 253, 254, 190, 191
    KB = [192, 208, 96]
    T0 = 224
    acc = lambda T, j: (T*3+j)*4
    if cfg.prio:
        e(f"s_setprio {cfg.prio}")
    e(f"v_mov_b32 v{LANE}, v0")
    e(f"v_lshrrev_b32 v{T0}, 4, v0")
    e(f"v_and_b32 v{T0+1}, 15, v0")
    e(f"v_bfe_u32 v{T0+2}, v0, 2, 2")
    e(f"v_and_b32 v{T0+3}, 3, v0")
    ids()
    e("s_add_u32 s29, s99, s97")
    e("s_lshl_b32 s101, s29, 2")
    e(f"s_mul_i32 s43, s29, {2*FG}")
    e("s_lshr_b32 s29, s94, 3")
    e(f"s_mul_i32 s29, s29, {FG}")
    e("s_lshl_b32 s39, s27, 10")
    e("s_add_u32 s39, s39, s29")
    e("s_add_u32 s100, s43, s39")
    e(f"v_mov_b32 v{T0+8}, 0")
    e(f"v_mov_b32 v{FONE}, 1")
    e(f"v_lshlrev_b32 v{T0+10}, 7, v0")
    e("s_lshl4_add_u32 s93, s7, s94")
    e("s_waitcnt lgkmcnt(0)")
    if cfg.touch:
        cmt("address-translation warm-up: one scalar load per region used later (values unused)")
        def touch(lo, *terms):
            first = True
            for reg, mul in terms:
                if reg is None:
                    e(f"s_add_u32 s18, s18, {mul}" if not first else f"s_mov_b32 s18, {mul}")
                elif first:
                    e(f"s_mul_i32 s18, s{reg}, {mul}")
                else:
                    e(f"s_mul_i32 s19, s{reg}, {mul}")
                    e("s_add_u32 s18, s18, s19")
                first = False
            e(f"s_load_dword s92, s[{lo}:{lo+1}], s18")
        e("s_and_b32 s5, s7, 1")
        touch(14, (7, 1536*1024), (26, 256))
        e("s_cmp_ge_u32 s7, 2")
        e("s_cbranch_scc1 L_TOUCH2")
        touch(10, (28, 64*24576), (26, 24576), (5, 32*24576))
        touch(16, (97, 1024*1280), (5, 1024*1280 - 64))
        if cfg.touch > 1:
            touch(24, (3, 8*O_HEAD), (5, 8*O_HEAD - 64), (None, O_OFF))
            touch(24, (None, FLAG_SZ))
        e("s_branch L_TOUCH3")
        lab("L_TOUCH2")
        touch(12, (28, 64*24576), (26, 24576), (5, 32*24576))
        if cfg.touch > 1:
            touch(24, (99, 15*4*P_W), (94, 16*P_W), (5, 16*P_W - 64), (None, PART_OFF))
            touch(20, (5, 768*2560 - 64))
        lab("L_TOUCH3")
    srd(44, 24, 0, FLAG_SZ)
    srd(48, 22, 0, 256)
    e("s_cmp_lg_u32 s93, 15")
    e("s_cbranch_scc1 L_NOCLR")
    e("s_mov_b32 exec_lo, 0x1f1f1f1f")
    e("s_mov_b32 exec_hi, 0x1f1f1f1f")
    for k in range(2*FG // 8192):
        e(f"s_add_u32 s31, s43, {k*8192}")
        e(f"buffer_store_dword v{T0+8}, v{T0+10}, s[44:47], s31 offen sc1")
    e("s_mov_b64 exec, -1")
    lab("L_NOCLR")
    if cfg.dry:
        cmt("instruction-cache warm-up: one pass through the Q loop with EXEC = 0 (LDS and matrix instructions only; results discarded)")
        e(f"s_bitcmp1_b32 {cfg.dry}, s7")
        e("s_cbranch_scc0 L_DRYDONE")
        for i in range(BB[0], BA + 2):
            e(f"v_mov_b32 v{i}, 0")
        e("s_mov_b32 s29, 0")
        e("s_mov_b64 exec, 0")
        e("s_branch L_QLOOP")
        lab("L_DRYDONE")
        e("s_mov_b64 exec, -1")
        e("s_nop 7")
        e(f"v_mov_b32 v0, v{LANE}")
    e(f"v_lshl_add_u32 v{T0+4}, v{T0}, 3, v{T0+2}")
    e(f"v_lshlrev_b32 v{T0+4}, 8, v{T0+4}")
    e(f"v_lshl_add_u32 v{T0+4}, v{T0+3}, 3, v{T0+4}")
    e(f"v_add_u32 v{T0+4}, {XB}, v{T0+4}")
    e(f"v_and_b32 v{T0+5}, 1, v{T0}")
    e(f"v_lshl_add_u32 v{T0+5}, v{T0+5}, 2, v{T0+2}")
    for T in range(8):
        e(f"v_xor_b32 v{T0+6}, {T}, v{T0+5}")
        e(f"v_lshl_add_u32 v{AA+T}, v{T0+6}, 5, v{T0+4}")
    e(f"v_and_b32 v{T0+6}, 6, v{T0+1}")
    e(f"v_xor_b32 v{T0+6}, v{T0+6}, v{T0}")
    e(f"v_lshlrev_b32 v{T0+6}, 4, v{T0+6}")
    e(f"v_lshl_add_u32 v{T0+6}, v{T0+1}, 7, v{T0+6}")
    e(f"s_mul_i32 s29, s7, {48*128}")
    e(f"v_add_u32 v{BA}, s29, v{T0+6}")
    e(f"v_xor_b32 v{BA+1}, 64, v{BA}")
    e("s_lshr_b32 s19, s7, 1")
    e("s_lshl_b32 s29, s19, 12")
    e(f"s_add_u32 s29, s29, {K0B}")
    e(f"v_lshrrev_b32 v{T0+6}, 1, v{T0}")
    e(f"v_xor_b32 v{T0+6}, v{T0+6}, v{T0+1}")
    e(f"v_lshlrev_b32 v{T0+6}, 4, v{T0+6}")
    e(f"v_lshl_add_u32 v{T0+6}, v{T0+1}, 8, v{T0+6}")
    e(f"v_and_b32 v{T0+7}, 1, v{T0}")
    e(f"v_lshl_add_u32 v{T0+6}, v{T0+7}, 3, v{T0+6}")
    e(f"v_add_u32 v{KA}, s29, v{T0+6}")
    e(f"v_lshrrev_b32 v{T0+6}, 2, v0")
    e(f"v_and_b32 v{T0+7}, 7, v{T0+6}")
    e(f"v_lshlrev_b32 v{T0+6}, 8, v{T0+6}")
    e(f"v_lshl_add_u32 v{T0+6}, v{T0+7}, 5, v{T0+6}")
    e(f"v_lshl_add_u32 v{T0+6}, v{T0+3}, 3, v{T0+6}")
    e("s_cmp_eq_u32 s19, 0")
    e(f"s_mov_b32 s29, {V1B}")
    e(f"s_cselect_b32 s29, {V0B}, s29")
    e(f"v_add_u32 v{VA0}, s29, v{T0+6}")
    e(f"v_lshlrev_b32 v{OA}, 4, v0")
    e("s_lshl_b32 s30, s7, 7")
    e(f"v_lshl_add_u32 v{FOFF}, v0, 13, s30")
    for i in range(96):
        e(f"v_mov_b32 v{i}, 0")
    e("s_lshl_b32 s29, s4, 5")
    e("s_add_u32 s29, s29, s26")
    e(f"s_mul_i32 s29, s29, {O_HEAD}")
    e(f"s_add_u32 s29, s29, {O_OFF}")
    srd(32, 24, "s29", O_HEAD)
    e("s_mul_i32 s29, s28, 12")
    e("s_mul_i32 s31, s7, 3")
    e("s_add_u32 s29, s29, s31")
    for j in range(3):
        e(f"s_add_u32 s31, s29, {j}")
        e("s_lshr_b32 s18, s31, 3")
        e("s_lshl_b32 s18, s18, 15")
        e("s_and_b32 s31, s31, 7")
        e("s_lshl_b32 s31, s31, 10")
        e(f"s_add_u32 s{40+j}, s31, s18")
    e(f"s_mul_i32 s18, s99, {2*FG}")
    e("s_add_u32 s18, s18, s39")
    e("s_add_u32 s18, s18, s30")
    e("s_add_u32 s18, s18, 128")
    e("s_add_u32 s8, s24, s18")
    e("s_addc_u32 s9, s25, 0")
    e("s_lshl_b32 s18, s7, 11")
    e("s_add_u32 s18, s18, s43")
    e("s_add_u32 s10, s24, s18")
    e("s_addc_u32 s11, s25, 0")
    e("s_cmp_eq_u32 s95, 2")
    e(f"s_cselect_b32 s12, {FG}, 0")
    e("s_cmp_lg_u32 s93, 15")
    e("s_cbranch_scc1 L_NOCLR2")
    e("s_waitcnt vmcnt(0)")
    e("s_mov_b64 exec, 1")
    e(f"buffer_store_dword v{FONE}, v{T0+8}, s[48:51], s101 offen sc1")
    e("s_mov_b64 exec, -1")
    lab("L_NOCLR2")

    def a_rd(T):
        return [(f"ds_read_b64_tr_b16 {vr(AB + (T & 3)*8 + s*4 + h*2, 2)}, v{AA+T} offset:{s*8192 + h*1024}", ("A", T & 3, s))
                for s in range(2) for h in range(2)]
    def b_rd(j, s, par):
        return (f"ds_read_b128 {vr(BB[par]+(j*2+s)*4,4)}, v{BA+s} offset:{j*2048}", ("B", par, j, s))
    def head_reads(par):
        a0 = a_rd(0)
        return [a0[0], a0[1], b_rd(0,0,par), a0[2], a0[3], b_rd(0,1,par), b_rd(1,0,par), b_rd(1,1,par),
                b_rd(2,0,par), b_rd(2,1,par)] + a_rd(1)
    def k_rd(kt):
        return [(f"ds_read_b64 {vr(KB[kt%3]+4*s+2*h,2)}, v{AA+2*s+h} offset:{kpos(kt) - K0B}", ("K", kt % 3, s))
                for s in range(4) for h in range(2)]
    def cvtq(s):
        return [x for j in range(3) for x in cvt4(acc(2*s, j), acc(2*s, j), acc(2*s+1, j))]
    def emit(x):
        if isinstance(x, tuple):
            lg.issue(x[0], x[1])
        else:
            e(x)
    def qstage(par, last=False, exit_label=None):
        att = {n: [] for n in range(48)}
        for T, n0 in ((2,0),(3,4),(4,8),(5,12),(6,18),(7,24)):
            for k, r in enumerate(a_rd(T)):
                att[n0+k].append(r)
        if not last:
            adv = [f"v_add_u32 v{AA+T}, s30, v{AA+T}" for T in range(8)] + [f"v_add_u32 v{BA+s}, s30, v{BA+s}" for s in range(2)]
            for k, x in enumerate(adv):
                att[28 + k//2].append(x)
            att[16] += ["s_mov_b32 s30, s88", "s_mov_b32 s88, s89"]
            att[17] += ["s_mov_b32 s89, s90", "s_mov_b32 s90, s30"]
            if par == 0:
                att[22].append("s_add_u32 s29, s29, 1")
                att[23].append("s_cmp_eq_u32 s29, 5")
            for k, r in enumerate(head_reads(par ^ 1)):
                att[34+k].append(r)
        else:
            for k in range(8):
                att[(4, 5, 8, 9, 12, 16, 22, 28)[k]].append(f"v_xor_b32 v{AA+k}, {32*k}, v{KA}")
            for k, r in enumerate(k_rd(0) + k_rd(1)[:4]):
                att[min(47, cfg.kbar + 1 + k//2)].append(r)
            for k, x in enumerate(cvtq(0)):
                att[(16, 17, 17, 18, 19, 20, 21, 22, 23, 23, 24, 25)[k]].append(x)
            for k, x in enumerate(cvtq(1)):
                att[(26, 27, 28, 29, 29, 30, 30, 31, 31, 32, 32, 33)[k]].append(x)
            for k, x in enumerate(cvtq(2)):
                att[40 + (k*2)//3].append(x)
        for n in range(48):
            T, j, s = n//6, (n % 6)//2, n % 2
            if cfg.snake:
                s ^= (n // 2) & 1
                if cfg.snake == 2 and T & 1 and not last: j = 2 - j
            if n % 6 == 0:
                lg.need(("A", T & 3, 0), ("A", T & 3, 1), *([("B", par, 0, 0), ("B", par, 0, 1)] if T == 0 else []))
            if T == 0 and n == 2:
                lg.need(*[("B", par, jj, ss) for jj in (1, 2) for ss in (0, 1)])
            e(mfma(acc(T, j), AB + (T & 3)*8 + s*4, BB[par] + (j*2+s)*4))
            for x in att[n]:
                emit(x)
            if cfg.qn and (n * cfg.qn) // 48 != ((n + 1) * cfg.qn) // 48:
                e("s_nop 5")
            if n == (cfg.kbar if last else 33):
                lg.drain()
                if cfg.dry and not last:
                    e(f"s_cbranch_execz L_QB{par}")
                e("s_barrier                               ; B_{i+1}: this stage read, next one (or K) landed")
                if cfg.dry and not last:
                    lab(f"L_QB{par}")
        if exit_label:
            e(f"s_cbranch_scc1 {exit_label}")

    e("s_mov_b32 s29, 0")
    e(f"s_mov_b32 s88, {2*SLOT}")
    e(f"s_mov_b32 s89, {(-SLOT) & 0xffffffff}")
    e("s_mov_b32 s90, s89")
    e("s_barrier                               ; B_0")
    stamp(1)
    for r in head_reads(0):
        emit(r)
    lab("L_QLOOP")
    qstage(0, exit_label="L_QDONE")
    saved = [set(t) for t in lg.pend]
    qstage(1)
    if cfg.dry:
        e("s_cbranch_execnz L_QLOOP")
        e("s_branch L_DRYDONE")
    else:
        e("s_branch L_QLOOP")
    lab("L_QDONE")
    lg.pend = saved
    qstage(1, last=True)
    stamp(2)
    QB = lambda s, j: acc(2*s, j)
    sregs = [acc(T, j) for T in (1, 3, 5) for j in range(3)] + [BB[0] + 4*k for k in range(6)] + [acc(7, j) for j in range(3)]
    SS = lambda kt, j: sregs[kt*3 + j]
    M = T0
    vaddr = [f"v_xor_b32 v{AA+T}, {32*T}, v{VA0}" for T in range(8)]
    c = math.log2(math.e) / math.sqrt(128.0)
    cbits = struct.unpack("<I", struct.pack("<f", c))[0]
    ONES = T0 + 12
    for kt in range(6):
        lg.need(*[("K", kt % 3, s) for s in range(4)])
        order = [(j, s) for j in range(3) for s in range(4)] if kt else \
                [(j, s) for j in range(3) for s in range(3)] + [(j, 3) for j in range(3)]
        att = {n: [] for n in range(12)}
        rd = k_rd(kt + 2) if kt + 2 < 6 else []
        if kt == 0:
            for k, x in enumerate(k_rd(1)[4:]):
                att[k//2].append(x)
            for k, x in enumerate(cvtq(3)):
                att[2 + k//2].append(x)
            for k, x in enumerate(rd):
                att[8 + k//2].append(x)
        else:
            for k, x in enumerate(rd):
                att[k].append(x)
        if kt == 4:
            for k, x in enumerate(vaddr):
                att[(0, 0, 1, 1, 2, 2, 10, 10)[k]].append(x)
        if kt == 5:
            att[0] += [f"s_mov_b32 s30, {cbits:#x}", f"s_mov_b32 s31, {cbits:#x}"]
            for r in range(4):
                att[1 + r//2].append(f"v_mov_b32 v{ONES+r}, 0x3f803f80")
        if kt >= 1:
            for j in range(3):
                b = SS(kt-1, j)
                if kt == 1:
                    att[5 + 2*j] += [f"v_max3_f32 v{M+j}, v{b}, v{b+1}, v{b+2}"]
                    att[6 + 2*j] += [f"v_max_f32 v{M+j}, v{M+j}, v{b+3}"]
                else:
                    o = 6 if kt < 4 else 4
                    att[o + 2*j] += [f"v_max3_f32 v{M+j}, v{M+j}, v{b}, v{b+1}"]
                    att[o + 1 + 2*j] += [f"v_max3_f32 v{M+j}, v{M+j}, v{b+2}, v{b+3}"]
        if kt == 5:
            b = SS(5, 0)
            att[10] += [f"v_max3_f32 v{M}, v{M}, v{b}, v{b+1}"]
            att[11] += [f"v_max3_f32 v{M}, v{M}, v{b+2}, v{b+3}"]
        for n, (j, s) in enumerate(order):
            e(mfma(SS(kt, j), KB[kt % 3] + 4*s, QB(s, j), "0" if s == 0 else None))
            for x in att[n]:
                emit(x)
    b = SS(5, 1)
    e(f"v_mov_b32 v{M+4}, v{M}")
    e(f"v_max3_f32 v{M+1}, v{M+1}, v{b}, v{b+1}")
    e(f"v_max3_f32 v{M+1}, v{M+1}, v{b+2}, v{b+3}")
    e(f"v_permlane32_swap_b32 v{M}, v{M+4}")
    e(f"v_mov_b32 v{M+5}, v{M+1}")
    e(f"v_max_f32 v{M}, v{M}, v{M+4}")
    e(f"v_mov_b32 v{M+4}, v{M}")
    b = SS(5, 2)
    e(f"v_permlane32_swap_b32 v{M+1}, v{M+5}")
    e(f"v_max3_f32 v{M+2}, v{M+2}, v{b}, v{b+1}")
    e(f"v_max3_f32 v{M+2}, v{M+2}, v{b+2}, v{b+3}")
    e(f"v_permlane16_swap_b32 v{M}, v{M+4}")
    e(f"v_mov_b32 v{M+6}, v{M+2}")
    e(f"v_max_f32 v{M+1}, v{M+1}, v{M+5}")
    e(f"v_mov_b32 v{M+5}, v{M+1}")
    e(f"v_permlane32_swap_b32 v{M+2}, v{M+6}")
    e(f"v_max_f32 v{M}, v{M}, v{M+4}")
    e(f"v_permlane16_swap_b32 v{M+1}, v{M+5}")
    e(f"v_max_f32 v{M+2}, v{M+2}, v{M+6}")
    e(f"v_mov_b32 v{M+6}, v{M+2}")
    e(f"v_max_f32 v{M+1}, v{M+1}, v{M+5}")
    e("s_nop 0")
    e(f"v_permlane16_swap_b32 v{M+2}, v{M+6}")
    e(f"v_max_f32 v{M+2}, v{M+2}, v{M+6}")
    NM = T0 + 4
    for j in range(3):
        e(f"v_mul_f32 v{NM+2*j}, s30, v{M+j}")
    stamp(3)
    pregs = [BB[1] + 4*k for k in range(6)] + [AB + 4*k for k in range(3)]
    PB = lambda s, j: pregs[s*3 + j]
    LS = T0 + 16
    VB = [KB[0], KB[0]+12, AB+12]
    def v_rd(T):
        return [(f"ds_read_b64_tr_b16 {vr(VB[T%3]+4*s+2*h,2)}, v{AA+T} offset:{(32*s+16*h)*256}", ("V", T % 3))
                for s in range(3) for h in range(2)]
    def v_start():
        stamp(4)
        e("s_barrier                               ; B_11: V visible")
        stamp(5)
        for r in v_rd(0) + v_rd(1):
            emit(r)
    pend_m = []
    for s in range(3):
        for j in range(3):
            if cfg.vbar and s*3 + j == 9 - cfg.vbar:
                v_start()
            for kt in (2*s, 2*s+1):
                b = SS(kt, j)
                for h in range(2):
                    e(f"v_pk_fma_f32 {vr(b+2*h,2)}, {vr(b+2*h,2)}, s[30:31], {vr(NM+2*j,2)} op_sel_hi:[1,1,0] neg_lo:[0,0,1] neg_hi:[0,0,1]")
            if pend_m:
                e(pend_m.pop())
            for kt in (2*s, 2*s+1):
                b = SS(kt, j)
                for r in range(4):
                    e(f"v_exp_f32 v{b+r}, v{b+r}")
            for x in cvt4(PB(s, j), SS(2*s, j), SS(2*s+1, j)):
                e(x)
            pend_m.append(mfma(LS+4*j, ONES, PB(s, j), "0" if s == 0 else None))
    if not cfg.vbar:
        v_start()
        e(pend_m.pop())
    RC = T0 + 4
    def epi(s, pk=False):
        r = []
        for j in range(3):
            a0, a1 = acc(2*s, j), acc(2*s+1, j)
            for a in (a0, a1):
                if pk:
                    r += [f"v_pk_mul_f32 {vr(a+2*h,2)}, {vr(a+2*h,2)}, {vr(RC+2*j,2)} op_sel_hi:[1,0]" for h in range(2)]
                else:
                    r += [f"v_mul_f32 v{a+k}, v{a+k}, v{RC+2*j}" for k in range(4)]
            r += cvt4(a0, a0, a1)
            r.append(f"buffer_store_dwordx4 {vr(a0,4)}, v{OA}, s[32:35], s{40+j} offen{cfg.o_st}")
        if s < 3:
            r.append(f"v_add_u32 v{OA}, 8192, v{OA}")
        return r
    backlog = []
    for T in range(8):
        lg.need(("V", T % 3))
        rd = v_rd(T+2) if T + 2 < 8 else []
        if T == 1:
            backlog += [f"v_rcp_f32 v{RC+2*j}, v{LS+4*j}" for j in range(3)]
        n = 0
        for j in range(3):
            for s in range(3):
                e(mfma(acc(T, j), VB[T % 3] + 4*s, PB(s, j), "0" if s == 0 else None))
                if pend_m and n == 1:
                    e(pend_m.pop())
                k = 0
                if rd:
                    emit(rd.pop(0)); k += 1
                if T >= 2 and T % 2 == 0 and n == 1:
                    backlog += epi(T//2 - 1)
                while backlog and k < 2:
                    e(backlog.pop(0)); k += 1
                n += 1
    for x in backlog:
        e(x)
    stamp(6)
    for x in epi(3, True):
        e(x)
    stamp(7)
    PA = [64, 96]; PBb = [128, 160]
    QA, QB2 = 192, 204
    T1 = 206
    HOLD = 212
    e(f"v_lshrrev_b32 v{T1+2}, 2, v{LANE}")
    e(f"v_and_b32 v{T1+3}, 7, v{T1+2}")
    e("s_and_b32 s29, s7, 1")
    e("s_lshl_b32 s30, s29, 2")
    e(f"v_xor_b32 v{T1+3}, s30, v{T1+3}")
    e(f"v_lshlrev_b32 v{T1+2}, 8, v{T1+2}")
    e(f"v_lshl_add_u32 v{T1+2}, v{T1+3}, 5, v{T1+2}")
    e(f"v_and_b32 v{T1+3}, 3, v{LANE}")
    e(f"v_lshl_add_u32 v{T1+2}, v{T1+3}, 3, v{T1+2}")
    for T in range(4):
        e(f"v_xor_b32 v{QA+T}, {32*T}, v{T1+2}")
        e(f"v_add_u32 v{QA+4+T}, {WSL[3]}, v{QA+T}")
        e(f"v_add_u32 v{QA+8+T}, {WSL[4]}, v{QA+T}")
    e(f"v_lshlrev_b32 v{T1}, 4, v{LANE}")
    e("s_lshl_b32 s30, s19, 12")
    e(f"s_add_u32 s30, s30, {V1B}")
    e(f"v_add_u32 v{QB2}, s30, v{T1}")
    e(f"v_add_u32 v{QB2+1}, {V0B - V1B}, v{QB2}")
    nd = 2 if cfg.dup else 1
    fl = [[13, 14, 15, 16], [17, 18, 88, 89]]
    e("s_cmp_lg_u32 s95, 1")
    e("s_cselect_b32 s15, 1, 0")
    e("s_mov_b32 s16, s15")
    e("s_mov_b32 s13, 0")
    e("s_mov_b32 s14, 0")
    if cfg.dup:
        for r in fl[1]:
            e(f"s_mov_b32 s{r}, 0")
    e(f"s_mov_b32 s31, {cfg.spin}")
    e("s_cmp_eq_u32 s7, 0")
    e("s_cbranch_scc1 L_FLAG")
    e("s_waitcnt vmcnt(0)")
    stamp(8)
    e("s_barrier                               ; E")
    e("s_branch L_NOFLAG")
    lab("L_FLAG")
    e(f"s_mov_b64 exec, {3 if cfg.dup else 1}")
    e("s_waitcnt vmcnt(0)")
    stamp(8)
    e("s_barrier")
    e(f"buffer_store_dword v{FONE}, v{FOFF}, s[44:47], s100 offen sc1")
    e("s_mov_b64 exec, -1")
    lab("L_NOFLAG")
    e("s_cmp_eq_u32 s94, 15")
    e("s_cbranch_scc1 L_FIN")
    lab("L_POLL")
    for k in range(4):
        e(f"s_cmp_lg_u32 s{fl[0][k]}, 0")
        e(f"s_cbranch_scc1 L_PS{k}")
        for d in range(nd):
            if k < 2:
                e(f"s_load_dword s{fl[d][k]}, s[10:11], s12 offset:{k*1024 + d*8192} glc")
            else:
                e(f"s_load_dword s{fl[d][k]}, s[10:11], {FG + (k-2)*1024 + d*8192} glc")
        lab(f"L_PS{k}")
    e("s_sub_u32 s31, s31, 1")
    e("s_cbranch_scc1 L_GO")
    e("s_waitcnt lgkmcnt(0)")
    if cfg.dup:
        for k in range(4):
            e(f"s_or_b32 s{fl[0][k]}, s{fl[0][k]}, s{fl[1][k]}")
    e("s_and_b32 s5, s13, s14")
    e("s_and_b32 s30, s15, s16")
    e("s_and_b32 s5, s5, s30")
    e("s_cbranch_scc0 L_POLL")
    lab("L_GO")
    e("s_barrier                               ; D")
    e("s_waitcnt lgkmcnt(0)")
    e("s_mul_i32 s18, s99, 15")
    e("s_lshl2_add_u32 s18, s94, s18")
    e("s_lshl2_add_u32 s18, s18, s7")
    e(f"s_mul_i32 s18, s18, {P_W}")
    e(f"s_add_u32 s18, s18, {PART_OFF}")
    srd(32, 24, "s18", 16*P_W)
    for d in range(4):
        e(f"s_add_u32 s18, s97, {d}")
        e("s_and_b32 s18, s18, 3")
        e(f"s_mul_i32 s18, s18, {4*P_W}")
        e(f"s_add_u32 s{36+d}, s18, {max(d-1,0)*2048}")
        if d:
            e(f"s_sub_u32 s18, s97, {d}")
            e("s_and_b32 s18, s18, 3")
            e(f"s_mul_i32 s{88+d}, s18, {2*FG}")
    e("s_mul_i32 s18, s98, 3")
    e("s_add_u32 s18, s18, s95")
    e("s_lshl1_add_u32 s18, s18, s19")
    e("s_lshl2_add_u32 s18, s18, s97")
    e(f"s_mul_i32 s18, s18, {16*2560}")
    e("s_mul_i32 s30, s4, 1280")
    e("s_add_u32 s18, s18, s30")
    e("s_lshl1_add_u32 s30, s96, s29")
    e("s_lshl_b32 s30, s30, 7")
    e("s_add_u32 s18, s18, s30")
    e(f"s_sub_u32 s30, {768*2560}, s18")
    srd(40, 20, "s18", "s30")
    e(f"v_and_b32 v{T1+1}, 15, v{LANE}")
    e(f"v_mul_u32_u24 v{T1+1}, 2560, v{T1+1}")
    e(f"v_and_b32 v{T1+2}, 48, v{LANE}")
    e(f"v_add_u32 v{T1+1}, v{T1+1}, v{T1+2}")

    ND = cfg.ndef
    assert 2 <= ND <= 7
    pacc = lambda T, j: (T*4+j)*4
    def breg(u, j):
        if j == 0 and 16 - ND <= u < 14:
            return HOLD + 8*(u - (16 - ND))
        return PBb[u & 1] + j*8
    def pa_rd(u, T, buf):
        k = u % 7
        areg = QA + 4*(0 if k < 3 else 1 if k == 3 else 2)
        aoff = WSL[k] - (0 if k < 3 else WSL[3] if k == 3 else WSL[4])
        return [(f"ds_read_b64_tr_b16 {vr(PA[buf]+T*8+s*4+h*2,2)}, v{areg+T} offset:{aoff + (32*s+16*h)*256}", ("PA", buf, T))
                for s in range(2) for h in range(2)]
    def p_reads(u):
        b = u & 1
        bb = lambda j: [(f"ds_read_b128 {vr(breg(u, j)+s*4,4)}, v{QB2+s} offset:{(u%3)*8192 + j*1024}", ("PB", b, j)) for s in range(2)]
        if u < cfg.prea:
            return bb(0) + bb(1) + bb(2) + bb(3)
        if u >= 16 - ND:
            return pa_rd(u,0,b) + bb(1) + bb(2) + bb(3) + pa_rd(u,1,b) + pa_rd(u,2,b) + pa_rd(u,3,b) + bb(0)
        return pa_rd(u,0,b) + bb(0) + bb(1) + bb(2) + bb(3) + pa_rd(u,1,b) + pa_rd(u,2,b) + pa_rd(u,3,b)
    def pm(u, T, j, s, buf=None, first=False):
        return mfma(pacc(T, j), PA[u & 1 if buf is None else buf]+T*8+s*4, breg(u, j)+s*4, "0" if first else None)
    def send(d):
        r = []
        for Tp in range(2):
            a0 = pacc(2*Tp, d)
            r += cvt4(a0, a0, pacc(2*Tp+1, d))
            r.append(f"buffer_store_dwordx4 {vr(a0,4)}, v{T1}, s[32:35], s{36+d} offen offset:{Tp*1024}{cfg.p_st}")
        return r
    lg.pend = []
    for u in range(cfg.prea):
        for T in range(4):
            for r in pa_rd(u, T, u):
                emit(r)
    if cfg.prea:
        lg.drain()
    e("s_barrier                               ; C_0")
    stamp(9)
    for r in p_reads(0):
        emit(r)
    for u in range(15):
        b = u & 1
        rd = p_reads(u+1)
        if cfg.tail2 and u == 14:
            rd, late = rd[:14], rd[14:]
        js = (1, 2, 3) if u >= 16 - ND else (0, 1, 2, 3)
        seq = [(T, j, s) for T in range(4) for j in (js[::-1] if (cfg.snake == 2 and T & 1) else js) for s in range(2)]
        if cfg.snake:
            seq = [(T, j, s ^ ((n // 2) & 1)) for n, (T, j, s) in enumerate(seq)]
        pb = min(cfg.pbar, 5) if len(js) == 3 else cfg.pbar
        for n, (T, j, s) in enumerate(seq):
            if u == 0:
                lg.need(("PA", b, T), ("PB", b, j))
            elif n == 0:
                lg.need(("PA", b, 0), *[("PB", b, jj) for jj in js])
            e(pm(u, T, j, s, first=(u == 0 and n % 2 == 0)))
            if n == pb:
                lg.drain()
                e(f"s_barrier                               ; C_{u+1}")
            if n > pb and rd:
                emit(rd.pop(0))
                if len(js) == 3 and n < pb + 9 and not (cfg.tail2 and u == 14):
                    emit(rd.pop(0))
        assert not rd
    seq = [(15, T, j, s) for j in (1, 2, 3) for T in range(4) for s in range(2)] + \
          [(uu, T, 0, s) for uu in (14, 15) for T in range(4) for s in range(2)]
    if cfg.tail2:
        seq = [(15, T, j, s) for Tp in range(2) for j in (1, 2, 3) for T in (2*Tp, 2*Tp+1) for s in range(2)] + seq[24:]
    if cfg.snake:
        seq = [(uu, T, j, s ^ ((n // 2) & 1)) for n, (uu, T, j, s) in enumerate(seq)]
    older = list(range(16 - ND, 14))
    fill = []
    for n, (uu, T, j, s) in enumerate(seq):
        lg.need(("PA", 1, T), ("PB", 1, j))
        e(pm(uu, T, j, s))
        if cfg.tail2:
            k = 0
            if late:
                emit(late.pop(0)); k += 1
            if n >= 6 and n % 4 == 2 and n <= 26:
                g = (n - 6) // 4
                fill += send(1 + g % 3)[5*(g // 3):5*(g // 3) + 5]
            while fill and k < 2:
                emit(fill.pop(0)); k += 1
            continue
        if n in (9, 17, 25):
            fill += send(n // 8)
        if n >= 32 and older:
            fill += pa_rd(older[0], (n - 32)//2, 0)[2*(n & 1):2*(n & 1)+2]
        for _ in range(2):
            if fill:
                emit(fill.pop(0))
    assert not fill
    def old_stage(k):
        for T in range(4):
            lg.need(("PA", k & 1, T))
            for s in range(2):
                e(pm(older[k], T, 0, s, k & 1))
                if k + 1 < len(older):
                    for r in pa_rd(older[k+1], T, (k+1) & 1)[2*s:2*s+2]:
                        emit(r)
    nbefore = min(len(older), 2)
    for k in range(nbefore):
        old_stage(k)
    stamp(10)
    def p3_loads(d0):
        for dd in range(d0, 4):
            for d in range(nd):
                e(f"s_load_dword s{12+dd+3*d}, s[8:9], s{88+dd} offset:{d*8192} glc")
    if cfg.pp:
        assert ND == 2
        p3_loads(1)
    e("s_add_u32 s37, s36, 4096")
    e(f"s_mov_b64 exec, {3 if cfg.dup else 1}")
    e("s_waitcnt vmcnt(0)")
    stamp(11)
    e(f"buffer_store_dword v{FONE}, v{FOFF}, s[44:47], s100 offen offset:128 sc1")
    e("s_mov_b64 exec, -1")
    for k in range(nbefore, len(older)):
        old_stage(k)
    RB = 136
    if not cfg.pp:
        p3_loads(1)
    e("s_mov_b32 s30, 0xffff0000")
    e("s_waitcnt lgkmcnt(0)")
    for d in (1, 2, 3):
        e(f"s_mov_b32 s31, {cfg.spin}")
        lab(f"L_P3W{d}")
        if cfg.dup:
            e(f"s_or_b32 s5, s{12+d}, s{15+d}")
        else:
            e(f"s_cmp_lg_u32 s{12+d}, 0")
        e(f"s_cbranch_scc1 L_P3G{d}")
        p3_loads(d)
        e("s_sub_u32 s31, s31, 1")
        e(f"s_waitcnt lgkmcnt({4-d if cfg.pp == 2 else 0})")
        e(f"s_cbranch_scc0 L_P3W{d}")
        lab(f"L_P3G{d}")
        for f in (2*d - 2, 2*d - 1):
            e(f"buffer_load_dwordx4 {vr(RB+4*f,4)}, v{T1}, s[32:35], s{36 + f//4} offen offset:{(f%4)*1024}{cfg.p_ld}")
    stamp(12)
    TT = 168
    def finish(Tp):
        a0 = pacc(2*Tp, 0)
        for x in cvt4(a0, a0, pacc(2*Tp+1, 0)):
            e(x)
        e("s_nop 0")
        e(f"v_permlane32_swap_b32 v{a0}, v{a0+2}")
        e(f"v_permlane32_swap_b32 v{a0+1}, v{a0+3}")
        e("s_nop 0")
        e(f"v_permlane16_swap_b32 v{a0}, v{a0+2}")
        e(f"v_permlane16_swap_b32 v{a0+1}, v{a0+3}")
        e(f"buffer_store_dwordx4 {vr(a0,4)}, v{T1+1}, s[40:43], 0 offen offset:{Tp*64}{cfg.out_st}")
    for f in range(6):
        e(f"s_waitcnt vmcnt({5-f if f < 5 else 1})")
        Tp = f & 1
        for k in range(4):
            x = RB + 4*f + k
            e(f"v_lshlrev_b32 v{TT+2*k}, 16, v{x}")
            e(f"v_and_b32 v{TT+2*k+1}, s30, v{x}")
        for k in range(4):
            a = pacc(2*Tp + k//2, 0) + 2*(k & 1)
            e(f"v_pk_add_f32 {vr(a,2)}, {vr(a,2)}, {vr(TT+2*k,2)}")
        if f == 5: stamp(13)
        if f >= 4:
            finish(Tp)
    stamp(14)
    lab("L_FIN")
    if cfg.stamps:
        e("s_waitcnt vmcnt(0)")
        stamp(15)
        stamp_flush()
    lab("L_END")
    e("s_endpgm")

def kd(name):
    return f""".amdhsa_kernel {name}
  .amdhsa_next_free_vgpr 256
  .amdhsa_next_free_sgpr 102
  .amdhsa_accum_offset 256
  .amdhsa_group_segment_fixed_size 0
  .amdhsa_kernarg_size 104
  .amdhsa_user_sgpr_count 2
  .amdhsa_user_sgpr_kernarg_segment_ptr 1
  .amdhsa_system_sgpr_workgroup_id_x 1
.end_amdhsa_kernel
"""

prologue(); helper(); compute()
probs = check_hazards(A.L)
for p in probs:
    print("HAZARD:", p, file=sys.stderr)
K = NAME + "_kernel"
if cfg.diag:
    from diag import gen_diag
    hdr = (f"; diagnostic build\n; @launch kernel={K} grid=(256,1,1) block=(512,1,1) lds=163840\n"
           "; @launch kernel=d_kernel grid=(1,1,1) block=(256,1,1) lds=256\n")
else:
    hdr = open(os.path.join(os.path.dirname(os.path.abspath(__file__)), "header.txt")).read()
out = hdr + '.amdgcn_target "amdgcn-amd-amdhsa--gfx950"\n.text\n'
out += f".globl {K}\n.p2align 8\n.type {K},@function\n" + A.text()
if cfg.diag:
    out += ".globl d_kernel\n.p2align 8\n.type d_kernel,@function\n" + "\n".join(gen_diag(cfg.diag.strip(), STAMP_OFF)) + "\n"
out += '.section .rodata,"a"\n.p2align 6\n' + kd(K)
if cfg.diag:
    out += ".p2align 6\n" + kd("d_kernel")
open(sys.argv[1], "w").write(out)
sys.exit(1 if probs else 0)
```

```python
import sys, os, math, struct
sys.path.insert(0, os.path.dirname(os.path.abspath(__file__)))
from asmlib import *

NAME = "concat_heads__gqa_block_cached__mha_block_cached__near_ridge"

class Cfg:
    nt_x = ""; nt_wq = ""; nt_k = " nt"; nt_v = " nt"; nt_wo = ""
    o_st = " sc1"; o_ld = " sc1"; out_st = " sc1"; p_st = " sc1"; p_ld = " sc1"
    rot = 10246
    scheds = " S0 S1/S2/S3/S4/S5/S6/S7/S8/S9 K012/K345/V0/V1|S0 S1/S2/K012 S3/K34 Va S4/S5/S6/S7/S8/S9/K5/V1/W0"
    smap = " 0011"
    wp = " 2,2/2,2"
    wpoll = 7
    wfirst = 2
    wtail = 100
    rtab = " 0,3,5,8,11,13"
    rnt = 0
    vwm = 2
    prea = 2
    vbar = 0
    snake = 2
    nrot = 16
    lead0 = 9
    lpre = 1
    first = 1
    touch = 0
    dry = 0
    pp = 0
    skipown = 0
    ntq = 99
    ntw = 99
    weave = 0
    wcnt = " 0233333333322210"
    wlast = 14
    tail2 = 1
    kw = 0
    late0 = 2
    nbef = 2
    ndef = 6
    pbar = 5
    kbar = 33
    dup = 0
    cpf = 2
    prio = 1
    stamps = 0
    hst = 0
    spin = 1000000
    diag = ""
    qn = 0
cfg = Cfg()
for a in sys.argv[2:]:
    k, v = a.split("=")
    old = getattr(cfg, k)
    setattr(cfg, k, int(v) if isinstance(old, int) else ((" " + v.replace("+", " ")) if v else ""))

A = Asm()
e, lab, cmt = A.e, A.lab, A.cmt

STAMP_OFF = 64 << 20
FG = 16384 if cfg.dup else 8192
FLAG_SZ = 32 * FG
O_OFF = 1 << 20
O_HEAD = 196608
PART_OFF = 16 << 20
P_W = 6144
SLOT = 40960
XB = 24576
PHYS = [0, 2*SLOT, SLOT]
V1B, V0B, K0B = 49152, 90112, 114688
WSL = [0, 16384, 32768, 73728, 114688, 131072, 147456]
kpos = lambda kt: K0B + ((kt + 1) % 6) * 8192

def stamp(i):
    if cfg.stamps:
        e(f"{'s_memtime' if cfg.stamps == 2 else 's_memrealtime'} s[{52+2*i}:{53+2*i}]")
def stamp_flush():
    e(f"s_add_u32 s84, s24, {STAMP_OFF}")
    e("s_addc_u32 s85, s25, 0")
    e("s_mov_b32 s86, 0x100000")
    e("s_mov_b32 s87, 0x20000")
    e("s_lshl_b32 s92, s2, 3")
    e("s_add_u32 s92, s92, s7")
    e("s_lshl_b32 s92, s92, 6")
    e("s_waitcnt lgkmcnt(0)")
    e("v_mbcnt_lo_u32_b32 v251, -1, 0")
    e("v_lshlrev_b32 v251, 2, v251")
    for i in range(16):
        e(f"v_writelane_b32 v250, s{52+2*i}, {i}")
    e("s_mov_b64 exec, 0xffff")
    e("buffer_store_dword v250, v251, s[84:87], s92 offen sc1")

def srd(d, lo, off, size):
    e(f"s_add_u32 s{d}, s{lo}, {off}")
    e(f"s_addc_u32 s{d+1}, s{lo+1}, 0")
    e(f"s_mov_b32 s{d+2}, {size}")
    e(f"s_mov_b32 s{d+3}, 0x20000")

def cvt4(d, a0, a1):
    return [f"v_cvt_pk_bf16_f32 v{d}, v{a0}, v{a0+1}", f"v_cvt_pk_bf16_f32 v{d+1}, v{a0+2}, v{a0+3}",
            f"v_cvt_pk_bf16_f32 v{d+2}, v{a1}, v{a1+1}", f"v_cvt_pk_bf16_f32 v{d+3}, v{a1+2}, v{a1+3}"]

def prologue():
    lab(NAME + "_kernel")
    e("s_cmp_ge_u32 s2, 256")
    e("s_cbranch_scc1 L_END")
    e("s_and_b32 s3, s2, 7")
    e("s_lshr_b32 s4, s3, 2")
    e("s_mul_i32 s5, s4, 40")
    e("s_load_dwordx8 s[8:15], s[0:1], s5")
    e("s_load_dwordx2 s[16:17], s[0:1], s5 offset:32")
    e("s_load_dwordx4 s[20:23], s[0:1], 80")
    e("s_load_dwordx2 s[24:25], s[0:1], 96")
    if cfg.stamps:
        for i in range(1, 16):
            e(f"s_mov_b32 s{52+2*i}, 0")
    stamp(0)
    if cfg.kw:
        cmt("early vector read of the kernarg segment (value unused): starts the vector memory path before the pointers arrive")
        e("v_mov_b32 v233, 0")
        if cfg.kw == 1:
            e("s_mov_b64 exec, 1")
            e("global_load_dword v233, v233, s[0:1]")
        else:
            e(f"v_cmp_eq_u32 vcc, {0 if cfg.kw == 2 else 256}, v0")
            e("s_and_saveexec_b64 s[18:19], vcc")
            e("s_cbranch_execz L_NOKW")
            e("global_load_dword v233, v233, s[0:1]")
            lab("L_NOKW")
        e("s_mov_b64 exec, -1")
    if cfg.cpf:
        cmt("instruction prefetch into L2: workgroup r reads code lines 8r..8r+7 (values unused)")
        if cfg.cpf == 1:
            e("v_xor_b32 v1, 256, v0")
        e(f"v_cmp_gt_u32 vcc, 8, v{1 if cfg.cpf == 1 else 0}")
        e("s_and_saveexec_b64 s[18:19], vcc")
        e("s_cbranch_execz L_NOCPF")
        e("s_getpc_b64 s[90:91]")
        lab("L_PC")
        e("s_and_b32 s18, s2, 0xf8")
        e(f"v_add_u32 v2, s18, v{1 if cfg.cpf == 1 else 0}")
        e("v_lshlrev_b32 v2, 7, v2")
        e("v_min_u32 v2, L_END-L_PC, v2")
        e("v_add_co_u32 v2, vcc, s90, v2")
        e("v_mov_b32 v3, s91")
        e("s_nop 0")
        e("v_addc_co_u32 v3, vcc, 0, v3, vcc")
        e("global_load_dword v235, v[2:3], off")
        lab("L_NOCPF")
        e("s_mov_b64 exec, -1")
    e("v_lshrrev_b32 v1, 6, v0")
    e("v_xor_b32 v1, 4, v1")
    e("s_lshr_b32 s6, s2, 3")
    e("v_readfirstlane_b32 s7, v1")
    e("v_and_b32 v0, 63, v0")
    e("s_bfe_u32 s26, s6, 0x10002")
    e("s_lshr_b32 s27, s6, 3")
    e("s_and_b32 s6, s6, 3")
    e("s_lshl_b32 s27, s27, 2")
    e("s_lshl_b32 s26, s26, 4")
    e("s_or_b32 s6, s6, s27")
    e("s_or_b32 s6, s6, s26")
    if cfg.stamps:
        e("s_lshl_b32 s2, s6, 3")
        e("s_or_b32 s2, s2, s3")
    e("s_and_b32 s97, s3, 3")
    e("s_and_b32 s27, s6, 7")
    e("s_lshl3_add_u32 s26, s97, s27")
    e("s_lshr_b32 s28, s6, 3")
    e("s_cmp_lt_u32 s7, 4")
    e("s_cbranch_scc1 L_COMPUTE")

def ids():
    cmt("s94 = m (15: no output tile), s95 = tt, s96 = nt, s97 = head group, s98 = set, s99 = (branch*2+set)*4")
    e("s_and_b32 s94, s6, 15")
    e("s_mul_i32 s95, s94, 52")
    e("s_lshr_b32 s95, s95, 8")
    e("s_mul_i32 s96, s95, 5")
    e("s_sub_u32 s96, s94, s96")
    e("s_lshr_b32 s98, s6, 4")
    e("s_lshl1_add_u32 s99, s4, s98")
    e("s_lshl_b32 s99, s99, 2")

def helper():
    cmt("================ loader waves: x / wq ring, K, V, then wo / O rings (all LDS-DMA)")
    vm = Counter(A, "vmcnt", 63)
    e("s_sub_u32 s19, s7, 4")
    if cfg.rot == 3:
        e("s_add_u32 s30, s27, s28"); e("s_and_b32 s30, s30, 3"); e("s_mul_i32 s30, s30, 5"); e("s_lshr_b32 s30, s30, 1")
    elif cfg.rot == 2:
        e("s_lshl1_add_u32 s30, s28, s27"); e("s_and_b32 s30, s30, 7"); e("s_mul_i32 s30, s30, 5"); e("s_lshr_b32 s30, s30, 2")
    elif cfg.rot == 1:
        e("s_add_u32 s30, s27, s28"); e("s_and_b32 s30, s30, 1"); e("s_mul_i32 s30, s30, 5")
    elif cfg.rot >= 10:
        tab = [int(c) for c in str(cfg.rot)[1:]]
        e("s_add_u32 s30, s27, s28"); e("s_and_b32 s30, s30, 3"); e("s_lshl_b32 s30, s30, 2")
        e(f"s_lshr_b32 s30, {sum(b << (4*i) for i, b in enumerate(tab)):#x}, s30"); e("s_and_b32 s30, s30, 15")
    XV, WV = 10, 14
    e("v_lshrrev_b32 v1, 4, v0")
    e("v_and_b32 v2, 15, v0")
    e("v_lshlrev_b32 v3, 1, v1")
    e("v_xor_b32 v4, v2, v3")
    e("v_lshlrev_b32 v4, 4, v4")
    e("s_lshl_b32 s29, s19, 4")
    e("v_add_u32 v5, s29, v1")
    e(f"v_lshl_add_u32 v{WV}, v5, 13, v4")
    e(f"v_add_u32 v{WV+1}, {32768-1024}, v{WV}")
    e(f"v_xor_b32 v5, 128, v{WV}")
    e(f"v_add_u32 v{WV+2}, {2*(32768-1024)}, v5")
    e(f"v_add_u32 v{WV+3}, {3*(32768-1024)}, v5")
    e("v_lshrrev_b32 v5, 3, v0")
    e("v_and_b32 v6, 7, v0")
    e("v_and_b32 v7, 6, v5")
    e("v_xor_b32 v6, v6, v7")
    e("s_mul_i32 s29, s19, 48")
    e("v_add_u32 v5, s29, v5")
    e("v_mul_u32_u24 v5, 1280, v5")
    e(f"v_lshl_add_u32 v{XV}, v6, 4, v5")
    for t in range(1, 4):
        e(f"v_add_u32 v{XV+t}, {t*(10240-1024)}, v{XV}")
    e(f"s_mul_i32 s88, s19, {48*128}")
    e("s_lshl_b32 s89, s19, 12")
    e(f"s_mul_i32 s29, s28, {192*1280}")
    e("s_lshl_b32 s31, s26, 8")
    e(f"s_sub_u32 s38, {640*8192}, s31")
    e("s_mov_b32 s39, 0x20000")
    e(f"s_mov_b32 s34, {192*1280}")
    e("s_mov_b32 s35, 0x20000")
    e("s_mov_b32 s100, 0")
    e("s_waitcnt lgkmcnt(0)")
    e("s_add_u32 s36, s14, s31")
    e("s_addc_u32 s37, s15, 0")
    e("s_add_u32 s32, s8, s29")
    e("s_addc_u32 s33, s9, 0")

    def stage(i):
        slot = PHYS[i % 3]
        e(f"s_add_u32 m0, s89, {slot + XB}")
        if i < cfg.first:
            e(f"s_mov_b32 s90, {(9 - i) << 19}")
        else:
            e("s_lshl_b32 s90, s30, 19")
        for t in range(4):
            vm.issue(f"buffer_load_dwordx4 v{WV+t}, s[36:39], s90 offen offset:{t*1024}{cfg.nt_wq if 1 <= i <= cfg.ntq else ''} lds", ("st", i))
        e(f"s_add_u32 m0, s88, {slot}")
        if i < cfg.first:
            e(f"s_mov_b32 s91, {(9 - i) << 7}")
        else:
            e("s_lshl_b32 s91, s30, 7")
        for t in range(4):
            vm.issue(f"buffer_load_dwordx4 v{XV+t}, s[32:35], s91 offen offset:{t*1024}{cfg.nt_x} lds", ("st", i))
        e("s_add_u32 m0, m0, 4096")
        e("s_add_u32 s91, s91, 40960")
        for t in range(2):
            vm.issue(f"buffer_load_dwordx4 v{XV+t}, s[32:35], s91 offen offset:{t*1024}{cfg.nt_x} lds", ("st", i))
        if cfg.first <= i < 9:
            e("s_add_u32 s30, s30, 1")
            e(f"s_cmp_eq_u32 s30, {10 - cfg.first}")
            e("s_cselect_b32 s30, 0, s30")
    def kv_setup():
        e("s_lshl_b32 s29, s28, 6")
        e("s_add_u32 s29, s29, s26")
        e("s_mul_i32 s29, s29, 24576")
        srd(44, 12, "s29", 33*24576)
        srd(40, 10, "s29", 33*24576)
        e("v_lshlrev_b32 v18, 4, v0")
        e("s_and_b32 s31, s19, 1")
        e("s_lshl_b32 s31, s31, 7")
        e("v_xor_b32 v19, s31, v4")
        e("v_lshl_add_u32 v19, v1, 8, v19")
        e("s_lshl_b32 s93, s19, 10")
        e("v_add_u32 v19, s93, v19")
        e("s_lshl_b32 s31, s19, 2")
        e("v_add_u32 v5, s31, v1")
        e("v_xor_b32 v6, v2, v5")
        e("v_lshlrev_b32 v6, 4, v6")
        e("v_lshl_add_u32 v20, v5, 8, v6")
    def kload(kts):
        for kt in kts:
            for b in range(2):
                e(f"s_add_u32 m0, s93, {kpos(kt) + b*4096}")
                e(f"s_mov_b32 s90, {b*32*24576 + kt*4096}")
                vm.issue(f"buffer_load_dwordx4 v20, s[40:43], s90 offen{cfg.nt_k} lds", "k")
    def vload(b):
        for n in range(6):
            e(f"s_add_u32 m0, s93, {(V1B if b else V0B) + n*4096}")
            e(f"s_mov_b32 s90, {b*32*24576 + n*4096}")
            vm.issue(f"buffer_load_dwordx4 v19, s[44:47], s90 offen{cfg.nt_v} lds", "v")
    VR = 80
    def vreg():
        for n in range(6):
            e(f"s_mov_b32 s90, {n*4096}")
            vm.issue(f"buffer_load_dwordx4 {vr(VR+4*n,4)}, v19, s[44:47], s90 offen{cfg.nt_v}", "vr")
    def late_vw(k):
        cmt("V tile that was staged in registers (s100 = 1) goes to LDS now")
        e("s_cmp_eq_u32 s100, 0")
        e(f"s_cbranch_scc1 L_NOVW{k}")
        e(f"s_add_u32 s90, s93, {V0B}")
        e("v_add_u32 v22, s90, v18")
        for n in range(6):
            e(f"ds_write_b128 v22, {vr(VR+4*n,4)} offset:{n*4096}")
        lab(f"L_NOVW{k}")

    def run_sched(sched):
        iv = [x.split() for x in sched.strip().split("/")]
        assert len(iv) == 12
        setup_done = False
        for i, toks in enumerate(iv):
            for tk in toks:
                if tk[0] != "S" and not setup_done:
                    kv_setup(); setup_done = True
                if tk[0] == "S":
                    n = int(tk[1:])
                    assert n <= max(2, i + 1)
                    stage(n)
                elif tk[0] == "K":
                    assert i <= 10 and ("5" not in tk or i >= 9)
                    kload([int(c) for c in tk[1:]])
                elif tk == "V0":
                    assert i >= 9; vload(0)
                elif tk == "V1":
                    assert i >= 10; vload(1)
                elif tk == "Va":
                    vreg()
                elif tk == "W0":
                    assert i == 11
                    vm.need("vr")
                    e("s_mov_b32 s100, 1")
                else:
                    assert False, tk
            if i == 0 and not setup_done:
                kv_setup(); setup_done = True
            if i < 10:
                vm.need(("st", i))
            if i == 10:
                vm.need("k")
            if i < 11:
                e(f"s_barrier                               ; B_{i}")
            if cfg.hst >= 2: continue
            if i < (10 if cfg.hst else 8): stamp(1 + i)
            if i == 10: stamp(11)

    scs = cfg.scheds.strip().split("|"); smap = cfg.smap.strip()
    smap = "".join(c * 8 for c in smap) if len(smap) == 4 else smap * (32 // len(smap))
    for k, sc in enumerate(scs):
        if k + 1 < len(scs):
            mask = sum(1 << r for r in range(32) if int(smap[r]) == k)
            e(f"s_bitcmp1_b32 {mask:#x}, s6")
            e(f"s_cbranch_scc0 L_H{k+1}")
        vm.pend = []
        run_sched(sc)
        if k + 1 < len(scs):
            e("s_branch L_HX")
            lab(f"L_H{k+1}")
    lab("L_HX")

    vm.pend = []
    ids()
    srd(48, 22, 0, 256)
    e("s_lshl_b32 s101, s99, 2")
    e("v_mov_b32 v9, 0")
    e("s_cmp_eq_u32 s94, 15")
    e("s_cbranch_scc1 L_H_NOP2")
    e("buffer_load_dwordx4 v[32:35], v9, s[48:51], s101 offen sc1")
    WO, OV = 24, 28
    e("s_mul_i32 s29, s98, 3")
    e("s_add_u32 s29, s29, s95")
    e("s_lshl_b32 s31, s29, 2")
    e(f"s_lshr_b32 s30, {sum(int(b) << (4*i) for i, b in enumerate(cfg.rtab.split(','))):#x}, s31")
    if cfg.nrot < 16:
        e("s_and_b32 s30, s30, 15")
    def stg(u):
        if cfg.nrot == 16:
            e(f"s_add_u32 s90, s30, {u}")
        elif u >= cfg.nrot:
            e(f"s_mov_b32 s90, {u}")
        else:
            e(f"s_add_u32 s90, s30, {u}")
            e(f"s_sub_u32 s91, s90, {cfg.nrot}")
            e("s_cselect_b32 s90, s90, s91")
    if cfg.rnt:
        e(f"s_mul_i32 s31, s96, {cfg.rnt}")
        e("s_add_u32 s30, s30, s31")
    e(f"s_mul_i32 s18, s97, {1024*1280}")
    e("s_lshl_b32 s31, s96, 8")
    e("s_add_u32 s18, s18, s31")
    e(f"s_sub_u32 s31, {4096*1280}, s18")
    srd(32, 16, "s18", "s31")
    e(f"s_mul_i32 s18, s3, {8*O_HEAD}")
    e("s_lshl_b32 s31, s29, 15")
    e("s_add_u32 s18, s18, s31")
    e(f"s_add_u32 s18, s18, {O_OFF - 4096}")
    srd(36, 24, "s18", 8*O_HEAD)
    e("s_lshl_b32 s31, s19, 4")
    e("v_add_u32 v5, s31, v1")
    e("v_mul_u32_u24 v5, 1280, v5")
    e(f"v_add_u32 v{WO}, v5, v4")
    e("v_xor_b32 v6, 128, v4")
    e("v_add_u32 v6, v5, v6")
    e(f"v_add_u32 v{WO+1}, {4*1280-1024}, v6")
    e(f"v_add_u32 v{WO+2}, {2*(4*1280-1024)}, v{WO}")
    e(f"v_add_u32 v{WO+3}, {3*(4*1280-1024)}, v6")
    def wdma(u, ts=range(4)):
        stg(u)
        if cfg.nrot == 16:
            e("s_and_b32 s90, s90, 15")
        e(f"s_add_u32 m0, s89, {WSL[u % 7]}")
        e("s_mul_i32 s90, s90, 81920")
        for t in ts:
            vm.issue(f"buffer_load_dwordx4 v{WO+t}, s[32:35], s90 offen offset:{t*1024}{cfg.nt_wo if u < cfg.ntw else ''} lds", ("w", u))
    def o_setup():
        for j in range(4):
            e(f"s_add_u32 s31, s97, {j}")
            e("s_and_b32 s31, s31, 3")
            e(f"s_add_u32 s31, s31, {4-j}")
            e("s_lshl_b32 s31, s31, 10")
            e("s_add_u32 s31, s31, s89")
            e(f"v_add_u32 v{OV+j}, s31, v18")
        e("s_and_b32 s88, s19, 1")
        e("s_lshl_b32 s88, s88, 12")
        e("s_cmp_ge_u32 s19, 2")
        e(f"s_mov_b32 s31, {V1B}")
        e(f"s_cselect_b32 s31, {V0B}, s31")
        e("s_add_u32 s88, s88, s31")
    def cleared(k):
        cmt("the flag lines of all four head groups must have been cleared in this launch")
        e(f"s_mov_b32 s31, {cfg.spin}")
        lab(f"L_CNT{k}")
        e("v_and_b32 v32, v32, v33")
        e("v_and_b32 v34, v34, v35")
        e("v_and_b32 v32, v32, v34")
        e("s_sub_u32 s31, s31, 1")
        e("v_readfirstlane_b32 s29, v32")
        e(f"s_cbranch_scc1 L_CNTOK{k}")
        e("s_cmp_eq_u32 s29, 1")
        e(f"s_cbranch_scc1 L_CNTOK{k}")
        e("buffer_load_dwordx4 v[32:35], v9, s[48:51], s101 offen sc1")
        e("s_waitcnt vmcnt(0)")
        e(f"s_branch L_CNT{k}")
        lab(f"L_CNTOK{k}")
    plans = [tuple(int(x) for x in p.split(",")) for p in cfg.wp.strip().split("/")]
    if plans[0] == plans[1]:
        plans = plans[:1]
    else:
        e("s_cmp_lg_u32 s98, 0")
        e("s_cbranch_scc1 L_WP1")
    for k, (a, b) in enumerate(plans):
        assert a <= 4 and a <= b <= cfg.wpoll
        vm.pend = []
        if k:
            lab("L_WP1")
        for u in range(a):
            wdma(u)
        if cfg.vwm:
            o_setup()
        if cfg.vwm == 2:
            e(f"s_waitcnt vmcnt({4*a})")
        late_vw(k)
        e(f"s_waitcnt vmcnt({4*a}) lgkmcnt(0)")
        cleared(k)
        e("s_barrier")
        for u in range(a, b):
            wdma(u)
        if not cfg.vwm:
            o_setup()
        e("s_barrier")
        for u in range(b, cfg.wpoll):
            wdma(u)
        if k + 1 < len(plans):
            e("s_branch L_WP2")
    lab("L_WP2")
    if not cfg.hst: stamp(9)
    def oaddr(u):
        stg(u)
        e("s_bfe_u32 s91, s90, 0x30001")
        e("s_and_b32 s90, s90, 1")
        e(f"s_mul_i32 s91, s91, {O_HEAD}")
        e("s_lshl_b32 s90, s90, 14")
        e(f"s_add_u32 m0, s88, {(u % 3)*8192}")
        e("s_add_u32 s90, s90, s91")
    def oissue(u):
        for j in range(1 if (cfg.late0 and 16 - cfg.ndef <= u <= 13) else 0, 4):
            vm.issue(f"buffer_load_dwordx4 v{OV+j}, s[36:39], s90 offen offset:{j*1024}{cfg.o_ld} lds", ("o", u))
    oaddr(0)
    vm.need(*[("w", u) for u in range(cfg.prea)])
    e("s_barrier")
    if not cfg.hst: stamp(10)
    oissue(0)
    oaddr(1)
    wq = [(u, t) for u in range(cfg.wpoll, 16) for t in range(4)]
    wts = [0 if (i < cfg.wfirst or i > cfg.wlast) else (100 if i <= 16 - cfg.ndef else cfg.wtail) for i in range(16)]
    R, done = len(wq), 0
    for i in range(16):
        if i + 1 < 16 and not cfg.weave:
            oissue(i + 1)
        tgt = -(-(sum(wts[:i+1]) * R) // sum(wts))
        if cfg.wcnt:
            tgt = sum(int(c) for c in cfg.wcnt.strip()[:i+1])
        tgt = max(tgt, sum(1 for (u, t) in wq if u <= i + 1))
        tgt = min(tgt, sum(1 for (u, t) in wq if u <= max(6 + (cfg.prea if i >= 1 else 0), i + 5)))
        grp = wq[done:tgt]; done = max(done, tgt)
        if cfg.weave and i + 1 < 16:
            assert cfg.nrot == 16
            us = sorted(set(g[0] for g in grp))
            sal = []
            for k, u in enumerate(us):
                sal += [f"s_add_u32 s{44+k}, s30, {u}", f"s_and_b32 s{44+k}, s{44+k}, 15", f"s_mul_i32 s{44+k}, s{44+k}, 81920"]
            if i + 2 < 16:
                sal += [f"s_add_u32 s42, s30, {i+2}", "s_bfe_u32 s43, s42, 0x30001", "s_and_b32 s42, s42, 1",
                        f"s_mul_i32 s43, s43, {O_HEAD}", "s_lshl_b32 s42, s42, 14"]
            per = -(-len(sal) // 3)
            for j in range(4):
                vm.issue(f"buffer_load_dwordx4 v{OV+j}, s[36:39], s90 offen offset:{j*1024}{cfg.o_ld} lds", ("o", i + 1))
                for x in sal[per*j:per*(j+1)] if j < 3 else []:
                    e(x)
            nxt = ["s_add_u32 s90, s42, s43"] if i + 2 < 16 else []
            for k, u in enumerate(us):
                e(f"s_add_u32 m0, s89, {WSL[u % 7]}")
                e(nxt.pop() if nxt else "s_nop 0")
                for t in [t for (uu, t) in grp if uu == u]:
                    vm.issue(f"buffer_load_dwordx4 v{WO+t}, s[32:35], s{44+k} offen offset:{t*1024}{cfg.nt_wo} lds", ("w", u))
            for x in nxt:
                e(x)
            if i + 2 < 16:
                e(f"s_add_u32 m0, s88, {((i+2) % 3)*8192}")
            grp = []
        for u in sorted(set(g[0] for g in grp)):
            wdma(u, [t for (uu, t) in grp if uu == u])
        if i + 2 < 16 and not cfg.weave:
            oaddr(i + 2)
            if cfg.late0 and 16 - cfg.ndef <= i + 2 <= 13:
                e(f"s_mov_b32 s{42 + i + 2 - (16 - cfg.ndef)}, s90")
        if cfg.late0 == 2 and i == 15:
            for k in range(cfg.ndef - 2):
                if k:
                    e("s_add_u32 m0, m0, 1024")
                    e("s_nop 0")
                vm.issue(f"buffer_load_dwordx4 v{OV}, s[36:39], s{42+k} offen{cfg.o_ld} lds", "late")
        if cfg.late0 and i == 16 - cfg.late0:
            e(f"s_add_u32 m0, s88, {(16 % 3)*8192}")
        vm.need(("o", i), ("w", i))
        e(f"s_barrier                               ; C_{i}")
        if cfg.late0 and i == 15:
            for k in range(cfg.ndef - 2 if cfg.late0 == 1 else 0):
                if k:
                    e("s_add_u32 m0, m0, 1024")
                    e("s_nop 0")
                e(f"buffer_load_dwordx4 v{OV}, s[36:39], s{42+k} offen{cfg.o_ld} lds")
            e("s_waitcnt vmcnt(0)")
            e("s_barrier                               ; C_16")
        if cfg.hst == 2:
            if i >= 2: stamp(i - 1)
            continue
        if cfg.hst == 4:
            if i in (0, 1, 2, 3, 13, 14, 15): stamp(1 + (0, 1, 2, 3, 13, 14, 15).index(i))
            continue
        if i == 0: stamp(12)
        if i == 4: stamp(13)
        if i == 15: stamp(14)
    assert done == R
    e("s_branch L_FIN")
    lab("L_H_NOP2")
    if cfg.nrot < 16:
        cmt("no tile: pull the wo rows of the last stages into L2 for the other workgroups (one dword per line, values unused)")
        total = (16 - cfg.nrot) * 81920
        npc = -(-total // 32768)
        e(f"s_mul_i32 s18, s97, {1024*1280}")
        e(f"s_add_u32 s18, s18, {cfg.nrot*81920}")
        srd(32, 16, "s18", total)
        e("s_lshl_b32 s31, s19, 13")
        e("v_lshl_add_u32 v24, v0, 7, s31")
        e(f"s_mul_i32 s90, s98, {cfg.lead0*32768}")
        e(f"s_mul_i32 s91, s98, {(npc - cfg.lead0)*32768}")
        e(f"s_add_u32 s91, s91, {cfg.lead0*32768}")
        for k in range(cfg.lpre):
            e("buffer_load_dword v25, v24, s[32:35], s90 offen")
            e("s_add_u32 s90, s90, 32768")
        e(f"s_waitcnt vmcnt({cfg.lpre})")
        e("s_mov_b32 s88, s90")
        late_vw(9)
        e("s_waitcnt lgkmcnt(0)")
        e("s_barrier                               ; B_11")
        e("s_barrier                               ; E")
        lab("L_LEAD")
        e("s_cmp_ge_u32 s88, s91")
        e("s_cbranch_scc1 L_FIN")
        e("buffer_load_dword v25, v24, s[32:35], s88 offen")
        e("s_add_u32 s88, s88, 32768")
        e("s_branch L_LEAD")
        return
    late_vw(9)
    e("s_waitcnt vmcnt(0) lgkmcnt(0)")
    e("s_barrier                               ; B_11")
    e("s_barrier                               ; E")
    e("s_branch L_FIN")

def compute():
    lab("L_COMPUTE")
    lg = Counter(A, "lgkmcnt", 15)
    AB = 96
    BB = [128, 152]
    AA = 176
    BA = 184
    KA, FONE, FOFF, LANE, OA, VA0 = 186, 252, 253, 254, 190, 191
    KB = [192, 208, 96]
    T0 = 224
    acc = lambda T, j: (T*3+j)*4
    if cfg.prio:
        e(f"s_setprio {cfg.prio}")
    e(f"v_mov_b32 v{LANE}, v0")
    e(f"v_lshrrev_b32 v{T0}, 4, v0")
    e(f"v_and_b32 v{T0+1}, 15, v0")
    e(f"v_bfe_u32 v{T0+2}, v0, 2, 2")
    e(f"v_and_b32 v{T0+3}, 3, v0")
    ids()
    e("s_add_u32 s29, s99, s97")
    e("s_lshl_b32 s101, s29, 2")
    e(f"s_mul_i32 s43, s29, {2*FG}")
    e("s_lshr_b32 s29, s94, 3")
    e(f"s_mul_i32 s29, s29, {FG}")
    e("s_lshl_b32 s39, s27, 10")
    e("s_add_u32 s39, s39, s29")
    e("s_add_u32 s100, s43, s39")
    e(f"v_mov_b32 v{T0+8}, 0")
    e(f"v_mov_b32 v{FONE}, 1")
    e(f"v_lshlrev_b32 v{T0+10}, 7, v0")
    e("s_lshl4_add_u32 s93, s7, s94")
    e("s_waitcnt lgkmcnt(0)")
    if cfg.touch:
        cmt("address-translation warm-up: one scalar load per region used later (values unused)")
        def touch(lo, *terms):
            first = True
            for reg, mul in terms:
                if reg is None:
                    e(f"s_add_u32 s18, s18, {mul}" if not first else f"s_mov_b32 s18, {mul}")
                elif first:
                    e(f"s_mul_i32 s18, s{reg}, {mul}")
                else:
                    e(f"s_mul_i32 s19, s{reg}, {mul}")
                    e("s_add_u32 s18, s18, s19")
                first = False
            e(f"s_load_dword s92, s[{lo}:{lo+1}], s18")
        e("s_and_b32 s5, s7, 1")
        touch(14, (7, 1536*1024), (26, 256))
        e("s_cmp_ge_u32 s7, 2")
        e("s_cbranch_scc1 L_TOUCH2")
        touch(10, (28, 64*24576), (26, 24576), (5, 32*24576))
        touch(16, (97, 1024*1280), (5, 1024*1280 - 64))
        if cfg.touch > 1:
            touch(24, (3, 8*O_HEAD), (5, 8*O_HEAD - 64), (None, O_OFF))
            touch(24, (None, FLAG_SZ))
        e("s_branch L_TOUCH3")
        lab("L_TOUCH2")
        touch(12, (28, 64*24576), (26, 24576), (5, 32*24576))
        if cfg.touch > 1:
            touch(24, (99, 15*4*P_W), (94, 16*P_W), (5, 16*P_W - 64), (None, PART_OFF))
            touch(20, (5, 768*2560 - 64))
        lab("L_TOUCH3")
    srd(44, 24, 0, FLAG_SZ)
    srd(48, 22, 0, 256)
    e("s_cmp_lg_u32 s93, 15")
    e("s_cbranch_scc1 L_NOCLR")
    e("s_mov_b32 exec_lo, 0x1f1f1f1f")
    e("s_mov_b32 exec_hi, 0x1f1f1f1f")
    for k in range(2*FG // 8192):
        e(f"s_add_u32 s31, s43, {k*8192}")
        e(f"buffer_store_dword v{T0+8}, v{T0+10}, s[44:47], s31 offen sc1")
    e("s_mov_b64 exec, -1")
    lab("L_NOCLR")
    if cfg.dry:
        cmt("instruction-cache warm-up: one pass through the Q loop with EXEC = 0 (LDS and matrix instructions only; results discarded)")
        e(f"s_bitcmp1_b32 {cfg.dry}, s7")
        e("s_cbranch_scc0 L_DRYDONE")
        for i in range(BB[0], BA + 2):
            e(f"v_mov_b32 v{i}, 0")
        e("s_mov_b32 s29, 0")
        e("s_mov_b64 exec, 0")
        e("s_branch L_QLOOP")
        lab("L_DRYDONE")
        e("s_mov_b64 exec, -1")
        e("s_nop 7")
        e(f"v_mov_b32 v0, v{LANE}")
    e(f"v_lshl_add_u32 v{T0+4}, v{T0}, 3, v{T0+2}")
    e(f"v_lshlrev_b32 v{T0+4}, 8, v{T0+4}")
    e(f"v_lshl_add_u32 v{T0+4}, v{T0+3}, 3, v{T0+4}")
    e(f"v_add_u32 v{T0+4}, {XB}, v{T0+4}")
    e(f"v_and_b32 v{T0+5}, 1, v{T0}")
    e(f"v_lshl_add_u32 v{T0+5}, v{T0+5}, 2, v{T0+2}")
    for T in range(8):
        e(f"v_xor_b32 v{T0+6}, {T}, v{T0+5}")
        e(f"v_lshl_add_u32 v{AA+T}, v{T0+6}, 5, v{T0+4}")
    e(f"v_and_b32 v{T0+6}, 6, v{T0+1}")
    e(f"v_xor_b32 v{T0+6}, v{T0+6}, v{T0}")
    e(f"v_lshlrev_b32 v{T0+6}, 4, v{T0+6}")
    e(f"v_lshl_add_u32 v{T0+6}, v{T0+1}, 7, v{T0+6}")
    e(f"s_mul_i32 s29, s7, {48*128}")
    e(f"v_add_u32 v{BA}, s29, v{T0+6}")
    e(f"v_xor_b32 v{BA+1}, 64, v{BA}")
    e("s_lshr_b32 s19, s7, 1")
    e("s_lshl_b32 s29, s19, 12")
    e(f"s_add_u32 s29, s29, {K0B}")
    e(f"v_lshrrev_b32 v{T0+6}, 1, v{T0}")
    e(f"v_xor_b32 v{T0+6}, v{T0+6}, v{T0+1}")
    e(f"v_lshlrev_b32 v{T0+6}, 4, v{T0+6}")
    e(f"v_lshl_add_u32 v{T0+6}, v{T0+1}, 8, v{T0+6}")
    e(f"v_and_b32 v{T0+7}, 1, v{T0}")
    e(f"v_lshl_add_u32 v{T0+6}, v{T0+7}, 3, v{T0+6}")
    e(f"v_add_u32 v{KA}, s29, v{T0+6}")
    e(f"v_lshrrev_b32 v{T0+6}, 2, v0")
    e(f"v_and_b32 v{T0+7}, 7, v{T0+6}")
    e(f"v_lshlrev_b32 v{T0+6}, 8, v{T0+6}")
    e(f"v_lshl_add_u32 v{T0+6}, v{T0+7}, 5, v{T0+6}")
    e(f"v_lshl_add_u32 v{T0+6}, v{T0+3}, 3, v{T0+6}")
    e("s_cmp_eq_u32 s19, 0")
    e(f"s_mov_b32 s29, {V1B}")
    e(f"s_cselect_b32 s29, {V0B}, s29")
    e(f"v_add_u32 v{VA0}, s29, v{T0+6}")
    e(f"v_lshlrev_b32 v{OA}, 4, v0")
    e("s_lshl_b32 s30, s7, 7")
    e(f"v_lshl_add_u32 v{FOFF}, v0, 13, s30")
    for i in range(96):
        e(f"v_mov_b32 v{i}, 0")
    e("s_lshl_b32 s29, s4, 5")
    e("s_add_u32 s29, s29, s26")
    e(f"s_mul_i32 s29, s29, {O_HEAD}")
    e(f"s_add_u32 s29, s29, {O_OFF}")
    srd(32, 24, "s29", O_HEAD)
    e("s_mul_i32 s29, s28, 12")
    e("s_mul_i32 s31, s7, 3")
    e("s_add_u32 s29, s29, s31")
    for j in range(3):
        e(f"s_add_u32 s31, s29, {j}")
        e("s_lshr_b32 s18, s31, 3")
        e("s_lshl_b32 s18, s18, 15")
        e("s_and_b32 s31, s31, 7")
        e("s_lshl_b32 s31, s31, 10")
        e(f"s_add_u32 s{40+j}, s31, s18")
    e(f"s_mul_i32 s18, s99, {2*FG}")
    e("s_add_u32 s18, s18, s39")
    e("s_add_u32 s18, s18, s30")
    e("s_add_u32 s18, s18, 128")
    e("s_add_u32 s8, s24, s18")
    e("s_addc_u32 s9, s25, 0")
    e("s_lshl_b32 s18, s7, 11")
    e("s_add_u32 s18, s18, s43")
    e("s_add_u32 s10, s24, s18")
    e("s_addc_u32 s11, s25, 0")
    e("s_cmp_eq_u32 s95, 2")
    e(f"s_cselect_b32 s12, {FG}, 0")
    e("s_cmp_lg_u32 s93, 15")
    e("s_cbranch_scc1 L_NOCLR2")
    e("s_waitcnt vmcnt(0)")
    e("s_mov_b64 exec, 1")
    e(f"buffer_store_dword v{FONE}, v{T0+8}, s[48:51], s101 offen sc1")
    e("s_mov_b64 exec, -1")
    lab("L_NOCLR2")

    def a_rd(T):
        return [(f"ds_read_b64_tr_b16 {vr(AB + (T & 3)*8 + s*4 + h*2, 2)}, v{AA+T} offset:{s*8192 + h*1024}", ("A", T & 3, s))
                for s in range(2) for h in range(2)]
    def b_rd(j, s, par):
        return (f"ds_read_b128 {vr(BB[par]+(j*2+s)*4,4)}, v{BA+s} offset:{j*2048}", ("B", par, j, s))
    def head_reads(par):
        a0 = a_rd(0)
        return [a0[0], a0[1], b_rd(0,0,par), a0[2], a0[3], b_rd(0,1,par), b_rd(1,0,par), b_rd(1,1,par),
                b_rd(2,0,par), b_rd(2,1,par)] + a_rd(1)
    def k_rd(kt):
        return [(f"ds_read_b64 {vr(KB[kt%3]+4*s+2*h,2)}, v{AA+2*s+h} offset:{kpos(kt) - K0B}", ("K", kt % 3, s))
                for s in range(4) for h in range(2)]
    def cvtq(s):
        return [x for j in range(3) for x in cvt4(acc(2*s, j), acc(2*s, j), acc(2*s+1, j))]
    def emit(x):
        if isinstance(x, tuple):
            lg.issue(x[0], x[1])
        else:
            e(x)
    def qstage(par, last=False, exit_label=None):
        att = {n: [] for n in range(48)}
        for T, n0 in ((2,0),(3,4),(4,8),(5,12),(6,18),(7,24)):
            for k, r in enumerate(a_rd(T)):
                att[n0+k].append(r)
        if not last:
            adv = [f"v_add_u32 v{AA+T}, s30, v{AA+T}" for T in range(8)] + [f"v_add_u32 v{BA+s}, s30, v{BA+s}" for s in range(2)]
            for k, x in enumerate(adv):
                att[28 + k//2].append(x)
            att[16] += ["s_mov_b32 s30, s88", "s_mov_b32 s88, s89"]
            att[17] += ["s_mov_b32 s89, s90", "s_mov_b32 s90, s30"]
            if par == 0:
                att[22].append("s_add_u32 s29, s29, 1")
                att[23].append("s_cmp_eq_u32 s29, 5")
            for k, r in enumerate(head_reads(par ^ 1)):
                att[34+k].append(r)
        else:
            for k in range(8):
                att[(4, 5, 8, 9, 12, 16, 22, 28)[k]].append(f"v_xor_b32 v{AA+k}, {32*k}, v{KA}")
            for k, r in enumerate(k_rd(0) + k_rd(1)[:4]):
                att[min(47, cfg.kbar + 1 + k//2)].append(r)
            for k, x in enumerate(cvtq(0)):
                att[(16, 17, 17, 18, 19, 20, 21, 22, 23, 23, 24, 25)[k]].append(x)
            for k, x in enumerate(cvtq(1)):
                att[(26, 27, 28, 29, 29, 30, 30, 31, 31, 32, 32, 33)[k]].append(x)
            for k, x in enumerate(cvtq(2)):
                att[40 + (k*2)//3].append(x)
        for n in range(48):
            T, j, s = n//6, (n % 6)//2, n % 2
            if cfg.snake:
                s ^= (n // 2) & 1
                if cfg.snake == 2 and T & 1 and not last: j = 2 - j
            if n % 6 == 0:
                lg.need(("A", T & 3, 0), ("A", T & 3, 1), *([("B", par, 0, 0), ("B", par, 0, 1)] if T == 0 else []))
            if T == 0 and n == 2:
                lg.need(*[("B", par, jj, ss) for jj in (1, 2) for ss in (0, 1)])
            e(mfma(acc(T, j), AB + (T & 3)*8 + s*4, BB[par] + (j*2+s)*4))
            for x in att[n]:
                emit(x)
            if cfg.qn and (n * cfg.qn) // 48 != ((n + 1) * cfg.qn) // 48:
                e("s_nop 5")
            if n == (cfg.kbar if last else 33):
                lg.drain()
                if cfg.dry and not last:
                    e(f"s_cbranch_execz L_QB{par}")
                e("s_barrier                               ; B_{i+1}: this stage read, next one (or K) landed")
                if cfg.dry and not last:
                    lab(f"L_QB{par}")
        if exit_label:
            e(f"s_cbranch_scc1 {exit_label}")

    e("s_mov_b32 s29, 0")
    e(f"s_mov_b32 s88, {2*SLOT}")
    e(f"s_mov_b32 s89, {(-SLOT) & 0xffffffff}")
    e("s_mov_b32 s90, s89")
    e("s_barrier                               ; B_0")
    stamp(1)
    for r in head_reads(0):
        emit(r)
    lab("L_QLOOP")
    qstage(0, exit_label="L_QDONE")
    saved = [set(t) for t in lg.pend]
    qstage(1)
    if cfg.dry:
        e("s_cbranch_execnz L_QLOOP")
        e("s_branch L_DRYDONE")
    else:
        e("s_branch L_QLOOP")
    lab("L_QDONE")
    lg.pend = saved
    qstage(1, last=True)
    stamp(2)
    QB = lambda s, j: acc(2*s, j)
    sregs = [acc(T, j) for T in (1, 3, 5) for j in range(3)] + [BB[0] + 4*k for k in range(6)] + [acc(7, j) for j in range(3)]
    SS = lambda kt, j: sregs[kt*3 + j]
    M = T0
    vaddr = [f"v_xor_b32 v{AA+T}, {32*T}, v{VA0}" for T in range(8)]
    c = math.log2(math.e) / math.sqrt(128.0)
    cbits = struct.unpack("<I", struct.pack("<f", c))[0]
    ONES = T0 + 12
    for kt in range(6):
        lg.need(*[("K", kt % 3, s) for s in range(4)])
        order = [(j, s) for j in range(3) for s in range(4)] if kt else \
                [(j, s) for j in range(3) for s in range(3)] + [(j, 3) for j in range(3)]
        att = {n: [] for n in range(12)}
        rd = k_rd(kt + 2) if kt + 2 < 6 else []
        if kt == 0:
            for k, x in enumerate(k_rd(1)[4:]):
                att[k//2].append(x)
            for k, x in enumerate(cvtq(3)):
                att[2 + k//2].append(x)
            for k, x in enumerate(rd):
                att[8 + k//2].append(x)
        else:
            for k, x in enumerate(rd):
                att[k].append(x)
        if kt == 4:
            for k, x in enumerate(vaddr):
                att[(0, 0, 1, 1, 2, 2, 10, 10)[k]].append(x)
        if kt == 5:
            att[0] += [f"s_mov_b32 s30, {cbits:#x}", f"s_mov_b32 s31, {cbits:#x}"]
            for r in range(4):
                att[1 + r//2].append(f"v_mov_b32 v{ONES+r}, 0x3f803f80")
        if kt >= 1:
            for j in range(3):
                b = SS(kt-1, j)
                if kt == 1:
                    att[5 + 2*j] += [f"v_max3_f32 v{M+j}, v{b}, v{b+1}, v{b+2}"]
                    att[6 + 2*j] += [f"v_max_f32 v{M+j}, v{M+j}, v{b+3}"]
                else:
                    o = 6 if kt < 4 else 4
                    att[o + 2*j] += [f"v_max3_f32 v{M+j}, v{M+j}, v{b}, v{b+1}"]
                    att[o + 1 + 2*j] += [f"v_max3_f32 v{M+j}, v{M+j}, v{b+2}, v{b+3}"]
        if kt == 5:
            b = SS(5, 0)
            att[10] += [f"v_max3_f32 v{M}, v{M}, v{b}, v{b+1}"]
            att[11] += [f"v_max3_f32 v{M}, v{M}, v{b+2}, v{b+3}"]
        for n, (j, s) in enumerate(order):
            e(mfma(SS(kt, j), KB[kt % 3] + 4*s, QB(s, j), "0" if s == 0 else None))
            for x in att[n]:
                emit(x)
    b = SS(5, 1)
    e(f"v_mov_b32 v{M+4}, v{M}")
    e(f"v_max3_f32 v{M+1}, v{M+1}, v{b}, v{b+1}")
    e(f"v_max3_f32 v{M+1}, v{M+1}, v{b+2}, v{b+3}")
    e(f"v_permlane32_swap_b32 v{M}, v{M+4}")
    e(f"v_mov_b32 v{M+5}, v{M+1}")
    e(f"v_max_f32 v{M}, v{M}, v{M+4}")
    e(f"v_mov_b32 v{M+4}, v{M}")
    b = SS(5, 2)
    e(f"v_permlane32_swap_b32 v{M+1}, v{M+5}")
    e(f"v_max3_f32 v{M+2}, v{M+2}, v{b}, v{b+1}")
    e(f"v_max3_f32 v{M+2}, v{M+2}, v{b+2}, v{b+3}")
    e(f"v_permlane16_swap_b32 v{M}, v{M+4}")
    e(f"v_mov_b32 v{M+6}, v{M+2}")
    e(f"v_max_f32 v{M+1}, v{M+1}, v{M+5}")
    e(f"v_mov_b32 v{M+5}, v{M+1}")
    e(f"v_permlane32_swap_b32 v{M+2}, v{M+6}")
    e(f"v_max_f32 v{M}, v{M}, v{M+4}")
    e(f"v_permlane16_swap_b32 v{M+1}, v{M+5}")
    e(f"v_max_f32 v{M+2}, v{M+2}, v{M+6}")
    e(f"v_mov_b32 v{M+6}, v{M+2}")
    e(f"v_max_f32 v{M+1}, v{M+1}, v{M+5}")
    e("s_nop 0")
    e(f"v_permlane16_swap_b32 v{M+2}, v{M+6}")
    e(f"v_max_f32 v{M+2}, v{M+2}, v{M+6}")
    NM = T0 + 4
    for j in range(3):
        e(f"v_mul_f32 v{NM+2*j}, s30, v{M+j}")
    stamp(3)
    pregs = [BB[1] + 4*k for k in range(6)] + [AB + 4*k for k in range(3)]
    PB = lambda s, j: pregs[s*3 + j]
    LS = T0 + 16
    VB = [KB[0], KB[0]+12, AB+12]
    def v_rd(T):
        return [(f"ds_read_b64_tr_b16 {vr(VB[T%3]+4*s+2*h,2)}, v{AA+T} offset:{(32*s+16*h)*256}", ("V", T % 3))
                for s in range(3) for h in range(2)]
    def v_start():
        stamp(4)
        e("s_barrier                               ; B_11: V visible")
        stamp(5)
        for r in v_rd(0) + v_rd(1):
            emit(r)
    pend_m = []
    for s in range(3):
        for j in range(3):
            if cfg.vbar and s*3 + j == 9 - cfg.vbar:
                v_start()
            for kt in (2*s, 2*s+1):
                b = SS(kt, j)
                for h in range(2):
                    e(f"v_pk_fma_f32 {vr(b+2*h,2)}, {vr(b+2*h,2)}, s[30:31], {vr(NM+2*j,2)} op_sel_hi:[1,1,0] neg_lo:[0,0,1] neg_hi:[0,0,1]")
            if pend_m:
                e(pend_m.pop())
            for kt in (2*s, 2*s+1):
                b = SS(kt, j)
                for r in range(4):
                    e(f"v_exp_f32 v{b+r}, v{b+r}")
            for x in cvt4(PB(s, j), SS(2*s, j), SS(2*s+1, j)):
                e(x)
            pend_m.append(mfma(LS+4*j, ONES, PB(s, j), "0" if s == 0 else None))
    if not cfg.vbar:
        v_start()
        e(pend_m.pop())
    RC = T0 + 4
    def epi(s, pk=False):
        r = []
        for j in range(3):
            a0, a1 = acc(2*s, j), acc(2*s+1, j)
            for a in (a0, a1):
                if pk:
                    r += [f"v_pk_mul_f32 {vr(a+2*h,2)}, {vr(a+2*h,2)}, {vr(RC+2*j,2)} op_sel_hi:[1,0]" for h in range(2)]
                else:
                    r += [f"v_mul_f32 v{a+k}, v{a+k}, v{RC+2*j}" for k in range(4)]
            r += cvt4(a0, a0, a1)
            r.append(f"buffer_store_dwordx4 {vr(a0,4)}, v{OA}, s[32:35], s{40+j} offen{cfg.o_st}")
        if s < 3:
            r.append(f"v_add_u32 v{OA}, 8192, v{OA}")
        return r
    backlog = []
    for T in range(8):
        lg.need(("V", T % 3))
        rd = v_rd(T+2) if T + 2 < 8 else []
        if T == 1:
            backlog += [f"v_rcp_f32 v{RC+2*j}, v{LS+4*j}" for j in range(3)]
        n = 0
        for j in range(3):
            for s in range(3):
                e(mfma(acc(T, j), VB[T % 3] + 4*s, PB(s, j), "0" if s == 0 else None))
                if pend_m and n == 1:
                    e(pend_m.pop())
                k = 0
                if rd:
                    emit(rd.pop(0)); k += 1
                if T >= 2 and T % 2 == 0 and n == 1:
                    backlog += epi(T//2 - 1)
                while backlog and k < 2:
                    e(backlog.pop(0)); k += 1
                n += 1
    for x in backlog:
        e(x)
    stamp(6)
    for x in epi(3, True):
        e(x)
    stamp(7)
    PA = [64, 96]; PBb = [128, 160]
    QA, QB2 = 192, 204
    T1 = 206
    HOLD = 212
    e(f"v_lshrrev_b32 v{T1+2}, 2, v{LANE}")
    e(f"v_and_b32 v{T1+3}, 7, v{T1+2}")
    e("s_and_b32 s29, s7, 1")
    e("s_lshl_b32 s30, s29, 2")
    e(f"v_xor_b32 v{T1+3}, s30, v{T1+3}")
    e(f"v_lshlrev_b32 v{T1+2}, 8, v{T1+2}")
    e(f"v_lshl_add_u32 v{T1+2}, v{T1+3}, 5, v{T1+2}")
    e(f"v_and_b32 v{T1+3}, 3, v{LANE}")
    e(f"v_lshl_add_u32 v{T1+2}, v{T1+3}, 3, v{T1+2}")
    for T in range(4):
        e(f"v_xor_b32 v{QA+T}, {32*T}, v{T1+2}")
        e(f"v_add_u32 v{QA+4+T}, {WSL[3]}, v{QA+T}")
        e(f"v_add_u32 v{QA+8+T}, {WSL[4]}, v{QA+T}")
    e(f"v_lshlrev_b32 v{T1}, 4, v{LANE}")
    e("s_lshl_b32 s30, s19, 12")
    e(f"s_add_u32 s30, s30, {V1B}")
    e(f"v_add_u32 v{QB2}, s30, v{T1}")
    e(f"v_add_u32 v{QB2+1}, {V0B - V1B}, v{QB2}")
    nd = 2 if cfg.dup else 1
    fl = [[13, 14, 15, 16], [17, 18, 88, 89]]
    e("s_cmp_lg_u32 s95, 1")
    e("s_cselect_b32 s15, 1, 0")
    e("s_mov_b32 s16, s15")
    e("s_mov_b32 s13, 0")
    e("s_mov_b32 s14, 0")
    if cfg.dup:
        for r in fl[1]:
            e(f"s_mov_b32 s{r}, 0")
    e(f"s_mov_b32 s31, {cfg.spin}")
    e("s_cmp_eq_u32 s7, 0")
    e("s_cbranch_scc1 L_FLAG")
    e("s_waitcnt vmcnt(0)")
    stamp(8)
    e("s_barrier                               ; E")
    e("s_branch L_NOFLAG")
    lab("L_FLAG")
    e(f"s_mov_b64 exec, {3 if cfg.dup else 1}")
    e("s_waitcnt vmcnt(0)")
    stamp(8)
    e("s_barrier")
    e(f"buffer_store_dword v{FONE}, v{FOFF}, s[44:47], s100 offen sc1")
    e("s_mov_b64 exec, -1")
    lab("L_NOFLAG")
    e("s_cmp_eq_u32 s94, 15")
    e("s_cbranch_scc1 L_FIN")
    lab("L_POLL")
    for k in range(4):
        e(f"s_cmp_lg_u32 s{fl[0][k]}, 0")
        e(f"s_cbranch_scc1 L_PS{k}")
        for d in range(nd):
            if k < 2:
                e(f"s_load_dword s{fl[d][k]}, s[10:11], s12 offset:{k*1024 + d*8192} glc")
            else:
                e(f"s_load_dword s{fl[d][k]}, s[10:11], {FG + (k-2)*1024 + d*8192} glc")
        lab(f"L_PS{k}")
    e("s_sub_u32 s31, s31, 1")
    e("s_cbranch_scc1 L_GO")
    e("s_waitcnt lgkmcnt(0)")
    if cfg.dup:
        for k in range(4):
            e(f"s_or_b32 s{fl[0][k]}, s{fl[0][k]}, s{fl[1][k]}")
    e("s_and_b32 s5, s13, s14")
    e("s_and_b32 s30, s15, s16")
    e("s_and_b32 s5, s5, s30")
    e("s_cbranch_scc0 L_POLL")
    lab("L_GO")
    e("s_barrier                               ; D")
    e("s_waitcnt lgkmcnt(0)")
    e("s_mul_i32 s18, s99, 15")
    e("s_lshl2_add_u32 s18, s94, s18")
    e("s_lshl2_add_u32 s18, s18, s7")
    e(f"s_mul_i32 s18, s18, {P_W}")
    e(f"s_add_u32 s18, s18, {PART_OFF}")
    srd(32, 24, "s18", 16*P_W)
    for d in range(4):
        e(f"s_add_u32 s18, s97, {d}")
        e("s_and_b32 s18, s18, 3")
        e(f"s_mul_i32 s18, s18, {4*P_W}")
        e(f"s_add_u32 s{36+d}, s18, {max(d-1,0)*2048}")
        if d:
            e(f"s_sub_u32 s18, s97, {d}")
            e("s_and_b32 s18, s18, 3")
            e(f"s_mul_i32 s{88+d}, s18, {2*FG}")
    e("s_mul_i32 s18, s98, 3")
    e("s_add_u32 s18, s18, s95")
    e("s_lshl1_add_u32 s18, s18, s19")
    e("s_lshl2_add_u32 s18, s18, s97")
    e(f"s_mul_i32 s18, s18, {16*2560}")
    e("s_mul_i32 s30, s4, 1280")
    e("s_add_u32 s18, s18, s30")
    e("s_lshl1_add_u32 s30, s96, s29")
    e("s_lshl_b32 s30, s30, 7")
    e("s_add_u32 s18, s18, s30")
    e(f"s_sub_u32 s30, {768*2560}, s18")
    srd(40, 20, "s18", "s30")
    e(f"v_and_b32 v{T1+1}, 15, v{LANE}")
    e(f"v_mul_u32_u24 v{T1+1}, 2560, v{T1+1}")
    e(f"v_and_b32 v{T1+2}, 48, v{LANE}")
    e(f"v_add_u32 v{T1+1}, v{T1+1}, v{T1+2}")

    ND = cfg.ndef
    assert 2 <= ND <= 7
    pacc = lambda T, j: (T*4+j)*4
    def breg(u, j):
        if j == 0 and 16 - ND <= u < 14:
            return HOLD + 8*(u - (16 - ND))
        return PBb[u & 1] + j*8
    def pa_rd(u, T, buf):
        k = u % 7
        areg = QA + 4*(0 if k < 3 else 1 if k == 3 else 2)
        aoff = WSL[k] - (0 if k < 3 else WSL[3] if k == 3 else WSL[4])
        return [(f"ds_read_b64_tr_b16 {vr(PA[buf]+T*8+s*4+h*2,2)}, v{areg+T} offset:{aoff + (32*s+16*h)*256}", ("PA", buf, T))
                for s in range(2) for h in range(2)]
    def p_reads(u):
        b = u & 1
        bb = lambda j: [(f"ds_read_b128 {vr(breg(u, j)+s*4,4)}, v{QB2+s} offset:{(u%3)*8192 + j*1024}", ("PB", b, j)) for s in range(2)]
        if u < cfg.prea:
            return bb(0) + bb(1) + bb(2) + bb(3)
        if u >= 16 - ND:
            return pa_rd(u,0,b) + bb(1) + bb(2) + bb(3) + pa_rd(u,1,b) + pa_rd(u,2,b) + pa_rd(u,3,b) + bb(0)
        return pa_rd(u,0,b) + bb(0) + bb(1) + bb(2) + bb(3) + pa_rd(u,1,b) + pa_rd(u,2,b) + pa_rd(u,3,b)
    def pm(u, T, j, s, buf=None, first=False):
        return mfma(pacc(T, j), PA[u & 1 if buf is None else buf]+T*8+s*4, breg(u, j)+s*4, "0" if first else None)
    def send(d):
        r = []
        for Tp in range(2):
            a0 = pacc(2*Tp, d)
            r += cvt4(a0, a0, pacc(2*Tp+1, d))
            r.append(f"buffer_store_dwordx4 {vr(a0,4)}, v{T1}, s[32:35], s{36+d} offen offset:{Tp*1024}{cfg.p_st}")
        return r
    lg.pend = []
    for u in range(cfg.prea):
        for T in range(4):
            for r in pa_rd(u, T, u):
                emit(r)
    if cfg.prea:
        lg.drain()
    e("s_barrier                               ; C_0")
    stamp(9)
    for r in p_reads(0):
        emit(r)
    for u in range(15):
        b = u & 1
        rd = p_reads(u+1)
        if cfg.tail2 and u == 14:
            rd, late = rd[:14], rd[14:]
        if cfg.late0:
            assert cfg.tail2 and 3 <= ND <= 6 and not cfg.weave
            if 16 - ND <= u + 1 <= 14:
                rd = rd[:22]
            if u == 14:
                rd += p_reads(14)[22:]
        js = (1, 2, 3) if u >= 16 - ND else (0, 1, 2, 3)
        seq = [(T, j, s) for T in range(4) for j in (js[::-1] if (cfg.snake == 2 and T & 1) else js) for s in range(2)]
        if cfg.snake:
            seq = [(T, j, s ^ ((n // 2) & 1)) for n, (T, j, s) in enumerate(seq)]
        pb = min(cfg.pbar, 5) if len(js) == 3 else cfg.pbar
        for n, (T, j, s) in enumerate(seq):
            if u == 0:
                lg.need(("PA", b, T), ("PB", b, j))
            elif n == 0:
                lg.need(("PA", b, 0), *[("PB", b, jj) for jj in js])
            if cfg.late0 and len(js) == 3:
                if n % 6 == 0:
                    lg.need(("PA", b, T))
                e(pm(u, T, j, s))
                if n == 1:
                    e(f"s_barrier                               ; C_{u+1}")
                if n > 1 and rd:
                    emit(rd.pop(0))
                continue
            e(pm(u, T, j, s, first=(u == 0 and n % 2 == 0)))
            if n == pb:
                lg.drain()
                e(f"s_barrier                               ; C_{u+1}")
            if n > pb and rd:
                emit(rd.pop(0))
                if len(js) == 3 and n < pb + 9 and not (cfg.tail2 and u == 14):
                    emit(rd.pop(0))
        assert not rd
    seq = [(15, T, j, s) for j in (1, 2, 3) for T in range(4) for s in range(2)] + \
          [(uu, T, 0, s) for uu in (14, 15) for T in range(4) for s in range(2)]
    if cfg.tail2:
        seq = [(15, T, j, s) for Tp in range(2) for j in (1, 2, 3) for T in (2*Tp, 2*Tp+1) for s in range(2)] + seq[24:]
    if cfg.snake:
        seq = [(uu, T, j, s ^ ((n // 2) & 1)) for n, (uu, T, j, s) in enumerate(seq)]
    older = list(range(16 - ND, 14))
    fill = []
    for n, (uu, T, j, s) in enumerate(seq):
        if uu == 15 or not (cfg.late0 and n > 24):
            lg.need(("PA", 1, T), ("PB", uu & 1, j))
        e(pm(uu, T, j, s))
        if cfg.tail2:
            k = 0
            if late:
                emit(late.pop(0)); k += 1
            if n >= 6 and n % 4 == 2 and n <= 26:
                g = (n - 6) // 4
                fill += send(1 + g % 3)[5*(g // 3):5*(g // 3) + 5]
            if cfg.late0 and n == 29:
                assert not fill
                e("s_barrier                               ; C_16")
                fill += [(f"ds_read_b128 {vr(HOLD + 8*kk + 4*ss, 4)}, v{QB2+ss} offset:{(16 % 3)*8192 + kk*1024}", ("H", kk))
                         for kk in range(len(older)) for ss in range(2)]
            if cfg.late0 and n == 32:
                fill += [r for TT_ in range(4) for r in pa_rd(older[0], TT_, 0)]
            while fill and k < 2:
                emit(fill.pop(0)); k += 1
            continue
        if n in (9, 17, 25):
            fill += send(n // 8)
        if n >= 32 and older:
            fill += pa_rd(older[0], (n - 32)//2, 0)[2*(n & 1):2*(n & 1)+2]
        for _ in range(2):
            if fill:
                emit(fill.pop(0))
    if cfg.late0:
        while fill:
            emit(fill.pop(0))
    assert not fill and not (cfg.tail2 and older and not cfg.late0)
    def old_stage(k):
        for T in range(4):
            lg.need(("PA", k & 1, T), ("H", k))
            for s in range(2):
                e(pm(older[k], T, 0, s, k & 1))
                if k + 1 < len(older):
                    for r in pa_rd(older[k+1], T, (k+1) & 1)[2*s:2*s+2]:
                        emit(r)
    nbefore = min(len(older), cfg.nbef)
    for k in range(nbefore):
        old_stage(k)
    stamp(10)
    def p3_loads(d0):
        for dd in range(d0, 4):
            for d in range(nd):
                e(f"s_load_dword s{12+dd+3*d}, s[8:9], s{88+dd} offset:{d*8192} glc")
    if cfg.pp in (1, 2):
        p3_loads(1)
    e("s_add_u32 s37, s36, 4096")
    e(f"s_mov_b64 exec, {3 if cfg.dup else 1}")
    e("s_waitcnt vmcnt(0)")
    stamp(11)
    e(f"buffer_store_dword v{FONE}, v{FOFF}, s[44:47], s100 offen offset:128 sc1")
    e("s_mov_b64 exec, -1")
    if cfg.pp == 3:
        p3_loads(1)
    for k in range(nbefore, len(older)):
        old_stage(k)
    RB = 136
    if not cfg.pp:
        p3_loads(1)
    e("s_mov_b32 s30, 0xffff0000")
    e("s_waitcnt lgkmcnt(0)")
    for d in (1, 2, 3):
        e(f"s_mov_b32 s31, {cfg.spin}")
        lab(f"L_P3W{d}")
        if cfg.dup:
            e(f"s_or_b32 s5, s{12+d}, s{15+d}")
        else:
            e(f"s_cmp_lg_u32 s{12+d}, 0")
        e(f"s_cbranch_scc1 L_P3G{d}")
        p3_loads(d)
        e("s_sub_u32 s31, s31, 1")
        e(f"s_waitcnt lgkmcnt({4-d if cfg.pp == 2 else 0})")
        e(f"s_cbranch_scc0 L_P3W{d}")
        lab(f"L_P3G{d}")
        for f in (2*d - 2, 2*d - 1):
            e(f"buffer_load_dwordx4 {vr(RB+4*f,4)}, v{T1}, s[32:35], s{36 + f//4} offen offset:{(f%4)*1024}{cfg.p_ld}")
    stamp(12)
    TT = 168
    def finish(Tp):
        a0 = pacc(2*Tp, 0)
        for x in cvt4(a0, a0, pacc(2*Tp+1, 0)):
            e(x)
        e("s_nop 0")
        e(f"v_permlane32_swap_b32 v{a0}, v{a0+2}")
        e(f"v_permlane32_swap_b32 v{a0+1}, v{a0+3}")
        e("s_nop 0")
        e(f"v_permlane16_swap_b32 v{a0}, v{a0+2}")
        e(f"v_permlane16_swap_b32 v{a0+1}, v{a0+3}")
        e(f"buffer_store_dwordx4 {vr(a0,4)}, v{T1+1}, s[40:43], 0 offen offset:{Tp*64}{cfg.out_st}")
    for f in range(6):
        e(f"s_waitcnt vmcnt({5-f if f < 5 else 1})")
        Tp = f & 1
        for k in range(4):
            x = RB + 4*f + k
            e(f"v_lshlrev_b32 v{TT+2*k}, 16, v{x}")
            e(f"v_and_b32 v{TT+2*k+1}, s30, v{x}")
        for k in range(4):
            a = pacc(2*Tp + k//2, 0) + 2*(k & 1)
            e(f"v_pk_add_f32 {vr(a,2)}, {vr(a,2)}, {vr(TT+2*k,2)}")
        if f == 5: stamp(13)
        if f >= 4:
            finish(Tp)
    stamp(14)
    lab("L_FIN")
    if cfg.stamps:
        e("s_waitcnt vmcnt(0)")
        stamp(15)
        stamp_flush()
    lab("L_END")
    e("s_endpgm")

def kd(name):
    return f""".amdhsa_kernel {name}
  .amdhsa_next_free_vgpr 256
  .amdhsa_next_free_sgpr 102
  .amdhsa_accum_offset 256
  .amdhsa_group_segment_fixed_size 0
  .amdhsa_kernarg_size 104
  .amdhsa_user_sgpr_count 2
  .amdhsa_user_sgpr_kernarg_segment_ptr 1
  .amdhsa_system_sgpr_workgroup_id_x 1
.end_amdhsa_kernel
"""

prologue(); helper(); compute()
probs = check_hazards(A.L)
for p in probs:
    print("HAZARD:", p, file=sys.stderr)
K = NAME + "_kernel"
if cfg.diag:
    from diag import gen_diag
    hdr = (f"; diagnostic build\n; @launch kernel={K} grid=(256,1,1) block=(512,1,1) lds=163840\n"
           "; @launch kernel=d_kernel grid=(1,1,1) block=(256,1,1) lds=256\n")
else:
    hdr = open(os.path.join(os.path.dirname(os.path.abspath(__file__)), "header.txt")).read()
out = hdr + '.amdgcn_target "amdgcn-amd-amdhsa--gfx950"\n.text\n'
out += f".globl {K}\n.p2align 8\n.type {K},@function\n" + A.text()
if cfg.diag:
    out += ".globl d_kernel\n.p2align 8\n.type d_kernel,@function\n" + "\n".join(gen_diag(cfg.diag.strip(), STAMP_OFF)) + "\n"
out += '.section .rodata,"a"\n.p2align 6\n' + kd(K)
if cfg.diag:
    out += ".p2align 6\n" + kd("d_kernel")
open(sys.argv[1], "w").write(out)
sys.exit(1 if probs else 0)
```

```python
import sys, os, math, struct
sys.path.insert(0, os.path.dirname(os.path.abspath(__file__)))
from asmlib import *

NAME = "concat_heads__gqa_block_cached__mha_block_cached__near_ridge"

class Cfg:
    nt_x = ""; nt_wq = ""; nt_k = " nt"; nt_v = " nt"; nt_wo = ""
    o_st = " sc1"; o_ld = " sc1"; out_st = " sc1"; p_st = " sc1"; p_ld = " sc1"
    rot = 10246
    scheds = " S0 S1/S2/S3/S4/S5/S6/S7/S8/S9 K012/K345/V0/V1|S0 S1/S2/K012 S3/K34 Va S4/S5/S6/S7/S8/S9/K5/V1/W0"
    smap = " 0011"
    wp = " 2,2/2,2"
    wpoll = 7
    wfirst = 2
    wtail = 100
    rtab = " 0,3,5,8,11,13"
    rnt = 0
    vwm = 2
    prea = 2
    vbar = 0
    snake = 2
    nrot = 16
    lead0 = 9
    lpre = 1
    first = 1
    touch = 0
    dry = 0
    pp = 0
    skipown = 0
    ntq = 99
    ntw = 99
    weave = 0
    wcnt = " 0233333333322210"
    wlast = 14
    tail2 = 1
    kw = 0
    late0 = 2
    nbef = 2
    rbase = ""
    roff = ""
    hx = 0
    last = 0
    slowst = ""
    ndef = 6
    pbar = 5
    kbar = 33
    dup = 0
    cpf = 2
    prio = 1
    stamps = 0
    hst = 0
    spin = 1000000
    diag = ""
    qn = 0
cfg = Cfg()
for a in sys.argv[2:]:
    k, v = a.split("=")
    old = getattr(cfg, k)
    setattr(cfg, k, int(v) if isinstance(old, int) else ((" " + v.replace("+", " ")) if v else ""))

A = Asm()
e, lab, cmt = A.e, A.lab, A.cmt

STAMP_OFF = 64 << 20
FG = 16384 if cfg.dup else 8192
FLAG_SZ = 32 * FG
O_OFF = 1 << 20
O_HEAD = 196608
PART_OFF = 16 << 20
P_W = 6144
SLOT = 40960
XB = 24576
PHYS = [0, 2*SLOT, SLOT]
V1B, V0B, K0B = 49152, 90112, 114688
WSL = [0, 16384, 32768, 73728, 114688, 131072, 147456]
kpos = lambda kt: K0B + ((kt + 1) % 6) * 8192

def stamp(i):
    if cfg.stamps:
        e(f"{'s_memtime' if cfg.stamps == 2 else 's_memrealtime'} s[{52+2*i}:{53+2*i}]")
def stamp_flush():
    e(f"s_add_u32 s84, s24, {STAMP_OFF}")
    e("s_addc_u32 s85, s25, 0")
    e("s_mov_b32 s86, 0x100000")
    e("s_mov_b32 s87, 0x20000")
    e("s_lshl_b32 s92, s2, 3")
    e("s_add_u32 s92, s92, s7")
    e("s_lshl_b32 s92, s92, 6")
    e("s_waitcnt lgkmcnt(0)")
    e("v_mbcnt_lo_u32_b32 v251, -1, 0")
    e("v_lshlrev_b32 v251, 2, v251")
    for i in range(16):
        e(f"v_writelane_b32 v250, s{52+2*i}, {i}")
    e("s_mov_b64 exec, 0xffff")
    e("buffer_store_dword v250, v251, s[84:87], s92 offen sc1")

def srd(d, lo, off, size):
    e(f"s_add_u32 s{d}, s{lo}, {off}")
    e(f"s_addc_u32 s{d+1}, s{lo+1}, 0")
    e(f"s_mov_b32 s{d+2}, {size}")
    e(f"s_mov_b32 s{d+3}, 0x20000")

def cvt4(d, a0, a1):
    return [f"v_cvt_pk_bf16_f32 v{d}, v{a0}, v{a0+1}", f"v_cvt_pk_bf16_f32 v{d+1}, v{a0+2}, v{a0+3}",
            f"v_cvt_pk_bf16_f32 v{d+2}, v{a1}, v{a1+1}", f"v_cvt_pk_bf16_f32 v{d+3}, v{a1+2}, v{a1+3}"]

def prologue():
    lab(NAME + "_kernel")
    e("s_cmp_ge_u32 s2, 256")
    e("s_cbranch_scc1 L_END")
    e("s_and_b32 s3, s2, 7")
    e("s_lshr_b32 s4, s3, 2")
    e("s_mul_i32 s5, s4, 40")
    e("s_load_dwordx8 s[8:15], s[0:1], s5")
    e("s_load_dwordx2 s[16:17], s[0:1], s5 offset:32")
    e("s_load_dwordx4 s[20:23], s[0:1], 80")
    e("s_load_dwordx2 s[24:25], s[0:1], 96")
    if cfg.stamps:
        for i in range(1, 16):
            e(f"s_mov_b32 s{52+2*i}, 0")
    stamp(0)
    if cfg.kw:
        cmt("early vector read of the kernarg segment (value unused): starts the vector memory path before the pointers arrive")
        e("v_mov_b32 v233, 0")
        if cfg.kw == 1:
            e("s_mov_b64 exec, 1")
            e("global_load_dword v233, v233, s[0:1]")
        else:
            e(f"v_cmp_eq_u32 vcc, {0 if cfg.kw == 2 else 256}, v0")
            e("s_and_saveexec_b64 s[18:19], vcc")
            e("s_cbranch_execz L_NOKW")
            e("global_load_dword v233, v233, s[0:1]")
            lab("L_NOKW")
        e("s_mov_b64 exec, -1")
    if cfg.cpf:
        cmt("instruction prefetch into L2: workgroup r reads code lines 8r..8r+7 (values unused)")
        if cfg.cpf == 1:
            e("v_xor_b32 v1, 256, v0")
        e(f"v_cmp_gt_u32 vcc, 8, v{1 if cfg.cpf == 1 else 0}")
        e("s_and_saveexec_b64 s[18:19], vcc")
        e("s_cbranch_execz L_NOCPF")
        e("s_getpc_b64 s[90:91]")
        lab("L_PC")
        e("s_and_b32 s18, s2, 0xf8")
        e(f"v_add_u32 v2, s18, v{1 if cfg.cpf == 1 else 0}")
        e("v_lshlrev_b32 v2, 7, v2")
        e("v_min_u32 v2, L_END-L_PC, v2")
        e("v_add_co_u32 v2, vcc, s90, v2")
        e("v_mov_b32 v3, s91")
        e("s_nop 0")
        e("v_addc_co_u32 v3, vcc, 0, v3, vcc")
        e("global_load_dword v235, v[2:3], off")
        lab("L_NOCPF")
        e("s_mov_b64 exec, -1")
    e("v_lshrrev_b32 v1, 6, v0")
    e("v_xor_b32 v1, 4, v1")
    e("s_lshr_b32 s6, s2, 3")
    e("v_readfirstlane_b32 s7, v1")
    e("v_and_b32 v0, 63, v0")
    e("s_bfe_u32 s26, s6, 0x10002")
    e("s_lshr_b32 s27, s6, 3")
    e("s_and_b32 s6, s6, 3")
    e("s_lshl_b32 s27, s27, 2")
    e("s_lshl_b32 s26, s26, 4")
    e("s_or_b32 s6, s6, s27")
    e("s_or_b32 s6, s6, s26")
    if cfg.hx:
        e(f"s_xor_b32 s6, s6, {cfg.hx}")
    if cfg.stamps:
        e("s_lshl_b32 s2, s6, 3")
        e("s_or_b32 s2, s2, s3")
    e("s_and_b32 s97, s3, 3")
    e("s_and_b32 s27, s6, 7")
    e("s_lshl3_add_u32 s26, s97, s27")
    e("s_lshr_b32 s28, s6, 3")
    e("s_cmp_lt_u32 s7, 4")
    e("s_cbranch_scc1 L_COMPUTE")

def ids():
    cmt("s94 = m (15: no output tile), s95 = tt, s96 = nt, s97 = head group, s98 = set, s99 = (branch*2+set)*4")
    e("s_and_b32 s94, s6, 15")
    e("s_mul_i32 s95, s94, 52")
    e("s_lshr_b32 s95, s95, 8")
    e("s_mul_i32 s96, s95, 5")
    e("s_sub_u32 s96, s94, s96")
    e("s_lshr_b32 s98, s6, 4")
    e("s_lshl1_add_u32 s99, s4, s98")
    e("s_lshl_b32 s99, s99, 2")

def helper():
    cmt("================ loader waves: x / wq ring, K, V, then wo / O rings (all LDS-DMA)")
    vm = Counter(A, "vmcnt", 63)
    e("s_sub_u32 s19, s7, 4")
    if cfg.rbase:
        pk = lambda t: sum(int(c) << (4*i) for i, c in enumerate(t.strip()))
        e("s_lshl_b32 s29, s28, 2")
        e(f"s_lshr_b32 s30, {pk(cfg.rbase):#x}, s29")
        e("s_lshl_b32 s29, s27, 2")
        e(f"s_lshr_b32 s29, {pk(cfg.roff):#x}, s29")
        e("s_and_b32 s30, s30, 15")
        e("s_and_b32 s29, s29, 15")
        e("s_add_u32 s30, s30, s29")
        e(f"s_sub_u32 s29, s30, {10 - cfg.first}")
        e("s_cselect_b32 s30, s30, s29")
    elif cfg.rot == 3:
        e("s_add_u32 s30, s27, s28"); e("s_and_b32 s30, s30, 3"); e("s_mul_i32 s30, s30, 5"); e("s_lshr_b32 s30, s30, 1")
    elif cfg.rot == 2:
        e("s_lshl1_add_u32 s30, s28, s27"); e("s_and_b32 s30, s30, 7"); e("s_mul_i32 s30, s30, 5"); e("s_lshr_b32 s30, s30, 2")
    elif cfg.rot == 1:
        e("s_add_u32 s30, s27, s28"); e("s_and_b32 s30, s30, 1"); e("s_mul_i32 s30, s30, 5")
    elif cfg.rot >= 10:
        tab = [int(c) for c in str(cfg.rot)[1:]]
        e("s_add_u32 s30, s27, s28"); e("s_and_b32 s30, s30, 3"); e("s_lshl_b32 s30, s30, 2")
        e(f"s_lshr_b32 s30, {sum(b << (4*i) for i, b in enumerate(tab)):#x}, s30"); e("s_and_b32 s30, s30, 15")
    XV, WV = 10, 14
    e("v_lshrrev_b32 v1, 4, v0")
    e("v_and_b32 v2, 15, v0")
    e("v_lshlrev_b32 v3, 1, v1")
    e("v_xor_b32 v4, v2, v3")
    e("v_lshlrev_b32 v4, 4, v4")
    e("s_lshl_b32 s29, s19, 4")
    e("v_add_u32 v5, s29, v1")
    e(f"v_lshl_add_u32 v{WV}, v5, 13, v4")
    e(f"v_add_u32 v{WV+1}, {32768-1024}, v{WV}")
    e(f"v_xor_b32 v5, 128, v{WV}")
    e(f"v_add_u32 v{WV+2}, {2*(32768-1024)}, v5")
    e(f"v_add_u32 v{WV+3}, {3*(32768-1024)}, v5")
    e("v_lshrrev_b32 v5, 3, v0")
    e("v_and_b32 v6, 7, v0")
    e("v_and_b32 v7, 6, v5")
    e("v_xor_b32 v6, v6, v7")
    e("s_mul_i32 s29, s19, 48")
    e("v_add_u32 v5, s29, v5")
    e("v_mul_u32_u24 v5, 1280, v5")
    e(f"v_lshl_add_u32 v{XV}, v6, 4, v5")
    for t in range(1, 4):
        e(f"v_add_u32 v{XV+t}, {t*(10240-1024)}, v{XV}")
    e(f"s_mul_i32 s88, s19, {48*128}")
    e("s_lshl_b32 s89, s19, 12")
    e(f"s_mul_i32 s29, s28, {192*1280}")
    e("s_lshl_b32 s31, s26, 8")
    e(f"s_sub_u32 s38, {640*8192}, s31")
    e("s_mov_b32 s39, 0x20000")
    e(f"s_mov_b32 s34, {192*1280}")
    e("s_mov_b32 s35, 0x20000")
    e("s_mov_b32 s100, 0")
    e("s_waitcnt lgkmcnt(0)")
    e("s_add_u32 s36, s14, s31")
    e("s_addc_u32 s37, s15, 0")
    e("s_add_u32 s32, s8, s29")
    e("s_addc_u32 s33, s9, 0")

    def stage(i):
        slot = PHYS[i % 3]
        e(f"s_add_u32 m0, s89, {slot + XB}")
        if i >= 10 - cfg.last:
            e(f"s_mov_b32 s90, {(i - cfg.first) << 19}")
        elif i < cfg.first:
            e(f"s_mov_b32 s90, {(9 - i) << 19}")
        else:
            e("s_lshl_b32 s90, s30, 19")
        for t in range(4):
            vm.issue(f"buffer_load_dwordx4 v{WV+t}, s[36:39], s90 offen offset:{t*1024}{cfg.nt_wq if 1 <= i <= cfg.ntq else ''} lds", ("st", i))
        e(f"s_add_u32 m0, s88, {slot}")
        if i >= 10 - cfg.last:
            e(f"s_mov_b32 s91, {(i - cfg.first) << 7}")
        elif i < cfg.first:
            e(f"s_mov_b32 s91, {(9 - i) << 7}")
        else:
            e("s_lshl_b32 s91, s30, 7")
        for t in range(4):
            vm.issue(f"buffer_load_dwordx4 v{XV+t}, s[32:35], s91 offen offset:{t*1024}{cfg.nt_x} lds", ("st", i))
        e("s_add_u32 m0, m0, 4096")
        e("s_add_u32 s91, s91, 40960")
        for t in range(2):
            vm.issue(f"buffer_load_dwordx4 v{XV+t}, s[32:35], s91 offen offset:{t*1024}{cfg.nt_x} lds", ("st", i))
        if cfg.first <= i < 9 - cfg.last:
            e("s_add_u32 s30, s30, 1")
            e(f"s_cmp_eq_u32 s30, {10 - cfg.first - cfg.last}")
            e("s_cselect_b32 s30, 0, s30")
    def coop():
        cmt("this workgroup's share of the last stage(s) goes to L2 for everybody (one dword per line, values unused)")
        e("s_lshl2_add_u32 s29, s28, s19")
        e("s_lshl_b32 s29, s29, 15")
        e("v_lshrrev_b32 v5, 1, v0")
        e("v_and_b32 v6, 1, v0")
        e("v_lshlrev_b32 v6, 7, v6")
        e("v_lshl_add_u32 v5, v5, 13, v6")
        e("s_lshl2_add_u32 s31, s27, s19")
        e(f"s_mul_i32 s31, s31, {6*1280}")
        e("v_mul_u32_u24 v6, 1280, v0")
        for k in range(cfg.last):
            st = 10 - cfg.first - cfg.last + k
            e(f"s_add_u32 s90, s29, {st << 19}")
            e(f"s_add_u32 s91, s31, {st << 7}")
            e("s_mov_b64 exec, 0xff")
            vm.issue("buffer_load_dword v7, v5, s[36:39], s90 offen", "p")
            e("s_mov_b64 exec, 63")
            vm.issue("buffer_load_dword v8, v6, s[32:35], s91 offen", "p")
            e("s_mov_b64 exec, -1")
    def kv_setup():
        e("s_lshl_b32 s29, s28, 6")
        e("s_add_u32 s29, s29, s26")
        e("s_mul_i32 s29, s29, 24576")
        srd(44, 12, "s29", 33*24576)
        srd(40, 10, "s29", 33*24576)
        e("v_lshlrev_b32 v18, 4, v0")
        e("s_and_b32 s31, s19, 1")
        e("s_lshl_b32 s31, s31, 7")
        e("v_xor_b32 v19, s31, v4")
        e("v_lshl_add_u32 v19, v1, 8, v19")
        e("s_lshl_b32 s93, s19, 10")
        e("v_add_u32 v19, s93, v19")
        e("s_lshl_b32 s31, s19, 2")
        e("v_add_u32 v5, s31, v1")
        e("v_xor_b32 v6, v2, v5")
        e("v_lshlrev_b32 v6, 4, v6")
        e("v_lshl_add_u32 v20, v5, 8, v6")
    def kload(kts):
        for kt in kts:
            for b in range(2):
                e(f"s_add_u32 m0, s93, {kpos(kt) + b*4096}")
                e(f"s_mov_b32 s90, {b*32*24576 + kt*4096}")
                vm.issue(f"buffer_load_dwordx4 v20, s[40:43], s90 offen{cfg.nt_k} lds", "k")
    def vload(b):
        for n in range(6):
            e(f"s_add_u32 m0, s93, {(V1B if b else V0B) + n*4096}")
            e(f"s_mov_b32 s90, {b*32*24576 + n*4096}")
            vm.issue(f"buffer_load_dwordx4 v19, s[44:47], s90 offen{cfg.nt_v} lds", "v")
    VR = 80
    def vreg():
        for n in range(6):
            e(f"s_mov_b32 s90, {n*4096}")
            vm.issue(f"buffer_load_dwordx4 {vr(VR+4*n,4)}, v19, s[44:47], s90 offen{cfg.nt_v}", "vr")
    def late_vw(k):
        cmt("V tile that was staged in registers (s100 = 1) goes to LDS now")
        e("s_cmp_eq_u32 s100, 0")
        e(f"s_cbranch_scc1 L_NOVW{k}")
        e(f"s_add_u32 s90, s93, {V0B}")
        e("v_add_u32 v22, s90, v18")
        for n in range(6):
            e(f"ds_write_b128 v22, {vr(VR+4*n,4)} offset:{n*4096}")
        lab(f"L_NOVW{k}")

    def run_sched(sched):
        iv = [x.split() for x in sched.strip().split("/")]
        assert len(iv) == 12
        setup_done = False
        for i, toks in enumerate(iv):
            for tk in toks:
                if tk[0] != "S" and not setup_done:
                    kv_setup(); setup_done = True
                if tk[0] == "S":
                    n = int(tk[1:])
                    assert n <= max(2, i + 1)
                    stage(n)
                elif tk[0] == "K":
                    assert i <= 10 and ("5" not in tk or i >= 9)
                    kload([int(c) for c in tk[1:]])
                elif tk == "V0":
                    assert i >= 9; vload(0)
                elif tk == "V1":
                    assert i >= 10; vload(1)
                elif tk == "P":
                    coop()
                elif tk == "Va":
                    vreg()
                elif tk == "W0":
                    assert i == 11
                    vm.need("vr")
                    e("s_mov_b32 s100, 1")
                else:
                    assert False, tk
            if i == 0 and not setup_done:
                kv_setup(); setup_done = True
            if i < 10:
                vm.need(("st", i))
            if i == 10:
                vm.need("k")
            if i < 11:
                e(f"s_barrier                               ; B_{i}")
            if cfg.hst >= 2: continue
            if i < (10 if cfg.hst else 8): stamp(1 + i)
            if i == 10: stamp(11)

    scs = cfg.scheds.strip().split("|"); smap = cfg.smap.strip()
    smap = "".join(c * 8 for c in smap) if len(smap) == 4 else smap * (32 // len(smap))
    for k, sc in enumerate(scs):
        if k + 1 < len(scs):
            mask = sum(1 << r for r in range(32) if int(smap[r]) == k)
            e(f"s_bitcmp1_b32 {mask:#x}, s6")
            e(f"s_cbranch_scc0 L_H{k+1}")
        vm.pend = []
        run_sched(sc)
        if k + 1 < len(scs):
            e("s_branch L_HX")
            lab(f"L_H{k+1}")
    lab("L_HX")

    vm.pend = []
    ids()
    srd(48, 22, 0, 256)
    e("s_lshl_b32 s101, s99, 2")
    e("v_mov_b32 v9, 0")
    e("s_cmp_eq_u32 s94, 15")
    e("s_cbranch_scc1 L_H_NOP2")
    e("buffer_load_dwordx4 v[32:35], v9, s[48:51], s101 offen sc1")
    WO, OV = 24, 28
    e("s_mul_i32 s29, s98, 3")
    e("s_add_u32 s29, s29, s95")
    e("s_lshl_b32 s31, s29, 2")
    e(f"s_lshr_b32 s30, {sum(int(b) << (4*i) for i, b in enumerate(cfg.rtab.split(','))):#x}, s31")
    if cfg.nrot < 16:
        e("s_and_b32 s30, s30, 15")
    def stg(u):
        if cfg.nrot == 16:
            e(f"s_add_u32 s90, s30, {u}")
        elif u >= cfg.nrot:
            e(f"s_mov_b32 s90, {u}")
        else:
            e(f"s_add_u32 s90, s30, {u}")
            e(f"s_sub_u32 s91, s90, {cfg.nrot}")
            e("s_cselect_b32 s90, s90, s91")
    if cfg.rnt:
        e(f"s_mul_i32 s31, s96, {cfg.rnt}")
        e("s_add_u32 s30, s30, s31")
    e(f"s_mul_i32 s18, s97, {1024*1280}")
    e("s_lshl_b32 s31, s96, 8")
    e("s_add_u32 s18, s18, s31")
    e(f"s_sub_u32 s31, {4096*1280}, s18")
    srd(32, 16, "s18", "s31")
    e(f"s_mul_i32 s18, s3, {8*O_HEAD}")
    e("s_lshl_b32 s31, s29, 15")
    e("s_add_u32 s18, s18, s31")
    e(f"s_add_u32 s18, s18, {O_OFF - 4096}")
    srd(36, 24, "s18", 8*O_HEAD)
    e("s_lshl_b32 s31, s19, 4")
    e("v_add_u32 v5, s31, v1")
    e("v_mul_u32_u24 v5, 1280, v5")
    e(f"v_add_u32 v{WO}, v5, v4")
    e("v_xor_b32 v6, 128, v4")
    e("v_add_u32 v6, v5, v6")
    e(f"v_add_u32 v{WO+1}, {4*1280-1024}, v6")
    e(f"v_add_u32 v{WO+2}, {2*(4*1280-1024)}, v{WO}")
    e(f"v_add_u32 v{WO+3}, {3*(4*1280-1024)}, v6")
    def wdma(u, ts=range(4)):
        stg(u)
        if cfg.nrot == 16:
            e("s_and_b32 s90, s90, 15")
        e(f"s_add_u32 m0, s89, {WSL[u % 7]}")
        e("s_mul_i32 s90, s90, 81920")
        for t in ts:
            vm.issue(f"buffer_load_dwordx4 v{WO+t}, s[32:35], s90 offen offset:{t*1024}{cfg.nt_wo if u < cfg.ntw else ''} lds", ("w", u))
    def o_setup():
        for j in range(4):
            e(f"s_add_u32 s31, s97, {j}")
            e("s_and_b32 s31, s31, 3")
            e(f"s_add_u32 s31, s31, {4-j}")
            e("s_lshl_b32 s31, s31, 10")
            e("s_add_u32 s31, s31, s89")
            e(f"v_add_u32 v{OV+j}, s31, v18")
        e("s_and_b32 s88, s19, 1")
        e("s_lshl_b32 s88, s88, 12")
        e("s_cmp_ge_u32 s19, 2")
        e(f"s_mov_b32 s31, {V1B}")
        e(f"s_cselect_b32 s31, {V0B}, s31")
        e("s_add_u32 s88, s88, s31")
    def cleared(k):
        cmt("the flag lines of all four head groups must have been cleared in this launch")
        e(f"s_mov_b32 s31, {cfg.spin}")
        lab(f"L_CNT{k}")
        e("v_and_b32 v32, v32, v33")
        e("v_and_b32 v34, v34, v35")
        e("v_and_b32 v32, v32, v34")
        e("s_sub_u32 s31, s31, 1")
        e("v_readfirstlane_b32 s29, v32")
        e(f"s_cbranch_scc1 L_CNTOK{k}")
        e("s_cmp_eq_u32 s29, 1")
        e(f"s_cbranch_scc1 L_CNTOK{k}")
        e("buffer_load_dwordx4 v[32:35], v9, s[48:51], s101 offen sc1")
        e("s_waitcnt vmcnt(0)")
        e(f"s_branch L_CNT{k}")
        lab(f"L_CNTOK{k}")
    plans = [tuple(int(x) for x in p.split(",")) for p in cfg.wp.strip().split("/")]
    if plans[0] == plans[1]:
        plans = plans[:1]
    else:
        e("s_cmp_lg_u32 s98, 0")
        e("s_cbranch_scc1 L_WP1")
    for k, (a, b) in enumerate(plans):
        assert a <= 4 and a <= b <= cfg.wpoll
        vm.pend = []
        if k:
            lab("L_WP1")
        for u in range(a):
            wdma(u)
        if cfg.vwm:
            o_setup()
        if cfg.vwm == 2:
            e(f"s_waitcnt vmcnt({4*a})")
        late_vw(k)
        e(f"s_waitcnt vmcnt({4*a}) lgkmcnt(0)")
        cleared(k)
        e("s_barrier")
        for u in range(a, b):
            wdma(u)
        if not cfg.vwm:
            o_setup()
        e("s_barrier")
        for u in range(b, cfg.wpoll):
            wdma(u)
        if k + 1 < len(plans):
            e("s_branch L_WP2")
    lab("L_WP2")
    if not cfg.hst: stamp(9)
    def oaddr(u):
        stg(u)
        e("s_bfe_u32 s91, s90, 0x30001")
        e("s_and_b32 s90, s90, 1")
        e(f"s_mul_i32 s91, s91, {O_HEAD}")
        e("s_lshl_b32 s90, s90, 14")
        e(f"s_add_u32 m0, s88, {(u % 3)*8192}")
        e("s_add_u32 s90, s90, s91")
    def oissue(u):
        for j in range(1 if (cfg.late0 and 16 - cfg.ndef <= u <= 13) else 0, 4):
            vm.issue(f"buffer_load_dwordx4 v{OV+j}, s[36:39], s90 offen offset:{j*1024}{cfg.o_ld} lds", ("o", u))
    oaddr(0)
    vm.need(*[("w", u) for u in range(cfg.prea)])
    e("s_barrier")
    if not cfg.hst: stamp(10)
    oissue(0)
    oaddr(1)
    wq = [(u, t) for u in range(cfg.wpoll, 16) for t in range(4)]
    wts = [0 if (i < cfg.wfirst or i > cfg.wlast) else (100 if i <= 16 - cfg.ndef else cfg.wtail) for i in range(16)]
    R, done = len(wq), 0
    for i in range(16):
        if i + 1 < 16 and not cfg.weave:
            oissue(i + 1)
        tgt = -(-(sum(wts[:i+1]) * R) // sum(wts))
        if cfg.wcnt:
            tgt = sum(int(c) for c in cfg.wcnt.strip()[:i+1])
        tgt = max(tgt, sum(1 for (u, t) in wq if u <= i + 1))
        tgt = min(tgt, sum(1 for (u, t) in wq if u <= max(6 + (cfg.prea if i >= 1 else 0), i + 5)))
        grp = wq[done:tgt]; done = max(done, tgt)
        if cfg.weave and i + 1 < 16:
            assert cfg.nrot == 16
            us = sorted(set(g[0] for g in grp))
            sal = []
            for k, u in enumerate(us):
                sal += [f"s_add_u32 s{44+k}, s30, {u}", f"s_and_b32 s{44+k}, s{44+k}, 15", f"s_mul_i32 s{44+k}, s{44+k}, 81920"]
            if i + 2 < 16:
                sal += [f"s_add_u32 s42, s30, {i+2}", "s_bfe_u32 s43, s42, 0x30001", "s_and_b32 s42, s42, 1",
                        f"s_mul_i32 s43, s43, {O_HEAD}", "s_lshl_b32 s42, s42, 14"]
            per = -(-len(sal) // 3)
            for j in range(4):
                vm.issue(f"buffer_load_dwordx4 v{OV+j}, s[36:39], s90 offen offset:{j*1024}{cfg.o_ld} lds", ("o", i + 1))
                for x in sal[per*j:per*(j+1)] if j < 3 else []:
                    e(x)
            nxt = ["s_add_u32 s90, s42, s43"] if i + 2 < 16 else []
            for k, u in enumerate(us):
                e(f"s_add_u32 m0, s89, {WSL[u % 7]}")
                e(nxt.pop() if nxt else "s_nop 0")
                for t in [t for (uu, t) in grp if uu == u]:
                    vm.issue(f"buffer_load_dwordx4 v{WO+t}, s[32:35], s{44+k} offen offset:{t*1024}{cfg.nt_wo} lds", ("w", u))
            for x in nxt:
                e(x)
            if i + 2 < 16:
                e(f"s_add_u32 m0, s88, {((i+2) % 3)*8192}")
            grp = []
        for u in sorted(set(g[0] for g in grp)):
            wdma(u, [t for (uu, t) in grp if uu == u])
        if i + 2 < 16 and not cfg.weave:
            oaddr(i + 2)
            if cfg.late0 and 16 - cfg.ndef <= i + 2 <= 13:
                e(f"s_mov_b32 s{42 + i + 2 - (16 - cfg.ndef)}, s90")
        if cfg.late0 == 2 and i == 15:
            for k in range(cfg.ndef - 2):
                if k:
                    e("s_add_u32 m0, m0, 1024")
                    e("s_nop 0")
                vm.issue(f"buffer_load_dwordx4 v{OV}, s[36:39], s{42+k} offen{cfg.o_ld} lds", "late")
        if cfg.late0 and i == 16 - cfg.late0:
            e(f"s_add_u32 m0, s88, {(16 % 3)*8192}")
        vm.need(("o", i), ("w", i))
        e(f"s_barrier                               ; C_{i}")
        if cfg.late0 and i == 15:
            for k in range(cfg.ndef - 2 if cfg.late0 == 1 else 0):
                if k:
                    e("s_add_u32 m0, m0, 1024")
                    e("s_nop 0")
                e(f"buffer_load_dwordx4 v{OV}, s[36:39], s{42+k} offen{cfg.o_ld} lds")
            e("s_waitcnt vmcnt(0)")
            e("s_barrier                               ; C_16")
        if cfg.hst == 2:
            if i >= 2: stamp(i - 1)
            continue
        if cfg.hst == 4:
            if i in (0, 1, 2, 3, 13, 14, 15): stamp(1 + (0, 1, 2, 3, 13, 14, 15).index(i))
            continue
        if i == 0: stamp(12)
        if i == 4: stamp(13)
        if i == 15: stamp(14)
    assert done == R
    e("s_branch L_FIN")
    lab("L_H_NOP2")
    if cfg.nrot < 16:
        cmt("no tile: pull the wo rows of the last stages into L2 for the other workgroups (one dword per line, values unused)")
        total = (16 - cfg.nrot) * 81920
        npc = -(-total // 32768)
        e(f"s_mul_i32 s18, s97, {1024*1280}")
        e(f"s_add_u32 s18, s18, {cfg.nrot*81920}")
        srd(32, 16, "s18", total)
        e("s_lshl_b32 s31, s19, 13")
        e("v_lshl_add_u32 v24, v0, 7, s31")
        e(f"s_mul_i32 s90, s98, {cfg.lead0*32768}")
        e(f"s_mul_i32 s91, s98, {(npc - cfg.lead0)*32768}")
        e(f"s_add_u32 s91, s91, {cfg.lead0*32768}")
        for k in range(cfg.lpre):
            e("buffer_load_dword v25, v24, s[32:35], s90 offen")
            e("s_add_u32 s90, s90, 32768")
        e(f"s_waitcnt vmcnt({cfg.lpre})")
        e("s_mov_b32 s88, s90")
        late_vw(9)
        e("s_waitcnt lgkmcnt(0)")
        e("s_barrier                               ; B_11")
        e("s_barrier                               ; E")
        lab("L_LEAD")
        e("s_cmp_ge_u32 s88, s91")
        e("s_cbranch_scc1 L_FIN")
        e("buffer_load_dword v25, v24, s[32:35], s88 offen")
        e("s_add_u32 s88, s88, 32768")
        e("s_branch L_LEAD")
        return
    late_vw(9)
    e("s_waitcnt vmcnt(0) lgkmcnt(0)")
    e("s_barrier                               ; B_11")
    e("s_barrier                               ; E")
    e("s_branch L_FIN")

def compute():
    lab("L_COMPUTE")
    lg = Counter(A, "lgkmcnt", 15)
    AB = 96
    BB = [128, 152]
    AA = 176
    BA = 184
    KA, FONE, FOFF, LANE, OA, VA0 = 186, 252, 253, 254, 190, 191
    KB = [192, 208, 96]
    T0 = 224
    acc = lambda T, j: (T*3+j)*4
    if cfg.prio:
        e(f"s_setprio {cfg.prio}")
    e(f"v_mov_b32 v{LANE}, v0")
    e(f"v_lshrrev_b32 v{T0}, 4, v0")
    e(f"v_and_b32 v{T0+1}, 15, v0")
    e(f"v_bfe_u32 v{T0+2}, v0, 2, 2")
    e(f"v_and_b32 v{T0+3}, 3, v0")
    ids()
    e("s_add_u32 s29, s99, s97")
    e("s_lshl_b32 s101, s29, 2")
    e(f"s_mul_i32 s43, s29, {2*FG}")
    e("s_lshr_b32 s29, s94, 3")
    e(f"s_mul_i32 s29, s29, {FG}")
    e("s_lshl_b32 s39, s27, 10")
    e("s_add_u32 s39, s39, s29")
    e("s_add_u32 s100, s43, s39")
    e(f"v_mov_b32 v{T0+8}, 0")
    e(f"v_mov_b32 v{FONE}, 1")
    e(f"v_lshlrev_b32 v{T0+10}, 7, v0")
    e("s_lshl4_add_u32 s93, s7, s94")
    e("s_waitcnt lgkmcnt(0)")
    if cfg.slowst:
        cmt("early requests (values unused) for the wq lines of heads 1 and 5 of the group that sit on the two slower L2 channels")
        e("s_lshl2_add_u32 s18, s6, s7")
        e("s_and_b32 s19, s18, 1")
        e("s_lshr_b32 s18, s18, 1")
        e("s_lshl_b32 s18, s18, 13")
        e("s_lshl_b32 s19, s19, 10")
        e("s_add_u32 s18, s18, s19")
        e("s_lshl_b32 s19, s97, 11")
        e("s_add_u32 s18, s18, s19")
        for c in cfg.slowst.strip():
            e(f"s_add_u32 s19, s18, {int(c) << 19}")
            e("s_load_dword s92, s[14:15], s19 offset:384")
            e("s_load_dword s92, s[14:15], s19 offset:448")
    if cfg.touch:
        cmt("address-translation warm-up: one scalar load per region used later (values unused)")
        def touch(lo, *terms):
            first = True
            for reg, mul in terms:
                if reg is None:
                    e(f"s_add_u32 s18, s18, {mul}" if not first else f"s_mov_b32 s18, {mul}")
                elif first:
                    e(f"s_mul_i32 s18, s{reg}, {mul}")
                else:
                    e(f"s_mul_i32 s19, s{reg}, {mul}")
                    e("s_add_u32 s18, s18, s19")
                first = False
            e(f"s_load_dword s92, s[{lo}:{lo+1}], s18")
        e("s_and_b32 s5, s7, 1")
        touch(14, (7, 1536*1024), (26, 256))
        e("s_cmp_ge_u32 s7, 2")
        e("s_cbranch_scc1 L_TOUCH2")
        touch(10, (28, 64*24576), (26, 24576), (5, 32*24576))
        touch(16, (97, 1024*1280), (5, 1024*1280 - 64))
        if cfg.touch > 1:
            touch(24, (3, 8*O_HEAD), (5, 8*O_HEAD - 64), (None, O_OFF))
            touch(24, (None, FLAG_SZ))
        e("s_branch L_TOUCH3")
        lab("L_TOUCH2")
        touch(12, (28, 64*24576), (26, 24576), (5, 32*24576))
        if cfg.touch > 1:
            touch(24, (99, 15*4*P_W), (94, 16*P_W), (5, 16*P_W - 64), (None, PART_OFF))
            touch(20, (5, 768*2560 - 64))
        lab("L_TOUCH3")
    srd(44, 24, 0, FLAG_SZ)
    srd(48, 22, 0, 256)
    e("s_cmp_lg_u32 s93, 15")
    e("s_cbranch_scc1 L_NOCLR")
    e("s_mov_b32 exec_lo, 0x1f1f1f1f")
    e("s_mov_b32 exec_hi, 0x1f1f1f1f")
    for k in range(2*FG // 8192):
        e(f"s_add_u32 s31, s43, {k*8192}")
        e(f"buffer_store_dword v{T0+8}, v{T0+10}, s[44:47], s31 offen sc1")
    e("s_mov_b64 exec, -1")
    lab("L_NOCLR")
    if cfg.dry:
        cmt("instruction-cache warm-up: one pass through the Q loop with EXEC = 0 (LDS and matrix instructions only; results discarded)")
        e(f"s_bitcmp1_b32 {cfg.dry}, s7")
        e("s_cbranch_scc0 L_DRYDONE")
        for i in range(BB[0], BA + 2):
            e(f"v_mov_b32 v{i}, 0")
        e("s_mov_b32 s29, 0")
        e("s_mov_b64 exec, 0")
        e("s_branch L_QLOOP")
        lab("L_DRYDONE")
        e("s_mov_b64 exec, -1")
        e("s_nop 7")
        e(f"v_mov_b32 v0, v{LANE}")
    e(f"v_lshl_add_u32 v{T0+4}, v{T0}, 3, v{T0+2}")
    e(f"v_lshlrev_b32 v{T0+4}, 8, v{T0+4}")
    e(f"v_lshl_add_u32 v{T0+4}, v{T0+3}, 3, v{T0+4}")
    e(f"v_add_u32 v{T0+4}, {XB}, v{T0+4}")
    e(f"v_and_b32 v{T0+5}, 1, v{T0}")
    e(f"v_lshl_add_u32 v{T0+5}, v{T0+5}, 2, v{T0+2}")
    for T in range(8):
        e(f"v_xor_b32 v{T0+6}, {T}, v{T0+5}")
        e(f"v_lshl_add_u32 v{AA+T}, v{T0+6}, 5, v{T0+4}")
    e(f"v_and_b32 v{T0+6}, 6, v{T0+1}")
    e(f"v_xor_b32 v{T0+6}, v{T0+6}, v{T0}")
    e(f"v_lshlrev_b32 v{T0+6}, 4, v{T0+6}")
    e(f"v_lshl_add_u32 v{T0+6}, v{T0+1}, 7, v{T0+6}")
    e(f"s_mul_i32 s29, s7, {48*128}")
    e(f"v_add_u32 v{BA}, s29, v{T0+6}")
    e(f"v_xor_b32 v{BA+1}, 64, v{BA}")
    e("s_lshr_b32 s19, s7, 1")
    e("s_lshl_b32 s29, s19, 12")
    e(f"s_add_u32 s29, s29, {K0B}")
    e(f"v_lshrrev_b32 v{T0+6}, 1, v{T0}")
    e(f"v_xor_b32 v{T0+6}, v{T0+6}, v{T0+1}")
    e(f"v_lshlrev_b32 v{T0+6}, 4, v{T0+6}")
    e(f"v_lshl_add_u32 v{T0+6}, v{T0+1}, 8, v{T0+6}")
    e(f"v_and_b32 v{T0+7}, 1, v{T0}")
    e(f"v_lshl_add_u32 v{T0+6}, v{T0+7}, 3, v{T0+6}")
    e(f"v_add_u32 v{KA}, s29, v{T0+6}")
    e(f"v_lshrrev_b32 v{T0+6}, 2, v0")
    e(f"v_and_b32 v{T0+7}, 7, v{T0+6}")
    e(f"v_lshlrev_b32 v{T0+6}, 8, v{T0+6}")
    e(f"v_lshl_add_u32 v{T0+6}, v{T0+7}, 5, v{T0+6}")
    e(f"v_lshl_add_u32 v{T0+6}, v{T0+3}, 3, v{T0+6}")
    e("s_cmp_eq_u32 s19, 0")
    e(f"s_mov_b32 s29, {V1B}")
    e(f"s_cselect_b32 s29, {V0B}, s29")
    e(f"v_add_u32 v{VA0}, s29, v{T0+6}")
    e(f"v_lshlrev_b32 v{OA}, 4, v0")
    e("s_lshl_b32 s30, s7, 7")
    e(f"v_lshl_add_u32 v{FOFF}, v0, 13, s30")
    for i in range(96):
        e(f"v_mov_b32 v{i}, 0")
    e("s_lshl_b32 s29, s4, 5")
    e("s_add_u32 s29, s29, s26")
    e(f"s_mul_i32 s29, s29, {O_HEAD}")
    e(f"s_add_u32 s29, s29, {O_OFF}")
    srd(32, 24, "s29", O_HEAD)
    e("s_mul_i32 s29, s28, 12")
    e("s_mul_i32 s31, s7, 3")
    e("s_add_u32 s29, s29, s31")
    for j in range(3):
        e(f"s_add_u32 s31, s29, {j}")
        e("s_lshr_b32 s18, s31, 3")
        e("s_lshl_b32 s18, s18, 15")
        e("s_and_b32 s31, s31, 7")
        e("s_lshl_b32 s31, s31, 10")
        e(f"s_add_u32 s{40+j}, s31, s18")
    e(f"s_mul_i32 s18, s99, {2*FG}")
    e("s_add_u32 s18, s18, s39")
    e("s_add_u32 s18, s18, s30")
    e("s_add_u32 s18, s18, 128")
    e("s_add_u32 s8, s24, s18")
    e("s_addc_u32 s9, s25, 0")
    e("s_lshl_b32 s18, s7, 11")
    e("s_add_u32 s18, s18, s43")
    e("s_add_u32 s10, s24, s18")
    e("s_addc_u32 s11, s25, 0")
    e("s_cmp_eq_u32 s95, 2")
    e(f"s_cselect_b32 s12, {FG}, 0")
    e("s_cmp_lg_u32 s93, 15")
    e("s_cbranch_scc1 L_NOCLR2")
    e("s_waitcnt vmcnt(0)")
    e("s_mov_b64 exec, 1")
    e(f"buffer_store_dword v{FONE}, v{T0+8}, s[48:51], s101 offen sc1")
    e("s_mov_b64 exec, -1")
    lab("L_NOCLR2")

    def a_rd(T):
        return [(f"ds_read_b64_tr_b16 {vr(AB + (T & 3)*8 + s*4 + h*2, 2)}, v{AA+T} offset:{s*8192 + h*1024}", ("A", T & 3, s))
                for s in range(2) for h in range(2)]
    def b_rd(j, s, par):
        return (f"ds_read_b128 {vr(BB[par]+(j*2+s)*4,4)}, v{BA+s} offset:{j*2048}", ("B", par, j, s))
    def head_reads(par):
        a0 = a_rd(0)
        return [a0[0], a0[1], b_rd(0,0,par), a0[2], a0[3], b_rd(0,1,par), b_rd(1,0,par), b_rd(1,1,par),
                b_rd(2,0,par), b_rd(2,1,par)] + a_rd(1)
    def k_rd(kt):
        return [(f"ds_read_b64 {vr(KB[kt%3]+4*s+2*h,2)}, v{AA+2*s+h} offset:{kpos(kt) - K0B}", ("K", kt % 3, s))
                for s in range(4) for h in range(2)]
    def cvtq(s):
        return [x for j in range(3) for x in cvt4(acc(2*s, j), acc(2*s, j), acc(2*s+1, j))]
    def emit(x):
        if isinstance(x, tuple):
            lg.issue(x[0], x[1])
        else:
            e(x)
    def qstage(par, last=False, exit_label=None):
        att = {n: [] for n in range(48)}
        for T, n0 in ((2,0),(3,4),(4,8),(5,12),(6,18),(7,24)):
            for k, r in enumerate(a_rd(T)):
                att[n0+k].append(r)
        if not last:
            adv = [f"v_add_u32 v{AA+T}, s30, v{AA+T}" for T in range(8)] + [f"v_add_u32 v{BA+s}, s30, v{BA+s}" for s in range(2)]
            for k, x in enumerate(adv):
                att[28 + k//2].append(x)
            att[16] += ["s_mov_b32 s30, s88", "s_mov_b32 s88, s89"]
            att[17] += ["s_mov_b32 s89, s90", "s_mov_b32 s90, s30"]
            if par == 0:
                att[22].append("s_add_u32 s29, s29, 1")
                att[23].append("s_cmp_eq_u32 s29, 5")
            for k, r in enumerate(head_reads(par ^ 1)):
                att[34+k].append(r)
        else:
            for k in range(8):
                att[(4, 5, 8, 9, 12, 16, 22, 28)[k]].append(f"v_xor_b32 v{AA+k}, {32*k}, v{KA}")
            for k, r in enumerate(k_rd(0) + k_rd(1)[:4]):
                att[min(47, cfg.kbar + 1 + k//2)].append(r)
            for k, x in enumerate(cvtq(0)):
                att[(16, 17, 17, 18, 19, 20, 21, 22, 23, 23, 24, 25)[k]].append(x)
            for k, x in enumerate(cvtq(1)):
                att[(26, 27, 28, 29, 29, 30, 30, 31, 31, 32, 32, 33)[k]].append(x)
            for k, x in enumerate(cvtq(2)):
                att[40 + (k*2)//3].append(x)
        for n in range(48):
            T, j, s = n//6, (n % 6)//2, n % 2
            if cfg.snake:
                s ^= (n // 2) & 1
                if cfg.snake == 2 and T & 1 and not last: j = 2 - j
            if n % 6 == 0:
                lg.need(("A", T & 3, 0), ("A", T & 3, 1), *([("B", par, 0, 0), ("B", par, 0, 1)] if T == 0 else []))
            if T == 0 and n == 2:
                lg.need(*[("B", par, jj, ss) for jj in (1, 2) for ss in (0, 1)])
            e(mfma(acc(T, j), AB + (T & 3)*8 + s*4, BB[par] + (j*2+s)*4))
            for x in att[n]:
                emit(x)
            if cfg.qn and (n * cfg.qn) // 48 != ((n + 1) * cfg.qn) // 48:
                e("s_nop 5")
            if n == (cfg.kbar if last else 33):
                lg.drain()
                if cfg.dry and not last:
                    e(f"s_cbranch_execz L_QB{par}")
                e("s_barrier                               ; B_{i+1}: this stage read, next one (or K) landed")
                if cfg.dry and not last:
                    lab(f"L_QB{par}")
        if exit_label:
            e(f"s_cbranch_scc1 {exit_label}")

    e("s_mov_b32 s29, 0")
    e(f"s_mov_b32 s88, {2*SLOT}")
    e(f"s_mov_b32 s89, {(-SLOT) & 0xffffffff}")
    e("s_mov_b32 s90, s89")
    e("s_barrier                               ; B_0")
    stamp(1)
    for r in head_reads(0):
        emit(r)
    lab("L_QLOOP")
    qstage(0, exit_label="L_QDONE")
    saved = [set(t) for t in lg.pend]
    qstage(1)
    if cfg.dry:
        e("s_cbranch_execnz L_QLOOP")
        e("s_branch L_DRYDONE")
    else:
        e("s_branch L_QLOOP")
    lab("L_QDONE")
    lg.pend = saved
    qstage(1, last=True)
    stamp(2)
    QB = lambda s, j: acc(2*s, j)
    sregs = [acc(T, j) for T in (1, 3, 5) for j in range(3)] + [BB[0] + 4*k for k in range(6)] + [acc(7, j) for j in range(3)]
    SS = lambda kt, j: sregs[kt*3 + j]
    M = T0
    vaddr = [f"v_xor_b32 v{AA+T}, {32*T}, v{VA0}" for T in range(8)]
    c = math.log2(math.e) / math.sqrt(128.0)
    cbits = struct.unpack("<I", struct.pack("<f", c))[0]
    ONES = T0 + 12
    for kt in range(6):
        lg.need(*[("K", kt % 3, s) for s in range(4)])
        order = [(j, s) for j in range(3) for s in range(4)] if kt else \
                [(j, s) for j in range(3) for s in range(3)] + [(j, 3) for j in range(3)]
        att = {n: [] for n in range(12)}
        rd = k_rd(kt + 2) if kt + 2 < 6 else []
        if kt == 0:
            for k, x in enumerate(k_rd(1)[4:]):
                att[k//2].append(x)
            for k, x in enumerate(cvtq(3)):
                att[2 + k//2].append(x)
            for k, x in enumerate(rd):
                att[8 + k//2].append(x)
        else:
            for k, x in enumerate(rd):
                att[k].append(x)
        if kt == 4:
            for k, x in enumerate(vaddr):
                att[(0, 0, 1, 1, 2, 2, 10, 10)[k]].append(x)
        if kt == 5:
            att[0] += [f"s_mov_b32 s30, {cbits:#x}", f"s_mov_b32 s31, {cbits:#x}"]
            for r in range(4):
                att[1 + r//2].append(f"v_mov_b32 v{ONES+r}, 0x3f803f80")
        if kt >= 1:
            for j in range(3):
                b = SS(kt-1, j)
                if kt == 1:
                    att[5 + 2*j] += [f"v_max3_f32 v{M+j}, v{b}, v{b+1}, v{b+2}"]
                    att[6 + 2*j] += [f"v_max_f32 v{M+j}, v{M+j}, v{b+3}"]
                else:
                    o = 6 if kt < 4 else 4
                    att[o + 2*j] += [f"v_max3_f32 v{M+j}, v{M+j}, v{b}, v{b+1}"]
                    att[o + 1 + 2*j] += [f"v_max3_f32 v{M+j}, v{M+j}, v{b+2}, v{b+3}"]
        if kt == 5:
            b = SS(5, 0)
            att[10] += [f"v_max3_f32 v{M}, v{M}, v{b}, v{b+1}"]
            att[11] += [f"v_max3_f32 v{M}, v{M}, v{b+2}, v{b+3}"]
        for n, (j, s) in enumerate(order):
            e(mfma(SS(kt, j), KB[kt % 3] + 4*s, QB(s, j), "0" if s == 0 else None))
            for x in att[n]:
                emit(x)
    b = SS(5, 1)
    e(f"v_mov_b32 v{M+4}, v{M}")
    e(f"v_max3_f32 v{M+1}, v{M+1}, v{b}, v{b+1}")
    e(f"v_max3_f32 v{M+1}, v{M+1}, v{b+2}, v{b+3}")
    e(f"v_permlane32_swap_b32 v{M}, v{M+4}")
    e(f"v_mov_b32 v{M+5}, v{M+1}")
    e(f"v_max_f32 v{M}, v{M}, v{M+4}")
    e(f"v_mov_b32 v{M+4}, v{M}")
    b = SS(5, 2)
    e(f"v_permlane32_swap_b32 v{M+1}, v{M+5}")
    e(f"v_max3_f32 v{M+2}, v{M+2}, v{b}, v{b+1}")
    e(f"v_max3_f32 v{M+2}, v{M+2}, v{b+2}, v{b+3}")
    e(f"v_permlane16_swap_b32 v{M}, v{M+4}")
    e(f"v_mov_b32 v{M+6}, v{M+2}")
    e(f"v_max_f32 v{M+1}, v{M+1}, v{M+5}")
    e(f"v_mov_b32 v{M+5}, v{M+1}")
    e(f"v_permlane32_swap_b32 v{M+2}, v{M+6}")
    e(f"v_max_f32 v{M}, v{M}, v{M+4}")
    e(f"v_permlane16_swap_b32 v{M+1}, v{M+5}")
    e(f"v_max_f32 v{M+2}, v{M+2}, v{M+6}")
    e(f"v_mov_b32 v{M+6}, v{M+2}")
    e(f"v_max_f32 v{M+1}, v{M+1}, v{M+5}")
    e("s_nop 0")
    e(f"v_permlane16_swap_b32 v{M+2}, v{M+6}")
    e(f"v_max_f32 v{M+2}, v{M+2}, v{M+6}")
    NM = T0 + 4
    for j in range(3):
        e(f"v_mul_f32 v{NM+2*j}, s30, v{M+j}")
    stamp(3)
    pregs = [BB[1] + 4*k for k in range(6)] + [AB + 4*k for k in range(3)]
    PB = lambda s, j: pregs[s*3 + j]
    LS = T0 + 16
    VB = [KB[0], KB[0]+12, AB+12]
    def v_rd(T):
        return [(f"ds_read_b64_tr_b16 {vr(VB[T%3]+4*s+2*h,2)}, v{AA+T} offset:{(32*s+16*h)*256}", ("V", T % 3))
                for s in range(3) for h in range(2)]
    def v_start():
        stamp(4)
        e("s_barrier                               ; B_11: V visible")
        stamp(5)
        for r in v_rd(0) + v_rd(1):
            emit(r)
    pend_m = []
    for s in range(3):
        for j in range(3):
            if cfg.vbar and s*3 + j == 9 - cfg.vbar:
                v_start()
            for kt in (2*s, 2*s+1):
                b = SS(kt, j)
                for h in range(2):
                    e(f"v_pk_fma_f32 {vr(b+2*h,2)}, {vr(b+2*h,2)}, s[30:31], {vr(NM+2*j,2)} op_sel_hi:[1,1,0] neg_lo:[0,0,1] neg_hi:[0,0,1]")
            if pend_m:
                e(pend_m.pop())
            for kt in (2*s, 2*s+1):
                b = SS(kt, j)
                for r in range(4):
                    e(f"v_exp_f32 v{b+r}, v{b+r}")
            for x in cvt4(PB(s, j), SS(2*s, j), SS(2*s+1, j)):
                e(x)
            pend_m.append(mfma(LS+4*j, ONES, PB(s, j), "0" if s == 0 else None))
    if not cfg.vbar:
        v_start()
        e(pend_m.pop())
    RC = T0 + 4
    def epi(s, pk=False):
        r = []
        for j in range(3):
            a0, a1 = acc(2*s, j), acc(2*s+1, j)
            for a in (a0, a1):
                if pk:
                    r += [f"v_pk_mul_f32 {vr(a+2*h,2)}, {vr(a+2*h,2)}, {vr(RC+2*j,2)} op_sel_hi:[1,0]" for h in range(2)]
                else:
                    r += [f"v_mul_f32 v{a+k}, v{a+k}, v{RC+2*j}" for k in range(4)]
            r += cvt4(a0, a0, a1)
            r.append(f"buffer_store_dwordx4 {vr(a0,4)}, v{OA}, s[32:35], s{40+j} offen{cfg.o_st}")
        if s < 3:
            r.append(f"v_add_u32 v{OA}, 8192, v{OA}")
        return r
    backlog = []
    for T in range(8):
        lg.need(("V", T % 3))
        rd = v_rd(T+2) if T + 2 < 8 else []
        if T == 1:
            backlog += [f"v_rcp_f32 v{RC+2*j}, v{LS+4*j}" for j in range(3)]
        n = 0
        for j in range(3):
            for s in range(3):
                e(mfma(acc(T, j), VB[T % 3] + 4*s, PB(s, j), "0" if s == 0 else None))
                if pend_m and n == 1:
                    e(pend_m.pop())
                k = 0
                if rd:
                    emit(rd.pop(0)); k += 1
                if T >= 2 and T % 2 == 0 and n == 1:
                    backlog += epi(T//2 - 1)
                while backlog and k < 2:
                    e(backlog.pop(0)); k += 1
                n += 1
    for x in backlog:
        e(x)
    stamp(6)
    for x in epi(3, True):
        e(x)
    stamp(7)
    PA = [64, 96]; PBb = [128, 160]
    QA, QB2 = 192, 204
    T1 = 206
    HOLD = 212
    e(f"v_lshrrev_b32 v{T1+2}, 2, v{LANE}")
    e(f"v_and_b32 v{T1+3}, 7, v{T1+2}")
    e("s_and_b32 s29, s7, 1")
    e("s_lshl_b32 s30, s29, 2")
    e(f"v_xor_b32 v{T1+3}, s30, v{T1+3}")
    e(f"v_lshlrev_b32 v{T1+2}, 8, v{T1+2}")
    e(f"v_lshl_add_u32 v{T1+2}, v{T1+3}, 5, v{T1+2}")
    e(f"v_and_b32 v{T1+3}, 3, v{LANE}")
    e(f"v_lshl_add_u32 v{T1+2}, v{T1+3}, 3, v{T1+2}")
    for T in range(4):
        e(f"v_xor_b32 v{QA+T}, {32*T}, v{T1+2}")
        e(f"v_add_u32 v{QA+4+T}, {WSL[3]}, v{QA+T}")
        e(f"v_add_u32 v{QA+8+T}, {WSL[4]}, v{QA+T}")
    e(f"v_lshlrev_b32 v{T1}, 4, v{LANE}")
    e("s_lshl_b32 s30, s19, 12")
    e(f"s_add_u32 s30, s30, {V1B}")
    e(f"v_add_u32 v{QB2}, s30, v{T1}")
    e(f"v_add_u32 v{QB2+1}, {V0B - V1B}, v{QB2}")
    nd = 2 if cfg.dup else 1
    fl = [[13, 14, 15, 16], [17, 18, 88, 89]]
    e("s_cmp_lg_u32 s95, 1")
    e("s_cselect_b32 s15, 1, 0")
    e("s_mov_b32 s16, s15")
    e("s_mov_b32 s13, 0")
    e("s_mov_b32 s14, 0")
    if cfg.dup:
        for r in fl[1]:
            e(f"s_mov_b32 s{r}, 0")
    e(f"s_mov_b32 s31, {cfg.spin}")
    e("s_cmp_eq_u32 s7, 0")
    e("s_cbranch_scc1 L_FLAG")
    e("s_waitcnt vmcnt(0)")
    stamp(8)
    e("s_barrier                               ; E")
    e("s_branch L_NOFLAG")
    lab("L_FLAG")
    e(f"s_mov_b64 exec, {3 if cfg.dup else 1}")
    e("s_waitcnt vmcnt(0)")
    stamp(8)
    e("s_barrier")
    e(f"buffer_store_dword v{FONE}, v{FOFF}, s[44:47], s100 offen sc1")
    e("s_mov_b64 exec, -1")
    lab("L_NOFLAG")
    e("s_cmp_eq_u32 s94, 15")
    e("s_cbranch_scc1 L_FIN")
    lab("L_POLL")
    for k in range(4):
        e(f"s_cmp_lg_u32 s{fl[0][k]}, 0")
        e(f"s_cbranch_scc1 L_PS{k}")
        for d in range(nd):
            if k < 2:
                e(f"s_load_dword s{fl[d][k]}, s[10:11], s12 offset:{k*1024 + d*8192} glc")
            else:
                e(f"s_load_dword s{fl[d][k]}, s[10:11], {FG + (k-2)*1024 + d*8192} glc")
        lab(f"L_PS{k}")
    e("s_sub_u32 s31, s31, 1")
    e("s_cbranch_scc1 L_GO")
    e("s_waitcnt lgkmcnt(0)")
    if cfg.dup:
        for k in range(4):
            e(f"s_or_b32 s{fl[0][k]}, s{fl[0][k]}, s{fl[1][k]}")
    e("s_and_b32 s5, s13, s14")
    e("s_and_b32 s30, s15, s16")
    e("s_and_b32 s5, s5, s30")
    e("s_cbranch_scc0 L_POLL")
    lab("L_GO")
    e("s_barrier                               ; D")
    e("s_waitcnt lgkmcnt(0)")
    e("s_mul_i32 s18, s99, 15")
    e("s_lshl2_add_u32 s18, s94, s18")
    e("s_lshl2_add_u32 s18, s18, s7")
    e(f"s_mul_i32 s18, s18, {P_W}")
    e(f"s_add_u32 s18, s18, {PART_OFF}")
    srd(32, 24, "s18", 16*P_W)
    for d in range(4):
        e(f"s_add_u32 s18, s97, {d}")
        e("s_and_b32 s18, s18, 3")
        e(f"s_mul_i32 s18, s18, {4*P_W}")
        e(f"s_add_u32 s{36+d}, s18, {max(d-1,0)*2048}")
        if d:
            e(f"s_sub_u32 s18, s97, {d}")
            e("s_and_b32 s18, s18, 3")
            e(f"s_mul_i32 s{88+d}, s18, {2*FG}")
    e("s_mul_i32 s18, s98, 3")
    e("s_add_u32 s18, s18, s95")
    e("s_lshl1_add_u32 s18, s18, s19")
    e("s_lshl2_add_u32 s18, s18, s97")
    e(f"s_mul_i32 s18, s18, {16*2560}")
    e("s_mul_i32 s30, s4, 1280")
    e("s_add_u32 s18, s18, s30")
    e("s_lshl1_add_u32 s30, s96, s29")
    e("s_lshl_b32 s30, s30, 7")
    e("s_add_u32 s18, s18, s30")
    e(f"s_sub_u32 s30, {768*2560}, s18")
    srd(40, 20, "s18", "s30")
    e(f"v_and_b32 v{T1+1}, 15, v{LANE}")
    e(f"v_mul_u32_u24 v{T1+1}, 2560, v{T1+1}")
    e(f"v_and_b32 v{T1+2}, 48, v{LANE}")
    e(f"v_add_u32 v{T1+1}, v{T1+1}, v{T1+2}")

    ND = cfg.ndef
    assert 2 <= ND <= 7
    pacc = lambda T, j: (T*4+j)*4
    def breg(u, j):
        if j == 0 and 16 - ND <= u < 14:
            return HOLD + 8*(u - (16 - ND))
        return PBb[u & 1] + j*8
    def pa_rd(u, T, buf):
        k = u % 7
        areg = QA + 4*(0 if k < 3 else 1 if k == 3 else 2)
        aoff = WSL[k] - (0 if k < 3 else WSL[3] if k == 3 else WSL[4])
        return [(f"ds_read_b64_tr_b16 {vr(PA[buf]+T*8+s*4+h*2,2)}, v{areg+T} offset:{aoff + (32*s+16*h)*256}", ("PA", buf, T))
                for s in range(2) for h in range(2)]
    def p_reads(u):
        b = u & 1
        bb = lambda j: [(f"ds_read_b128 {vr(breg(u, j)+s*4,4)}, v{QB2+s} offset:{(u%3)*8192 + j*1024}", ("PB", b, j)) for s in range(2)]
        if u < cfg.prea:
            return bb(0) + bb(1) + bb(2) + bb(3)
        if u >= 16 - ND:
            return pa_rd(u,0,b) + bb(1) + bb(2) + bb(3) + pa_rd(u,1,b) + pa_rd(u,2,b) + pa_rd(u,3,b) + bb(0)
        return pa_rd(u,0,b) + bb(0) + bb(1) + bb(2) + bb(3) + pa_rd(u,1,b) + pa_rd(u,2,b) + pa_rd(u,3,b)
    def pm(u, T, j, s, buf=None, first=False):
        return mfma(pacc(T, j), PA[u & 1 if buf is None else buf]+T*8+s*4, breg(u, j)+s*4, "0" if first else None)
    def send(d):
        r = []
        for Tp in range(2):
            a0 = pacc(2*Tp, d)
            r += cvt4(a0, a0, pacc(2*Tp+1, d))
            r.append(f"buffer_store_dwordx4 {vr(a0,4)}, v{T1}, s[32:35], s{36+d} offen offset:{Tp*1024}{cfg.p_st}")
        return r
    lg.pend = []
    for u in range(cfg.prea):
        for T in range(4):
            for r in pa_rd(u, T, u):
                emit(r)
    if cfg.prea:
        lg.drain()
    e("s_barrier                               ; C_0")
    stamp(9)
    for r in p_reads(0):
        emit(r)
    for u in range(15):
        b = u & 1
        rd = p_reads(u+1)
        if cfg.tail2 and u == 14:
            rd, late = rd[:14], rd[14:]
        if cfg.late0:
            assert cfg.tail2 and 3 <= ND <= 6 and not cfg.weave
            if 16 - ND <= u + 1 <= 14:
                rd = rd[:22]
            if u == 14:
                rd += p_reads(14)[22:]
        js = (1, 2, 3) if u >= 16 - ND else (0, 1, 2, 3)
        seq = [(T, j, s) for T in range(4) for j in (js[::-1] if (cfg.snake == 2 and T & 1) else js) for s in range(2)]
        if cfg.snake:
            seq = [(T, j, s ^ ((n // 2) & 1)) for n, (T, j, s) in enumerate(seq)]
        pb = min(cfg.pbar, 5) if len(js) == 3 else cfg.pbar
        for n, (T, j, s) in enumerate(seq):
            if u == 0:
                lg.need(("PA", b, T), ("PB", b, j))
            elif n == 0:
                lg.need(("PA", b, 0), *[("PB", b, jj) for jj in js])
            if cfg.late0 and len(js) == 3:
                if n % 6 == 0:
                    lg.need(("PA", b, T))
                e(pm(u, T, j, s))
                if n == 1:
                    e(f"s_barrier                               ; C_{u+1}")
                if n > 1 and rd:
                    emit(rd.pop(0))
                continue
            e(pm(u, T, j, s, first=(u == 0 and n % 2 == 0)))
            if n == pb:
                lg.drain()
                e(f"s_barrier                               ; C_{u+1}")
            if n > pb and rd:
                emit(rd.pop(0))
                if len(js) == 3 and n < pb + 9 and not (cfg.tail2 and u == 14):
                    emit(rd.pop(0))
        assert not rd
    seq = [(15, T, j, s) for j in (1, 2, 3) for T in range(4) for s in range(2)] + \
          [(uu, T, 0, s) for uu in (14, 15) for T in range(4) for s in range(2)]
    if cfg.tail2:
        seq = [(15, T, j, s) for Tp in range(2) for j in (1, 2, 3) for T in (2*Tp, 2*Tp+1) for s in range(2)] + seq[24:]
    if cfg.snake:
        seq = [(uu, T, j, s ^ ((n // 2) & 1)) for n, (uu, T, j, s) in enumerate(seq)]
    older = list(range(16 - ND, 14))
    fill = []
    for n, (uu, T, j, s) in enumerate(seq):
        if uu == 15 or not (cfg.late0 and n > 24):
            lg.need(("PA", 1, T), ("PB", uu & 1, j))
        e(pm(uu, T, j, s))
        if cfg.tail2:
            k = 0
            if late:
                emit(late.pop(0)); k += 1
            if n >= 6 and n % 4 == 2 and n <= 26:
                g = (n - 6) // 4
                fill += send(1 + g % 3)[5*(g // 3):5*(g // 3) + 5]
            if cfg.late0 and n == 29:
                assert not fill
                e("s_barrier                               ; C_16")
                fill += [(f"ds_read_b128 {vr(HOLD + 8*kk + 4*ss, 4)}, v{QB2+ss} offset:{(16 % 3)*8192 + kk*1024}", ("H", kk))
                         for kk in range(len(older)) for ss in range(2)]
            if cfg.late0 and n == 32:
                fill += [r for TT_ in range(4) for r in pa_rd(older[0], TT_, 0)]
            while fill and k < 2:
                emit(fill.pop(0)); k += 1
            continue
        if n in (9, 17, 25):
            fill += send(n // 8)
        if n >= 32 and older:
            fill += pa_rd(older[0], (n - 32)//2, 0)[2*(n & 1):2*(n & 1)+2]
        for _ in range(2):
            if fill:
                emit(fill.pop(0))
    if cfg.late0:
        while fill:
            emit(fill.pop(0))
    assert not fill and not (cfg.tail2 and older and not cfg.late0)
    def old_stage(k):
        for T in range(4):
            lg.need(("PA", k & 1, T), ("H", k))
            for s in range(2):
                e(pm(older[k], T, 0, s, k & 1))
                if k + 1 < len(older):
                    for r in pa_rd(older[k+1], T, (k+1) & 1)[2*s:2*s+2]:
                        emit(r)
    nbefore = min(len(older), cfg.nbef)
    for k in range(nbefore):
        old_stage(k)
    stamp(10)
    def p3_loads(d0):
        for dd in range(d0, 4):
            for d in range(nd):
                e(f"s_load_dword s{12+dd+3*d}, s[8:9], s{88+dd} offset:{d*8192} glc")
    if cfg.pp in (1, 2):
        p3_loads(1)
    e("s_add_u32 s37, s36, 4096")
    e(f"s_mov_b64 exec, {3 if cfg.dup else 1}")
    e("s_waitcnt vmcnt(0)")
    stamp(11)
    e(f"buffer_store_dword v{FONE}, v{FOFF}, s[44:47], s100 offen offset:128 sc1")
    e("s_mov_b64 exec, -1")
    if cfg.pp == 3:
        p3_loads(1)
    for k in range(nbefore, len(older)):
        old_stage(k)
    RB = 136
    if not cfg.pp:
        p3_loads(1)
    e("s_mov_b32 s30, 0xffff0000")
    e("s_waitcnt lgkmcnt(0)")
    for d in (1, 2, 3):
        e(f"s_mov_b32 s31, {cfg.spin}")
        lab(f"L_P3W{d}")
        if cfg.dup:
            e(f"s_or_b32 s5, s{12+d}, s{15+d}")
        else:
            e(f"s_cmp_lg_u32 s{12+d}, 0")
        e(f"s_cbranch_scc1 L_P3G{d}")
        p3_loads(d)
        e("s_sub_u32 s31, s31, 1")
        e(f"s_waitcnt lgkmcnt({4-d if cfg.pp == 2 else 0})")
        e(f"s_cbranch_scc0 L_P3W{d}")
        lab(f"L_P3G{d}")
        for f in (2*d - 2, 2*d - 1):
            e(f"buffer_load_dwordx4 {vr(RB+4*f,4)}, v{T1}, s[32:35], s{36 + f//4} offen offset:{(f%4)*1024}{cfg.p_ld}")
    stamp(12)
    TT = 168
    def finish(Tp):
        a0 = pacc(2*Tp, 0)
        for x in cvt4(a0, a0, pacc(2*Tp+1, 0)):
            e(x)
        e("s_nop 0")
        e(f"v_permlane32_swap_b32 v{a0}, v{a0+2}")
        e(f"v_permlane32_swap_b32 v{a0+1}, v{a0+3}")
        e("s_nop 0")
        e(f"v_permlane16_swap_b32 v{a0}, v{a0+2}")
        e(f"v_permlane16_swap_b32 v{a0+1}, v{a0+3}")
        e(f"buffer_store_dwordx4 {vr(a0,4)}, v{T1+1}, s[40:43], 0 offen offset:{Tp*64}{cfg.out_st}")
    for f in range(6):
        e(f"s_waitcnt vmcnt({5-f if f < 5 else 1})")
        Tp = f & 1
        for k in range(4):
            x = RB + 4*f + k
            e(f"v_lshlrev_b32 v{TT+2*k}, 16, v{x}")
            e(f"v_and_b32 v{TT+2*k+1}, s30, v{x}")
        for k in range(4):
            a = pacc(2*Tp + k//2, 0) + 2*(k & 1)
            e(f"v_pk_add_f32 {vr(a,2)}, {vr(a,2)}, {vr(TT+2*k,2)}")
        if f == 5: stamp(13)
        if f >= 4:
            finish(Tp)
    stamp(14)
    lab("L_FIN")
    if cfg.stamps:
        e("s_waitcnt vmcnt(0)")
        stamp(15)
        stamp_flush()
    lab("L_END")
    e("s_endpgm")

def kd(name):
    return f""".amdhsa_kernel {name}
  .amdhsa_next_free_vgpr 256
  .amdhsa_next_free_sgpr 102
  .amdhsa_accum_offset 256
  .amdhsa_group_segment_fixed_size 0
  .amdhsa_kernarg_size 104
  .amdhsa_user_sgpr_count 2
  .amdhsa_user_sgpr_kernarg_segment_ptr 1
  .amdhsa_system_sgpr_workgroup_id_x 1
.end_amdhsa_kernel
"""

prologue(); helper(); compute()
probs = check_hazards(A.L)
for p in probs:
    print("HAZARD:", p, file=sys.stderr)
K = NAME + "_kernel"
if cfg.diag:
    from diag import gen_diag
    hdr = (f"; diagnostic build\n; @launch kernel={K} grid=(256,1,1) block=(512,1,1) lds=163840\n"
           "; @launch kernel=d_kernel grid=(1,1,1) block=(256,1,1) lds=256\n")
else:
    hdr = open(os.path.join(os.path.dirname(os.path.abspath(__file__)), "header.txt")).read()
out = hdr + '.amdgcn_target "amdgcn-amd-amdhsa--gfx950"\n.text\n'
out += f".globl {K}\n.p2align 8\n.type {K},@function\n" + A.text()
if cfg.diag:
    out += ".globl d_kernel\n.p2align 8\n.type d_kernel,@function\n" + "\n".join(gen_diag(cfg.diag.strip(), STAMP_OFF)) + "\n"
out += '.section .rodata,"a"\n.p2align 6\n' + kd(K)
if cfg.diag:
    out += ".p2align 6\n" + kd("d_kernel")
open(sys.argv[1], "w").write(out)
sys.exit(1 if probs else 0)
```
